```python
import torch

def _softmax(x, axis=-1):
    return torch.softmax(x, dim=axis)
def _gelu(x):
    return torch.nn.functional.gelu(x, approximate="tanh")
def _silu(x):
    return torch.nn.functional.silu(x)
def _sigmoid(x):
    return torch.sigmoid(x)
def _layernorm(x, axis=-1, eps=1e-5):
    m = x.mean(dim=axis, keepdim=True)
    v = x.var(dim=axis, keepdim=True, unbiased=False)
    return (x - m) / torch.sqrt(v + eps)
def _scatter_add(tgt, idx, src, axis=0):
    return tgt.clone().index_add_(axis, idx, src)
def _segment_sum(src, seg, n):
    out = torch.zeros((n,) + src.shape[1:], dtype=src.dtype)
    return out.index_add_(0, seg, src)
def _pad(x, pw):
    flat = tuple(v for pair in reversed(pw) for v in pair)
    return torch.nn.functional.pad(x, flat)

kernel_name = 'interleave_layers__linear_attn_block__softmax_full_mha__prompt'

def setup_inputs():

    _w = (lambda a: (lambda t: t.to(torch.bfloat16) if t.is_floating_point() else t)(torch.as_tensor(a)))
    def _A_setup():
        B, S, D = 1, 2048, 448
        return {
            "x": _w((lambda *s: torch.randn(*s, dtype=torch.bfloat16) * 0.05)(B, S, D)),
            "wqkv": _w((lambda *s: torch.randn(*s, dtype=torch.bfloat16) * 0.1)(D, 3 * D)),
            "wo": _w((lambda *s: torch.randn(*s, dtype=torch.bfloat16) * 0.05)(D, D)),
        }
    _A_in = _A_setup()

    def _B_setup():
        B, S, D = 1, 2048, 448
        return {
            "x": _w((lambda *s: torch.randn(*s, dtype=torch.bfloat16) * 0.05)(B, S, D)),
            "wqkv": _w((lambda *s: torch.randn(*s, dtype=torch.bfloat16) * 0.1)(D, 3 * D)),
            "wo": _w((lambda *s: torch.randn(*s, dtype=torch.bfloat16) * 0.05)(D, D)),
        }
    _B_in = _B_setup()

    return {
        "A_x": _A_in["x"],
        "A_wqkv": _A_in["wqkv"],
        "A_wo": _A_in["wo"],
        "B_x": _B_in["x"],
        "B_wqkv": _B_in["wqkv"],
        "B_wo": _B_in["wo"],
    }

def reference(A_x, A_wqkv, A_wo, B_x, B_wqkv, B_wo):
    def _A_ref(x, wqkv, wo):
        B, S, D = x.shape
        H = 16; Dh = D // H
        qkv = (lambda x, *d: x.permute(*d))((x @ wqkv).reshape(B, S, 3, H, Dh), 2, 0, 3, 1, 4)
        q, k, v = qkv[0], qkv[1], qkv[2]
        phi = lambda t: torch.where(t > 0, t + 1, torch.exp(t)) + 1e-6
        pq, pk = phi(q), phi(k)
        kv = torch.einsum("bhsd,bhse->bhde", pk, v)
        z = torch.einsum("bhsd->bhd", pk)
        num = torch.einsum("bhqd,bhde->bhqe", pq, kv)
        den = torch.einsum("bhqd,bhd->bhq", pq, z)[..., None] + 1e-6
        o = num / den
        return (lambda x, *d: x.permute(*d))(o, 0, 2, 1, 3).reshape(B, S, D) @ wo

    def _B_ref(x, wqkv, wo):
        B, S, D = x.shape
        H = 16; Dh = D // H
        qkv = (lambda x, *d: x.permute(*d))((x @ wqkv).reshape(B, S, 3, H, Dh), 2, 0, 3, 1, 4)
        q, k, v = qkv[0], qkv[1], qkv[2]
        scale = Dh ** -0.5
        scores = torch.einsum("bhqd,bhkd->bhqk", q, k) * scale
        p = _softmax(scores, axis=-1)
        o = torch.einsum("bhqk,bhkd->bhqd", p, v)
        return (lambda x, *d: x.permute(*d))(o, 0, 2, 1, 3).reshape(B, S, D) @ wo

    x = A_x
    x = x + _A_ref(_layernorm(x, axis=-1), A_wqkv, A_wo)
    x = x + _B_ref(_layernorm(x, axis=-1), B_wqkv, B_wo)
    x = x + _A_ref(_layernorm(x, axis=-1), A_wqkv, A_wo)
    x = x + _B_ref(_layernorm(x, axis=-1), B_wqkv, B_wo)
    return x
```

```python
import re

TRANS = ("v_exp_f32","v_log_f32","v_rcp_f32","v_rsq_f32","v_sqrt_f32","v_sin_f32","v_cos_f32","v_rcp_iflag_f32")
def _regs(tok):
    tok = tok.strip()
    tok = re.sub(r"^-|^abs\(|\)$|^\|", "", tok).strip("|")
    tok = tok.lstrip("-")
    m = re.fullmatch(r"([vsa])(\d+)", tok)
    if m: return {(m.group(1), int(m.group(2)))}
    m = re.fullmatch(r"([vsa])\[(\d+):(\d+)\]", tok)
    if m: return {(m.group(1), i) for i in range(int(m.group(2)), int(m.group(3))+1)}
    if tok in ("vcc","vcc_lo","vcc_hi"): return {("vcc",0)}
    if tok in ("exec","exec_lo","exec_hi"): return {("exec",0)}
    if tok == "m0": return {("m0",0)}
    return set()

class Ins:
    __slots__=("text","op","ops","rd","wr","kind","passes","srcc","srcab","label","target","dpp","data")
    def __init__(self, text):
        self.text = text; self.label=None; self.target=None
        t = text.split(";")[0].strip()
        self.rd=set(); self.wr=set(); self.kind="other"; self.passes=0; self.srcc=set(); self.srcab=set(); self.dpp=False; self.data=set()
        if t.endswith(":"):
            self.label=t[:-1]; self.kind="label"; self.op=""; self.ops=[]; return
        if not t or t.startswith("."):
            self.kind="dir"; self.op=""; self.ops=[]; return
        parts = t.split(None,1)
        self.op = op = parts[0]
        rest = parts[1] if len(parts)>1 else ""
        ops = [o.strip() for o in rest.split(",")] if rest else []
        mods = []
        if ops:
            joined = rest
            mm = re.search(r"\s(op_sel|op_sel_hi|neg_lo|neg_hi|offen|offset|offset0|offset1|sc0|sc1|nt|lds|clamp|row_|quad_perm|bank_mask|row_mask|bound_ctrl|dst_sel|src0_sel|mul:|div:|off\s|glc|cbsz|abid|blgp)", joined)
            if mm:
                mods = joined[mm.start():].split()
                joined = joined[:mm.start()]
            ops = [o.strip() for o in joined.split(",")]
        self.ops = ops
        R = [_regs(o) for o in ops]
        allm = " ".join(mods)
        if op.startswith("v_mfma"):
            self.kind="mfma"
            self.passes = 8 if "32x32" in op else 4
            self.wr=R[0]; self.srcab=R[1]|R[2]; self.srcc=R[3]; self.rd=self.srcab|self.srcc
        elif op.startswith("v_"):
            self.kind="valu"
            self.dpp = ("row_" in allm) or ("quad_perm" in allm) or op.endswith("_dpp")
            if op.startswith("v_permlane"):
                self.wr=R[0]|R[1]; self.rd=R[0]|R[1]
            elif op.startswith("v_cmp"):
                self.wr=R[0]; self.rd=set().union(*R[1:])
                if op.startswith("v_cmpx"): self.wr|={("exec",0)}
            elif op.startswith(("v_add_co","v_sub_co","v_addc_co","v_subb_co")):
                self.wr=R[0]|R[1]; self.rd=set().union(*R[2:])
            elif op=="v_nop":
                pass
            else:
                self.wr=R[0]; self.rd=set().union(*R[1:]) if len(R)>1 else set()
                if op.startswith(("v_fmac","v_dot2c","v_pk_fmac","v_writelane")) or "UNUSED_PRESERVE" in allm or self.dpp: self.rd|=R[0]
        elif op == "buffer_inv":
            self.kind = "other"
        elif op.startswith(("buffer_","global_")):
            self.kind="vmem"
            if "load" in op and "lds" not in mods:
                self.wr=R[0]; self.rd=set().union(*R[1:])
            elif "load" in op:
                self.rd=set().union(*R)|{("m0",0)}
                self.kind="vmem_lds"
            else:
                self.rd=set().union(*R)
                if op.startswith("buffer_"): self.data=R[0]
                else: self.data=R[1]
                if "atomic" in op and "sc0" in mods: self.wr=R[0]
        elif op.startswith("ds_"):
            self.kind="ds"
            if op.startswith(("ds_read","ds_bpermute","ds_permute","ds_swizzle")) or "_rtn" in op:
                self.wr=R[0]; self.rd=set().union(*R[1:])
            else:
                self.rd=set().union(*R)
        elif op.startswith("s_"):
            self.kind="salu"
            if op in ("s_branch",) or op.startswith("s_cbranch"):
                self.target=ops[0]; self.kind="branch"
            elif op in ("s_nop","s_waitcnt","s_barrier","s_endpgm","s_sleep","s_setprio"):
                pass
            elif op.startswith("s_cmp") or op.startswith("s_bitcmp"):
                self.rd=set().union(*R)
            else:
                self.wr=R[0] if R else set(); self.rd=set().union(*R[1:]) if len(R)>1 else set()
                if "saveexec" in op: self.wr|={("exec",0)}
    def states(self):
        if self.kind in ("label","dir"): return 0
        if self.op=="s_nop": return int(self.ops[0],0)+1
        return 1

def vonly(s): return {r for r in s if r[0] in ("v","a")}
def sonly(s): return {r for r in s if r[0] in ("s","vcc")}

def need(p, c):
    n = 0
    pk, ck = p.kind, c.kind
    isdot = lambda i: i.op.startswith("v_dot")
    if pk=="valu":
        pw = vonly(p.wr)
        if pw:
            if ck=="mfma" and pw & c.rd: n=max(n, 3 if isdot(p) else 2)
            if ck=="valu":
                if c.op.startswith("v_permlane") and pw & c.rd: n=max(n,2)
                if c.op.startswith(("v_readlane","v_readfirstlane")) and pw & c.rd: n=max(n,1)
                if c.dpp and pw & c.rd: n=max(n,2)
                if p.op.replace("_e64","").replace("_e32","") in TRANS and c.op.replace("_e64","").replace("_e32","") not in TRANS and pw & c.rd: n=max(n,1)
                if isdot(p) and (pw & (c.rd|c.wr)):
                    if c.op==p.op and not (pw & (set().union(*[_regs(o) for o in c.ops[1:3]]))): pass
                    else: n=max(n,3)
                if "sdwa" in p.op and pw & (c.rd|c.wr): n=max(n,1)
            if isdot(p) and ck in ("vmem","ds","vmem_lds") and pw & c.rd: n=max(n,3)
            if p.op.replace("_e64","").replace("_e32","") in TRANS and ck in("vmem","ds","mfma") and pw & c.rd: n=max(n,2 if ck=="mfma" else 1)
        sw = sonly(p.wr)
        if sw:
            if ck=="valu":
                crd = set(c.rd)
                if c.op.startswith("v_cndmask") and len(c.ops)==4 or c.op.startswith("v_addc"): pass
                if sw & crd:
                    n=max(n, 4 if c.op.startswith(("v_readlane","v_writelane")) else 2)
            if ck in ("vmem","vmem_lds") and sw & c.rd: n=max(n,5)
            if ck in ("salu","branch") and (sw & c.rd or (("vcc",0) in sw and "vcc" in c.op)): n=max(n,2)
        if ("exec",0) in p.wr:
            if ck=="mfma": n=max(n,4)
            if ck=="valu" and (c.dpp): n=max(n,5)
            if ck=="valu" and c.op.startswith(("v_readlane","v_readfirstlane","v_writelane","v_permlane")): n=max(n,4)
    if pk=="mfma":
        big = p.passes==8
        if ck=="mfma":
            if p.wr & c.srcab: n=max(n, 12 if big else 8)
            if p.wr & c.srcc:
                if not (p.wr==c.srcc and p.passes==c.passes): n=max(n, 10 if big else 6)
            elif p.wr & c.wr: n=max(n, 10 if big else 6)
        elif ck in ("valu","vmem","ds","vmem_lds"):
            if p.wr & (c.rd|c.wr): n=max(n, 12 if big else 8)
            if ck=="valu" and p.srcc & c.wr: n=max(n, 7 if big else 3)
            if ck in ("vmem","ds") and p.srcc & c.wr: n=max(n, 7 if big else 3)
    if pk=="vmem" and len(p.data)>=3:
        if p.data & c.wr: n=max(n, 2)
    if pk=="salu" and ("m0",0) in p.wr and ck=="vmem_lds": n=max(n,1)
    if pk=="salu" and ("exec",0) in p.wr and ck=="valu" and c.dpp: n=max(n,1)
    return n

class Asm:
    def __init__(self):
        self.lines=[]; self._n=0
    def __call__(self, text):
        for l in text.split("\n"):
            l=l.strip()
            if l: self.lines.append(l)
    def label(self, base="L"):
        self._n+=1; return f"{base}_{self._n}"
    def resolve(self, verbose=False):
        ins=[Ins(l) for l in self.lines]
        W=13
        total=0
        while True:
            lab={i.label:k for k,i in enumerate(ins) if i.label}
            preds=[[] for _ in ins]
            for k,i in enumerate(ins):
                if i.kind=="branch":
                    if i.target in lab: preds[lab[i.target]].append(k)
                    if i.op!="s_branch" and k+1<len(ins): preds[k+1].append(k)
                elif i.op=="s_endpgm": pass
                elif k+1<len(ins): preds[k+1].append(k)
            ins_at={}
            for k,c in enumerate(ins):
                if c.kind in ("label","dir") or c.op in("s_nop","s_waitcnt","s_barrier","s_endpgm","s_sleep"): continue
                req=0
                stack=[(p,0) for p in preds[k]]
                seen={}
                while stack:
                    p,d=stack.pop()
                    if d>=W: continue
                    if seen.get(p,99)<=d: continue
                    seen[p]=d
                    pi=ins[p]
                    if pi.kind not in("label","dir"):
                        n=need(pi,c)
                        if n>d: req=max(req,n-d)
                    nd=d+pi.states()
                    for q in preds[p]: stack.append((q,nd))
                if req: ins_at[k]=req
            if not ins_at: break
            out=[]; last=-100
            for k,c in enumerate(ins):
                if k in ins_at and k-last>W:
                    out.append(Ins(f"s_nop {ins_at[k]-1}")); total+=ins_at[k]; last=k
                    if verbose: print("nop",ins_at[k],"before",c.text)
                out.append(c)
            ins=out
        self.nops=total
        return "\n".join((i.text if i.kind=="label" or i.kind=="dir" else "    "+i.text) for i in ins)+"\n"
```

```python
import sys, struct, math
sys.path.insert(0, "dev")
from asmb import Asm

NAME = "interleave_layers__linear_attn_block__softmax_full_mha__prompt_kernel"

def f2u(x): return struct.unpack("<I", struct.pack("<f", x))[0]
def hx(x): return "0x%08x" % (x & 0xffffffff)

R1 = 0
R2 = 86016
SCR = 144384
CSA = SCR + 16384
STW = CSA + 768
LDS_TOTAL = 163840
OFF_X, OFF_O, OFF_KV, OFF_ST = 0x000000, 0x200000, 0x400000, 0x800000
PROF_OFF = 0x8000000

S_X, S_WQ, S_WO, S_OUT, S_DBG, S_WS, S_XOUT, S_CODE = 8, 12, 16, 20, 24, 28, 32, 36
sWAVE, sRB, sH, sTP, sCG, sISWO, sL, sLB = 40, 41, 42, 43, 44, 45, 46, 47
sT, sTW, sC, sFB, sSPIN = 48, 49, 50, 51, 52
sA, sB_, sC_, sD, sE, sF = 53, 54, 55, 56, 57, 58
sMPAD = 60
sK0 = 62
PTR = 64
sSO0, sSO1 = 82, 83
sKMAX = 84
sG, sHH = 85, 86
sPC = 88
sST0 = 90
sPI = 92
sLOOP = 93
sOFF = 94
sOFFMAX = 95
sRETRY = 96
def srd(b): return f"s[{b}:{b+3}]"

vTID, vLANE, vL16, vTQ0, vTQ1, vWK, vWS_, vRM = 0, 1, 2, 3, 4, 5, 6, 7
vXO, vPADV, vA, vNM, vCS0, vCS1, vT0, vT1 = 8, 9, 10, 11, 12, 13, 14, 15
XRES = 16
XF = 32
ACK, ACV, ACQ = 144, 160, 176
WF = 192
SA, SB = 208, 224
CS16 = 240
def v(b, n=1): return f"v{b}" if n == 1 else f"v[{b}:{b+n-1}]"

LOG2E = 1.4426950408889634
QSCALE = LOG2E / math.sqrt(28.0)
SHIFT_UP = 40.0
L_MIN = 2.0 ** -60


class Cnt:
    def __init__(self, name, mx): self.name, self.q, self.mx = name, [], mx
    def issue(self, tag): self.q.append(tag)
    def n_after(self, tag):
        idx = max(i for i, t in enumerate(self.q) if t == tag)
        n = len(self.q) - 1 - idx
        self.q = self.q[idx + 1:]
        assert n <= self.mx, (self.name, n)
        return n
    def has(self, tag): return tag in self.q
    def clear(self): self.q = []


class Gen:
    def __init__(self, stop=None, prof=False):
        self.a = Asm(); self.stop = stop; self.prof = prof
        self.vm = Cnt("vmcnt", 63); self.lg = Cnt("lgkmcnt", 15)
        self.nstamp = 0

    def mfma(self, d, A, B, C):
        c = "0" if C is None else v(C, 16)
        self.a(f"v_mfma_f32_32x32x16_bf16 {v(d,16)}, {v(A,4)}, {v(B,4)}, {c}")
    def wait(self, vm=None, lg=None):
        parts = []
        if vm is not None and self.vm.has(vm): parts.append(f"vmcnt({self.vm.n_after(vm)})")
        if lg is not None and self.lg.has(lg): parts.append(f"lgkmcnt({self.lg.n_after(lg)})")
        if parts: self.a("s_waitcnt " + " ".join(parts))
    def wait_all(self, vm=True, lg=True):
        p = []
        if vm: p.append("vmcnt(0)"); self.vm.clear()
        if lg: p.append("lgkmcnt(0)"); self.lg.clear()
        self.a("s_waitcnt " + " ".join(p))
    def exec_all(self): self.a("s_mov_b64 exec, -1")
    def exec_hi(self): self.a("s_mov_b32 exec_lo, 0\ns_mov_b32 exec_hi, -1")
    def exec_lo(self): self.a("s_mov_b32 exec_lo, -1\ns_mov_b32 exec_hi, 0")
    def barrier(self): self.a("s_barrier")
    def stamp(self, idx):
        if not self.prof: return
        a = self.a
        lab = a.label("Lst")
        a(f"""s_cmp_lg_u32 s{sWAVE}, 0
        s_cbranch_scc1 {lab}
        s_memrealtime s[{sST0}:{sST0+1}]
        s_lshl_b32 s{sPI}, s{sL}, 4
        s_add_u32 s{sPI}, s{sPI}, {idx}
        s_lshl_b32 s{sPI}, s{sPI}, 2
        s_waitcnt lgkmcnt(0)
        s_lshl_b32 s{sST0+1}, s2, 8
        s_add_u32 s{sPI}, s{sPI}, s{sST0+1}
        s_add_u32 s{sPI}, s{sPI}, {hx(PROF_OFF)}
        s_mov_b64 exec, 1
        v_mov_b32 {v(vXO)}, s{sST0}
        buffer_store_dword {v(vXO)}, off, {srd(S_WS)}, s{sPI}
        s_mov_b64 exec, -1
        s_waitcnt vmcnt(0)
        {lab}:""")
    def maybe_stop(self, name):
        if self.stop and self.stop[0] == name:
            a = self.a
            lab = a.label("Lns")
            a(f"""s_cmp_lg_u32 s{sL}, {self.stop[1]}
            s_cbranch_scc1 {lab}
            s_waitcnt vmcnt(0) lgkmcnt(0)
            s_endpgm
            {lab}:""")

    def poll(self, vaddr, soff, srd_b=S_WS, vdst=vT0, want=None):
        a = self.a
        L, D = a.label("Lpoll"), a.label("Lpd")
        cmp_ = f"v_cmp_eq_u32 vcc, 0, {v(vdst)}" if want is None else f"v_cmp_ne_u32 vcc, {want}, {v(vdst)}"
        a(f"""s_mov_b32 s{sSPIN}, 40000
        {L}:
        buffer_load_dword {v(vdst)}, {v(vaddr)}, {srd(srd_b)}, {soff} offen sc1
        s_waitcnt vmcnt(0)
        {cmp_}
        s_cbranch_vccz {D}
        s_sub_u32 s{sSPIN}, s{sSPIN}, 1
        s_cmp_eq_u32 s{sSPIN}, 0
        s_cbranch_scc0 {L}
        s_endpgm
        {D}:""")
        self.vm.clear()

    def flag_store(self, vval, soff):
        a = self.a
        a(f"""s_waitcnt vmcnt(0)
        s_mov_b64 exec, 1
        v_mov_b32 {v(vT1)}, 0
        buffer_store_dword {v(vval)}, {v(vT1)}, {srd(S_WS)}, {soff} offen sc1
        s_mov_b64 exec, -1""")
        self.vm.clear()
        self.vm.issue("flag")

    def prologue(self):
        a = self.a
        a(f"""s_cmp_ge_u32 s2, 256
        s_cbranch_scc1 L_end
        s_load_dwordx16 s[{PTR}:{PTR+15}], s[0:1], 0
        s_load_dwordx2 s[{PTR+16}:{PTR+17}], s[0:1], 64
        v_lshrrev_b32 {v(vT0)}, 6, v0
        v_and_b32 {v(vLANE)}, 63, v0
        v_readfirstlane_b32 s{sWAVE}, {v(vT0)}
        v_lshlrev_b32 {v(vL16)}, 4, {v(vLANE)}
        s_and_b32 s{sA}, s2, 7
        s_lshr_b32 s{sB_}, s2, 3
        s_lshr_b32 s{sRB}, s{sA}, 1
        s_lshl_b32 s{sRB}, s{sRB}, 2
        s_and_b32 s{sC_}, s{sB_}, 3
        s_add_u32 s{sRB}, s{sRB}, s{sC_}
        s_and_b32 s{sH}, s{sA}, 1
        s_lshl_b32 s{sH}, s{sH}, 3
        s_lshr_b32 s{sC_}, s{sB_}, 2
        s_add_u32 s{sH}, s{sH}, s{sC_}
        s_mul_i32 s{sC_}, s{sB_}, 37
        s_lshr_b32 s{sC_}, s{sC_}, 8
        s_mul_i32 s{sD}, s{sC_}, 7
        s_sub_u32 s{sCG}, s{sB_}, s{sD}
        s_lshl_b32 s{sTP}, s{sA}, 2
        s_add_u32 s{sTP}, s{sTP}, s{sC_}
        s_cmp_lt_u32 s{sB_}, 28
        s_cselect_b32 s{sISWO}, 1, 0
        s_cselect_b32 s{sTP}, s{sTP}, 0
        s_mov_b32 s{sL}, 0
        s_mov_b32 s{sLB}, 0x1000000
        s_mov_b32 s{sFB}, 0
        s_mov_b32 s{sMPAD}, 0xf0000000
        s_mov_b32 s{sMPAD+1}, 0xf0000000
        """)
        a(f"""v_lshrrev_b32 v16, 5, {v(vLANE)}
        v_bfe_u32 v17, {v(vLANE)}, 4, 1
        v_bfe_u32 v18, {v(vLANE)}, 2, 2
        v_and_b32 v19, 3, {v(vLANE)}
        v_lshlrev_b32 v20, 5, v17
        v_lshl_add_u32 v20, v19, 3, v20
        v_lshl_add_u32 v21, v16, 3, v18
        v_mul_u32_u24 v21, 192, v21
        v_add_u32 {v(vTQ0)}, v21, v20
        v_add_u32 {v(vTQ1)}, {R1 + 14*3072}, {v(vTQ0)}
        v_lshl_add_u32 v21, v16, 2, v18
        v_lshlrev_b32 v21, 7, v21
        v_add_u32 v21, v21, v20
        v_add_u32 v21, {R2}, v21
        v_lshrrev_b32 v22, 1, v18
        v_and_b32 v23, 31, {v(vLANE)}
        v_mul_u32_u24 {v(vRM)}, 896, v23
        v_lshl_add_u32 {v(vRM)}, v16, 4, {v(vRM)}
        v_cmp_eq_u32 vcc, 28, v23
        v_mov_b32 v24, 0x3f803f80
        v_cndmask_b32 {v(vPADV)}, 0, v24, vcc
        s_lshr_b32 s{sA}, s{sWAVE}, 1
        s_and_b32 s{sA}, s{sA}, 1
        v_xor_b32 v22, s{sA}, v22
        v_lshl_add_u32 {v(vWK)}, v22, 6, v21
        v_xor_b32 v22, 1, v22
        v_lshl_add_u32 {v(vWS_)}, v22, 6, v21
        s_mul_i32 s{sB_}, s{sA}, {8*28*128}
        v_add_u32 {v(vWK)}, s{sB_}, {v(vWK)}
        v_add_u32 {v(vWS_)}, s{sB_}, {v(vWS_)}
        s_lshl_b32 s{sC}, s{sCG}, 1
        s_add_u32 s{sC}, s{sC}, s{sA}
        s_and_b32 s{sA}, s{sWAVE}, 1
        s_lshl_b32 s{sTW}, s{sTP}, 1
        s_add_u32 s{sTW}, s{sTW}, s{sA}
        s_and_b32 s{sA}, s{sWAVE}, 3
        s_lshl_b32 s{sT}, s{sRB}, 2
        s_add_u32 s{sT}, s{sT}, s{sA}
        s_waitcnt lgkmcnt(0)
        """)
        def mk(b, p, size):
            a(f"""s_mov_b32 s{b}, s{PTR+2*p}
            s_mov_b32 s{b+1}, s{PTR+2*p+1}
            s_mov_b32 s{b+2}, {size}
            s_mov_b32 s{b+3}, 0x20000""")
        mk(S_X, 0, 1835008); mk(S_WQ, 1, 1204224); mk(S_WO, 2, 401408)
        mk(S_OUT, 6, 1835008); mk(S_DBG, 7, 256); mk(S_WS, 8, 0x10000000); mk(S_XOUT, 8, 0x10000000)
        a(f"""s_cmp_ge_u32 s{sWAVE}, 4
        s_cbranch_scc1 L_helper""")

    def stats_finish(self, vS, vQ):
        a = self.a
        a(f"""v_mov_b32 {v(vT0)}, {v(vS)}
        v_mov_b32 {v(vT1)}, {v(vQ)}
        v_permlane32_swap_b32 {v(vT0)}, {v(vS)}
        v_permlane32_swap_b32 {v(vT1)}, {v(vQ)}
        v_add_f32 {v(vS)}, {v(vS)}, {v(vT0)}
        v_add_f32 {v(vQ)}, {v(vQ)}, {v(vT1)}
        v_mul_f32 {v(vNM)}, {hx(f2u(-1.0/448))}, {v(vS)}
        v_mul_f32 {v(vQ)}, {hx(f2u(1.0/448))}, {v(vQ)}
        v_fma_f32 {v(vQ)}, -{v(vNM)}, {v(vNM)}, {v(vQ)}
        v_max_f32 {v(vQ)}, 0, {v(vQ)}
        v_add_f32 {v(vQ)}, {hx(f2u(1e-5))}, {v(vQ)}
        v_rsq_f32 {v(vA)}, {v(vQ)}
        s_lshl_b32 s{sA}, s{sWAVE}, 8
        s_add_u32 s{sA}, s{sA}, {STW}
        v_and_b32 {v(vT0)}, 31, {v(vLANE)}
        v_lshl_add_u32 {v(vT0)}, {v(vT0)}, 2, s{sA}
        v_lshrrev_b32 {v(vT1)}, 5, {v(vLANE)}
        v_lshl_add_u32 {v(vT1)}, {v(vT1)}, 4, s{sA}
        ds_write_b32 {v(vT0)}, {v(vA)}
        ds_write_b32 {v(vT0)}, {v(vNM)} offset:128""")
        self.lg.issue("stw"); self.lg.issue("stw")
        for q in range(4):
            a(f"ds_read_b128 {v(SA+4*q,4)}, {v(vT1)} offset:{32*q}"); self.lg.issue("st")
        for q in range(4):
            a(f"ds_read_b128 {v(SB+4*q,4)}, {v(vT1)} offset:{128+32*q}"); self.lg.issue("st")

    def tr_pair(self, dst, s, seg, tag):
        base, off = (vTQ0, s * 3072) if s < 14 else (vTQ1, (s - 14) * 3072)
        off += seg * 64
        self.a(f"ds_read_b64_tr_b16 {v(dst,2)}, {v(base)} offset:{off}"); self.lg.issue(tag)
        self.a(f"ds_read_b64_tr_b16 {v(dst+2,2)}, {v(base)} offset:{off+768}"); self.lg.issue(tag)

    def xload(self, s):
        a = self.a
        if s and s % 4 == 0: a(f"s_add_u32 s{sOFF}, s{sOFF}, 4096")
        a(f"buffer_load_dwordx4 {v(XF+4*s,4)}, {v(vL16)}, {srd(S_WS)}, s{sOFF} offen offset:{(s%4)*1024} sc1")
        self.vm.issue(("x", s))

    def kv_loop(self, typ, loads, D=14):
        a = self.a
        self.tr_pair(WF, 0, 1, ("w", 0)); self.tr_pair(WF + 4, 0, 2, ("w", 0))
        for s in range(28):
            p = s & 1
            if s + 1 < 28:
                self.tr_pair(WF + 8 * (1 - p), s + 1, 1, ("w", s + 1)); self.tr_pair(WF + 8 * (1 - p) + 4, s + 1, 2, ("w", s + 1))
            self.wait(vm=("x", s), lg=("w", s))
            wk, wv, x = WF + 8 * p, WF + 8 * p + 4, XF + 4 * s
            if typ == "A": self.mfma(ACK, x, wk, ACK if s else None)
            else: self.mfma(ACK, wk, x, ACK if s else None)
            self.mfma(ACV, x, wv, ACV if s else None)
            if loads and s + D < 28: self.xload(s + D)

    def q_loop(self):
        for s in range(3): self.tr_pair(WF + 4 * s, s, 0, ("w", s))
        for s in range(28):
            if s + 3 < 28: self.tr_pair(WF + 4 * ((s + 3) & 3), s + 3, 0, ("w", s + 3))
            self.wait(lg=("w", s))
            self.mfma(ACQ, WF + 4 * (s & 3), XF + 4 * s, ACQ if s else None)

    def load_cs_lane(self, typ):
        a = self.a
        base = CSA + (0 if typ == "A" else 384)
        a(f"""v_and_b32 {v(vT0)}, 31, {v(vLANE)}
        v_lshlrev_b32 {v(vT0)}, 2, {v(vT0)}
        v_add_u32 {v(vT0)}, {base}, {v(vT0)}
        ds_read_b32 {v(vCS0)}, {v(vT0)} offset:128
        ds_read_b32 {v(vCS1)}, {v(vT0)} offset:256""")
        self.lg.issue("cs"); self.lg.issue("cs")
    def load_cs_reg(self, typ, seg):
        a = self.a
        base = CSA + (0 if typ == "A" else 384) + seg * 128
        a(f"""v_lshrrev_b32 {v(vT0)}, 5, {v(vLANE)}
        v_lshlrev_b32 {v(vT0)}, 4, {v(vT0)}
        v_add_u32 {v(vT0)}, {base}, {v(vT0)}""")
        for q in range(4):
            a(f"ds_read_b128 {v(CS16+4*q,4)}, {v(vT0)} offset:{32*q}"); self.lg.issue("cs16")

    def fix_feat(self, acc, vcs):
        assert vcs % 2 == 0 or True
        pair = vcs & ~1; sel = vcs & 1
        for r in range(0, 16, 2):
            self.a(f"v_pk_fma_f32 {v(acc+r,2)}, {v(SB+r,2)}, {v(pair,2)}, {v(acc+r,2)} op_sel:[0,{sel},0] op_sel_hi:[1,{sel},1]")
    def fix_tok(self, acc):
        pair = vNM & ~1; sel = vNM & 1
        for r in range(0, 16, 2):
            self.a(f"v_pk_fma_f32 {v(acc+r,2)}, {v(CS16+r,2)}, {v(pair,2)}, {v(acc+r,2)} op_sel:[0,{sel},0] op_sel_hi:[1,{sel},1]")
    def scale_lane(self, acc, vs):
        pair = vs & ~1; sel = vs & 1
        for r in range(0, 16, 2):
            self.a(f"v_pk_mul_f32 {v(acc+r,2)}, {v(acc+r,2)}, {v(pair,2)} op_sel:[0,{sel}] op_sel_hi:[1,{sel}]")
    def phi(self, acc, tmp, dst):
        a = self.a
        for r in range(0, 16, 2):
            a(f"v_pk_mul_f32 {v(tmp+r,2)}, {v(acc+r,2)}, s[{sK0}:{sK0+1}] op_sel:[0,0] op_sel_hi:[1,0]")
        for r in range(16):
            a(f"v_exp_f32_e64 {v(tmp+r)}, {v(tmp+r)} clamp")
            a(f"v_max_f32 {v(acc+r)}, s{sK0+1}, {v(acc+r)}")
        for r in range(0, 16, 2):
            a(f"v_pk_add_f32 {v(acc+r,2)}, {v(acc+r,2)}, {v(tmp+r,2)}")
        self.pack(acc, dst)
    def pack(self, src, dst):
        for i in range(8):
            self.a(f"v_cvt_pk_bf16_f32 {v(dst+i)}, {v(src+2*i)}, {v(src+2*i+1)}")

    def finalize_o(self, D, P, eps):
        a = self.a
        a(f"""v_mov_b32 {v(vT0)}, {v(D+12)}
        v_mov_b32 {v(vT1)}, {v(D+12)}
        v_permlane32_swap_b32 {v(vT0)}, {v(vT1)}""")
        if eps: a(f"v_add_f32 {v(vT1)}, {hx(f2u(1e-6))}, {v(vT1)}")
        a(f"""v_rcp_f32 {v(vT0)}, {v(vT1)}
        s_lshl_b32 s{sA}, s{sT}, 4
        s_add_u32 s{sA}, s{sA}, s{sH}
        s_lshl_b32 s{sB_}, s{sA}, 11
        s_add_u32 s{sB_}, s{sB_}, s{sLB}
        s_add_u32 s{sB_}, s{sB_}, {hx(OFF_O)}
        s_lshl_b32 s{sA}, s{sA}, 2
        s_add_u32 s{sA}, s{sA}, s{sFB}
        s_add_u32 s{sA}, s{sA}, 4096""")
        self.scale_lane(D, vT0)
        self.pack(D, P)
        self.exec_hi()
        a(f"v_mov_b32 {v(P+6)}, 0\nv_mov_b32 {v(P+7)}, 0")
        self.exec_all()
        a(f"""buffer_store_dwordx4 {v(P,4)}, {v(vL16)}, {srd(S_WS)}, s{sB_} offen sc1
        buffer_store_dwordx4 {v(P+4,4)}, {v(vL16)}, {srd(S_WS)}, s{sB_} offen offset:1024 sc1""")
        self.vm.issue("o"); self.vm.issue("o")

    def qkv_front(self):
        a = self.a
        D = 14
        a(f"""v_min_u32 {v(vT1)}, 13, {v(vLANE)}
        v_lshlrev_b32 {v(vT1)}, 2, {v(vT1)}
        s_lshl_b32 s{sA}, s{sT}, 6
        s_add_u32 s{sA}, s{sA}, s{sFB}
        s_sub_u32 s{sA}, s{sA}, 4096""")
        a(f"""v_lshrrev_b32 {v(vCS0)}, 5, {v(vLANE)}
        v_mul_u32_u24 {v(vCS0)}, {7*256}, {v(vCS0)}
        v_and_b32 {v(vCS1)}, 31, {v(vLANE)}
        v_lshl_add_u32 {v(vCS0)}, {v(vCS1)}, 3, {v(vCS0)}
        s_mul_i32 s{sB_}, s{sT}, {14*256}
        s_add_u32 s{sB_}, s{sB_}, s{sLB}
        s_add_u32 s{sB_}, s{sB_}, {hx(OFF_ST - 0x1000000)}
        s_mul_i32 s{sOFF}, s{sT}, 28672
        s_add_u32 s{sOFF}, s{sOFF}, s{sLB}
        s_sub_u32 s{sOFF}, s{sOFF}, 0x1000000""")
        self.poll(vT1, f"s{sA}")
        self.stamp(1)
        for i in range(7):
            a(f"buffer_load_dwordx2 {v(ACQ+2*i,2)}, {v(vCS0)}, {srd(S_WS)}, s{sB_} offen offset:{256*i} sc1"); self.vm.issue("st")
        for s in range(D): self.xload(s)
        self.wait(vm="st")
        for i in range(1, 7):
            a(f"v_pk_add_f32 {v(ACQ,2)}, {v(ACQ,2)}, {v(ACQ+2*i,2)}")
        self.stats_finish(ACQ, ACQ + 1)

    def first_front(self):
        a = self.a
        a(f"s_mul_i32 s{sOFF}, s{sT}, 28672")
        for s in range(28):
            a(f"buffer_load_dwordx4 {v(XF+4*s,4)}, {v(vRM)}, {srd(S_X)}, s{sOFF} offen offset:{32*s}"); self.vm.issue(("x", s))
        a(f"""s_mul_i32 s{sA}, s{sTW}, 28672
        s_lshl_b32 s{sB_}, s{sC}, 6
        s_add_u32 s{sA}, s{sA}, s{sB_}
        buffer_load_dwordx4 {v(WF,4)}, {v(vRM)}, {srd(S_X)}, s{sA} offen
        buffer_load_dwordx4 {v(WF+4,4)}, {v(vRM)}, {srd(S_X)}, s{sA} offen offset:32
        s_mov_b32 s{sB_}, 0x3f803f80""")
        self.vm.issue("res"); self.vm.issue("res")
        for i in range(4): a(f"v_mov_b32 {v(ACQ+i)}, 0")
        for s in range(28):
            self.wait(vm=("x", s))
            for j in range(4):
                r = XF + 4 * s + j
                a(f"v_dot2_f32_bf16 {v(ACQ+(j&1)*2)}, {v(r)}, s{sB_}, {v(ACQ+(j&1)*2)}")
                a(f"v_dot2_f32_bf16 {v(ACQ+(j&1)*2+1)}, {v(r)}, {v(r)}, {v(ACQ+(j&1)*2+1)}")
        a(f"v_pk_add_f32 {v(ACQ,2)}, {v(ACQ,2)}, {v(ACQ+2,2)}")
        self.stats_finish(ACQ, ACQ + 1)
        self.wait(vm="res")
        for f in range(2):
            a(f"v_permlane32_swap_b32 {v(WF+4*f)}, {v(WF+4*f+2)}\nv_permlane32_swap_b32 {v(WF+4*f+1)}, {v(WF+4*f+3)}")
        for i in range(8):
            a(f"v_lshlrev_b32 {v(XRES+2*i)}, 16, {v(WF+i)}\nv_and_b32 {v(XRES+2*i+1)}, 0xffff0000, {v(WF+i)}")

    def layer_A(self):
        a = self.a
        a("L_layerA:")
        a(f"""s_mov_b32 s{sK0}, {hx(f2u(LOG2E))}
        s_mov_b32 s{sK0+1}, {hx(f2u(1e-6))}
        s_cmp_eq_u32 s{sL}, 0
        s_cbranch_scc0 L_A_later""")
        self.first_front()
        self.wait_all(vm=False)
        self.barrier()
        self.stamp(2)
        self.kv_loop("A", False)
        self.barrier()
        a("s_branch L_A_epi\nL_A_later:")
        self.vm.clear(); self.lg.clear()
        self.qkv_front()
        self.wait_all(vm=False)
        self.barrier()
        self.stamp(2)
        self.kv_loop("A", True)
        a("L_A_epi:")
        self.vm.clear(); self.lg.clear()
        self.stamp(3)
        self.load_cs_lane("A")
        self.wait(lg="cs")
        self.fix_feat(ACK, vCS0)
        self.fix_feat(ACV, vCS1)
        for r in range(0, 16, 2):
            a(f"v_pk_fma_f32 {v(ACK+r,2)}, {v(ACK+r,2)}, {v(SA+r,2)}, s[{sK0}:{sK0+1}] op_sel:[0,0,1] op_sel_hi:[1,1,1]")
        for r in range(0, 16, 2):
            a(f"v_pk_mul_f32 {v(ACV+r,2)}, {v(ACV+r,2)}, {v(SA+r,2)}")
        self.pack(ACV, WF + 8)
        for i in range(8):
            a(f"v_cndmask_b32 {v(WF+8+i)}, {v(WF+8+i)}, {v(vPADV)}, s[{sMPAD}:{sMPAD+1}]")
        self.phi(ACK, CS16, WF)
        self.mfma(ACK, WF, WF + 8, None)
        self.mfma(ACK, WF + 4, WF + 12, ACK)
        a(f"""s_lshl_b32 s{sA}, s{sWAVE}, 12
        s_add_u32 s{sA}, s{sA}, {SCR}
        v_add_u32 {v(vT0)}, s{sA}, {v(vL16)}""")
        for q in range(4):
            a(f"ds_write_b128 {v(vT0)}, {v(ACK+4*q,4)} offset:{1024*q}")
        self.wait_all(vm=False)
        self.barrier()
        a(f"""s_cmp_ge_u32 s{sWAVE}, 2
        s_cbranch_scc1 L_A_q
        s_lshl_b32 s{sA}, s{sWAVE}, 11
        s_add_u32 s{sA}, s{sA}, {SCR}
        v_add_u32 {v(vT0)}, s{sA}, {v(vL16)}""")
        for w in range(4):
            a(f"ds_read_b128 {v(ACK+8*w,4)}, {v(vT0)} offset:{4096*w}\nds_read_b128 {v(ACK+8*w+4,4)}, {v(vT0)} offset:{4096*w+1024}")
        a(f"""s_lshl_b32 s{sA}, s{sH}, 4
        s_add_u32 s{sA}, s{sA}, s{sRB}
        s_lshl_b32 s{sA}, s{sA}, 1
        s_add_u32 s{sA}, s{sA}, s{sWAVE}
        s_lshl_b32 s{sB_}, s{sA}, 10
        s_add_u32 s{sB_}, s{sB_}, s{sLB}
        s_add_u32 s{sB_}, s{sB_}, {hx(OFF_KV)}
        s_lshl_b32 s{sA}, s{sA}, 2
        s_add_u32 s{sA}, s{sA}, s{sFB}
        s_waitcnt lgkmcnt(0)""")
        for r in range(0, 8, 2):
            a(f"v_pk_add_f32 {v(ACK+r,2)}, {v(ACK+r,2)}, {v(ACK+8+r,2)}\nv_pk_add_f32 {v(ACK+16+r,2)}, {v(ACK+16+r,2)}, {v(ACK+24+r,2)}")
        for r in range(0, 8, 2):
            a(f"v_pk_add_f32 {v(ACK+r,2)}, {v(ACK+r,2)}, {v(ACK+16+r,2)}")
        for i in range(4):
            a(f"v_cvt_pk_bf16_f32 {v(ACK+8+i)}, {v(ACK+2*i)}, {v(ACK+2*i+1)}")
        a(f"""buffer_store_dwordx4 {v(ACK+8,4)}, {v(vL16)}, {srd(S_WS)}, s{sB_} offen sc1
        v_mov_b32 {v(vT0)}, 1""")
        self.flag_store(vT0, f"s{sA}")
        a("L_A_q:")
        self.vm.clear(); self.lg.clear()
        self.stamp(4)
        self.load_cs_reg("A", 0)
        self.q_loop()
        self.fix_tok(ACQ)
        pair = vA & ~1; sel = vA & 1
        for r in range(0, 16, 2):
            a(f"v_pk_fma_f32 {v(ACQ+r,2)}, {v(ACQ+r,2)}, {v(pair,2)}, s[{sK0}:{sK0+1}] op_sel:[0,{sel},1] op_sel_hi:[1,{sel},1]")
        PQ = WF
        self.phi(ACQ, CS16, PQ)
        self.exec_hi()
        a(f"v_mov_b32 {v(PQ+6)}, 0\nv_mov_b32 {v(PQ+7)}, 0")
        self.exec_all()
        ID = WF + 8
        a(f"""v_lshrrev_b32 {v(vT0)}, 5, {v(vLANE)}
        v_and_b32 {v(vT1)}, 31, {v(vLANE)}
        v_lshlrev_b32 {v(vT0)}, 2, {v(vT0)}
        v_sub_u32 {v(vT1)}, {v(vT1)}, {v(vT0)}
        v_mov_b32 {v(ACK)}, 0x3f80
        v_mov_b32 {v(ACK+1)}, 0x3f800000""")
        for i in range(8):
            d0 = 16 * (i >> 2) + 8 * ((i & 3) >> 1) + 2 * (i & 1)
            a(f"""v_cmp_eq_u32 vcc, {d0}, {v(vT1)}
            v_cndmask_b32 {v(ID+i)}, 0, {v(ACK)}, vcc
            v_cmp_eq_u32 vcc, {d0+1}, {v(vT1)}
            v_cndmask_b32 {v(ID+i)}, {v(ID+i)}, {v(ACK+1)}, vcc""")
        self.barrier()
        self.stamp(5)
        self.maybe_stop("A_q")
        a(f"""v_and_b32 {v(vT1)}, 7, {v(vLANE)}
        v_lshlrev_b32 {v(vT1)}, 2, {v(vT1)}
        s_lshl_b32 s{sA}, s{sH}, 2
        s_add_u32 s{sA}, s{sA}, s{sWAVE}
        s_lshl_b32 s{sB_}, s{sA}, 13
        s_add_u32 s{sB_}, s{sB_}, s{sLB}
        s_add_u32 s{sB_}, s{sB_}, {hx(OFF_KV)}
        s_add_u32 s{sC_}, s{sB_}, 4096
        s_lshl_b32 s{sA}, s{sA}, 5
        s_add_u32 s{sA}, s{sA}, s{sFB}""")
        self.poll(vT1, f"s{sA}")
        self.stamp(6)
        for i in range(8):
            so = sB_ if i < 4 else sC_
            a(f"buffer_load_dwordx4 {v(XF+4*i,4)}, {v(vL16)}, {srd(S_WS)}, s{so} offen offset:{(i&3)*1024} sc1"); self.vm.issue(("p", i))
        for i in range(8):
            self.wait(vm=("p", i))
            self.mfma(ACK, ID + 4 * (i & 1), XF + 4 * i, ACK if i else None)
        a(f"""s_lshl_b32 s{sA}, s{sWAVE}, 12
        s_add_u32 s{sA}, s{sA}, {SCR}
        v_add_u32 {v(vT0)}, s{sA}, {v(vL16)}
        v_add_u32 {v(vT1)}, {SCR}, {v(vL16)}""")
        for q in range(4):
            a(f"ds_write_b128 {v(vT0)}, {v(ACK+4*q,4)} offset:{1024*q}")
        self.wait_all(vm=False)
        self.barrier()
        for w in range(4):
            for q in range(4):
                a(f"ds_read_b128 {v(XF+16*w+4*q,4)}, {v(vT1)} offset:{4096*w+1024*q}")
            if w == 1 or w == 3:
                pass
        a("s_waitcnt lgkmcnt(8)")
        for r in range(0, 16, 2):
            a(f"v_pk_add_f32 {v(XF+r,2)}, {v(XF+r,2)}, {v(XF+16+r,2)}")
        a("s_waitcnt lgkmcnt(0)")
        for r in range(0, 16, 2):
            a(f"v_pk_add_f32 {v(XF+32+r,2)}, {v(XF+32+r,2)}, {v(XF+48+r,2)}")
        for r in range(0, 16, 2):
            a(f"v_pk_add_f32 {v(XF+r,2)}, {v(XF+r,2)}, {v(XF+32+r,2)}")
        self.pack(XF, XF + 64)
        self.mfma(ACV, XF + 64, PQ, None)
        self.mfma(ACV, XF + 68, PQ + 4, ACV)
        self.finalize_o(ACV, ACK, True)
        self.barrier()
        a(f"v_mov_b32 {v(vT0)}, 1")
        self.flag_store(vT0, f"s{sA}")
        a("s_branch L_wo")

    def layer_B(self):
        a = self.a
        a("L_layerB:")
        self.vm.clear(); self.lg.clear()
        self.qkv_front()
        self.wait_all(vm=False)
        self.barrier()
        self.stamp(2)
        self.load_cs_lane("B")
        self.load_cs_reg("B", 1)
        self.kv_loop("B", True)
        self.stamp(3)
        self.fix_tok(ACK)
        self.fix_feat(ACV, vCS1)
        self.scale_lane(ACK, vA)
        for r in range(0, 16, 2):
            a(f"v_pk_mul_f32 {v(ACV+r,2)}, {v(ACV+r,2)}, {v(SA+r,2)}")
        self.pack(ACK, WF)
        self.pack(ACV, WF + 8)
        for i in range(8):
            a(f"v_cndmask_b32 {v(WF+8+i)}, {v(WF+8+i)}, {v(vPADV)}, s[{sMPAD}:{sMPAD+1}]")
        self.exec_hi()
        a(f"v_mov_b32 {v(WF+6)}, 0x3f803f80\nv_mov_b32 {v(WF+7)}, 0x3f80")
        for i in range(4): a(f"v_mov_b32 {v(ACK+12+i)}, 0")
        self.exec_all()
        a(f"""s_lshl_b32 s{sA}, s{sH}, 6
        s_add_u32 s{sA}, s{sA}, s{sT}
        s_lshl_b32 s{sB_}, s{sA}, 12
        s_add_u32 s{sB_}, s{sB_}, s{sLB}
        s_add_u32 s{sB_}, s{sB_}, {hx(OFF_KV)}
        s_lshl_b32 s{sA}, s{sA}, 2
        s_add_u32 s{sA}, s{sA}, s{sFB}""")
        for i in range(4):
            a(f"buffer_store_dwordx4 {v(WF+4*i,4)}, {v(vL16)}, {srd(S_WS)}, s{sB_} offen offset:{1024*i} sc1")
        self.sumsq(ACK, vT0)
        for sh in (1, 2, 4, 8):
            a(f"v_max_f32_dpp {v(vT0)}, {v(vT0)}, {v(vT0)} row_ror:{sh} row_mask:0xf bank_mask:0xf")
        a(f"""v_readlane_b32 s{sB_}, {v(vT0)}, 0
        v_readlane_b32 s{sC_}, {v(vT0)}, 16
        s_max_u32 s{sB_}, s{sB_}, s{sC_}
        s_or_b32 s{sB_}, s{sB_}, 1
        v_mov_b32 {v(vT0)}, s{sB_}""")
        self.flag_store(vT0, f"s{sA}")
        self.stamp(4)
        self.load_cs_reg("B", 0)
        self.q_loop()
        self.fix_tok(ACQ)
        a(f"v_mul_f32 {v(vA)}, {hx(f2u(QSCALE))}, {v(vA)}")
        self.scale_lane(ACQ, vA)
        self.exec_hi()
        for i in range(4): a(f"v_mov_b32 {v(ACQ+12+i)}, 0")
        self.exec_all()
        self.pack(ACQ, WF)
        self.sumsq(ACQ, vT0)
        a(f"v_sqrt_f32 {v(vT0)}, {v(vT0)}")
        self.exec_hi()
        a(f"v_mov_b32 {v(WF+6)}, {v(vT0)}")
        self.exec_all()
        a(f"""s_lshl_b32 s{sA}, s{sWAVE}, 11
        s_add_u32 s{sA}, s{sA}, {SCR}
        v_add_u32 {v(vT0)}, s{sA}, {v(vL16)}
        ds_write_b128 {v(vT0)}, {v(WF,4)}
        ds_write_b128 {v(vT0)}, {v(WF+4,4)} offset:1024""")
        self.wait_all(vm=False)
        self.barrier()
        self.stamp(5)
        self.maybe_stop("B_q")
        self.attention()

    def sumsq(self, acc, dst):
        a = self.a
        a(f"v_pk_mul_f32 {v(vCS0,2)}, {v(acc,2)}, {v(acc,2)}")
        for r in range(2, 16, 2):
            a(f"v_pk_fma_f32 {v(vCS0,2)}, {v(acc+r,2)}, {v(acc+r,2)}, {v(vCS0,2)}")
        a(f"""v_add_f32 {v(dst)}, {v(vCS0)}, {v(vCS1)}
        v_add_f32 {v(vT1)}, {v(vCS0)}, {v(vCS1)}
        v_permlane32_swap_b32 {v(dst)}, {v(vT1)}
        v_add_f32 {v(dst)}, {v(dst)}, {v(vT1)}""")

    def attention(self):
        a = self.a
        Q = 32; O = 64; S = 128; P = 160; KV = 168
        for i in range(4):
            a(f"""s_add_u32 s{sA}, s{sWAVE}, {i}
            s_and_b32 s{sA}, s{sA}, 3
            s_lshl_b32 s{sA}, s{sA}, 11
            s_add_u32 s{sA}, s{sA}, {SCR}
            v_add_u32 {v(vT0)}, s{sA}, {v(vL16)}
            ds_read_b128 {v(Q+8*i,4)}, {v(vT0)}
            ds_read_b128 {v(Q+8*i+4,4)}, {v(vT0)} offset:1024""")
        for i in range(64): a(f"v_mov_b32 {v(O+i)}, 0")
        for i in range(4): a(f"v_mov_b32 {v(P+4+i)}, 0\nv_mov_b32 {v(KV+48+12+i)}, 0")
        a(f"""v_lshlrev_b32 {v(vT1)}, 2, {v(vLANE)}
        s_lshl_b32 s{sA}, s{sH}, 8
        s_add_u32 s{sA}, s{sA}, s{sFB}
        s_lshl_b32 s{sOFF}, s{sH}, 2
        s_add_u32 s{sOFF}, s{sOFF}, s{sWAVE}
        s_lshl_b32 s{sOFF}, s{sOFF}, 16
        s_add_u32 s{sOFF}, s{sOFF}, s{sLB}
        s_add_u32 s{sOFF}, s{sOFF}, {hx(OFF_KV)}
        s_add_u32 s{sOFFMAX}, s{sOFF}, {15*4096}
        s_waitcnt lgkmcnt(0)""")
        self.poll(vT1, f"s{sA}")
        self.stamp(6)
        def kvload(slot, j):
            a(f"buffer_load_dwordx4 {v(KV+16*slot+4*j,4)}, {v(vL16)}, {srd(S_WS)}, s{sOFF} offen offset:{1024*j} sc1")
        def adv():
            a(f"s_add_u32 s{sOFF}, s{sOFF}, 4096\ns_min_u32 s{sOFF}, s{sOFF}, s{sOFFMAX}")
        for slot in range(3):
            for j in range(4): kvload(slot, j)
            adv()
        for sh in (1, 2, 4, 8):
            a(f"v_max_f32_dpp {v(vT0)}, {v(vT0)}, {v(vT0)} row_ror:{sh} row_mask:0xf bank_mask:0xf")
        a(f"""v_readlane_b32 s{sA}, {v(vT0)}, 0
        v_readlane_b32 s{sB_}, {v(vT0)}, 16
        v_readlane_b32 s{sC_}, {v(vT0)}, 32
        v_readlane_b32 s{sD}, {v(vT0)}, 48
        s_max_u32 s{sA}, s{sA}, s{sB_}
        s_max_u32 s{sC_}, s{sC_}, s{sD}
        s_max_u32 s{sA}, s{sA}, s{sC_}
        v_sqrt_f32 {v(vT0)}, s{sA}
        v_mov_b32 {v(vT1)}, {hx(f2u(SHIFT_UP))}""")
        self.exec_hi()
        for i in range(4):
            a(f"v_fma_f32 {v(Q+8*i+6)}, -{v(Q+8*i+6)}, {v(vT0)}, {v(vT1)}")
            a(f"v_cvt_pk_bf16_f32 {v(Q+8*i+6)}, {v(Q+8*i+6)}, 0")
        self.exec_all()
        a("s_waitcnt vmcnt(10)")
        self.mfma(S, KV, Q, None)
        self.mfma(S, KV + 4, Q + 4, S)
        a(f"s_mov_b32 s{sLOOP}, 4\ns_waitcnt vmcnt(8)\ns_nop 7\nL_att:")
        for n in range(16):
            kt, i = n >> 2, n & 3
            pk, pi = ((n - 1) & 15) >> 2, (n - 1) & 3
            nk, ni = ((n + 1) & 15) >> 2, (n + 1) & 3
            Sc, Sn = S + 16 * (n & 1), S + 16 * ((n + 1) & 1)
            ex = lambda r: a(f"v_exp_f32 {v(Sc+r)}, {v(Sc+r)}")
            cv = lambda j: a(f"v_cvt_pk_bf16_f32 {v(P+j)}, {v(Sc+2*j)}, {v(Sc+2*j+1)}")
            ex(0); ex(1)
            self.mfma(O + 16 * pi, KV + 16 * pk + 12, P + 4, O + 16 * pi)
            for r in range(2, 6): ex(r)
            if i == 3: a("s_waitcnt vmcnt(7)")
            self.mfma(Sn, KV + 16 * nk, Q + 8 * ni, None)
            ex(6); ex(7); cv(0); cv(1); cv(2)
            self.mfma(Sn, KV + 16 * nk + 4, Q + 8 * ni + 4, Sn)
            cv(3)
            for r in range(8, 12): ex(r)
            self.mfma(O + 16 * i, KV + 16 * kt + 8, P, O + 16 * i)
            kvload((kt + 3) & 3, i)
            if i == 3: adv()
            for r in range(12, 16): ex(r)
            for j in range(4, 8): cv(j)
        a(f"""s_sub_u32 s{sLOOP}, s{sLOOP}, 1
        s_cmp_lg_u32 s{sLOOP}, 0
        s_cbranch_scc1 L_att""")
        self.mfma(O + 48, KV + 48 + 12, P + 4, O + 48)
        self.stamp(7)
        for i in range(1, 4):
            a(f"""s_add_u32 s{sA}, s{sWAVE}, {i}
            s_and_b32 s{sA}, s{sA}, 3
            s_mul_i32 s{sA}, s{sA}, 12288
            v_add_u32 {v(vT0)}, s{sA}, {v(vL16)}""")
            for q in range(4):
                a(f"ds_write_b128 {v(vT0)}, {v(O+16*i+4*q,4)} offset:{R1+4096*(i-1)+1024*q}")
        a(f"""s_mul_i32 s{sA}, s{sWAVE}, 12288
        v_add_u32 {v(vT0)}, s{sA}, {v(vL16)}
        s_waitcnt lgkmcnt(0)""")
        self.barrier()
        for i in range(3):
            for q in range(4):
                a(f"ds_read_b128 {v(O+16+16*i+4*q,4)}, {v(vT0)} offset:{R1+4096*i+1024*q}")
        for i in range(3):
            a(f"s_waitcnt lgkmcnt({8-4*i})")
            for r in range(0, 16, 2):
                a(f"v_pk_add_f32 {v(O+r,2)}, {v(O+r,2)}, {v(O+16+16*i+r,2)}")
        a(f"s_mov_b32 s{sRETRY}, 0")
        self.barrier()
        a("L_att_fin:")
        self.finalize_o(O, P, False)
        a(f"v_max3_f32 {v(vT0)}, |{v(O)}|, |{v(O+1)}|, {v(vT1)}")
        for r in range(2, 12, 2):
            a(f"v_max3_f32 {v(vT0)}, |{v(O+r)}|, |{v(O+r+1)}|, {v(vT0)}")
        a(f"v_pk_add_f32 {v(vCS0,2)}, {v(O,2)}, {v(O+2,2)}")
        for r in range(4, 16, 2):
            a(f"v_pk_add_f32 {v(vCS0,2)}, {v(vCS0,2)}, {v(O+r,2)}")
        a(f"""v_add_f32 {v(vCS0)}, {v(vCS0)}, {v(vCS1)}
        v_add_f32 {v(vT0)}, {v(vT0)}, {v(vCS0)}
        s_movk_i32 s{sB_}, 0x207
        v_cmp_class_f32_e64 s[{sK0}:{sK0+1}], {v(vT0)}, s{sB_}
        v_cmp_nle_f32 vcc, {hx(f2u(L_MIN))}, {v(vT1)}
        s_or_b64 vcc, vcc, s[{sK0}:{sK0+1}]
        s_cmp_lg_u32 s{sRETRY}, 0
        s_cbranch_scc1 L_att_ok
        s_cbranch_vccnz L_slow
        L_att_ok:
        v_mov_b32 {v(vT0)}, 1""")
        self.flag_store(vT0, f"s{sA}")

    def slow_path(self):
        a = self.a
        Q = 32; O = 64; S = 128; P = 160; KV = 168; M = 232
        a(f"""L_slow:
        s_mov_b32 s{sRETRY}, 1
        s_lshl_b32 s{sOFFMAX}, s{sH}, 18
        s_add_u32 s{sOFFMAX}, s{sOFFMAX}, s{sLB}
        s_add_u32 s{sOFFMAX}, s{sOFFMAX}, {hx(OFF_KV)}
        s_mov_b32 s{sOFF}, s{sOFFMAX}
        v_mov_b32 {v(M)}, 0xff800000""")
        self.exec_hi()
        a(f"v_mov_b32 {v(Q+6)}, 0\nv_mov_b32 {v(Q+7)}, 0")
        self.exec_all()
        a(f"""s_mov_b32 s{sLOOP}, 64
        L_slow1:
        buffer_load_dwordx4 {v(KV,4)}, {v(vL16)}, {srd(S_WS)}, s{sOFF} offen sc1
        buffer_load_dwordx4 {v(KV+4,4)}, {v(vL16)}, {srd(S_WS)}, s{sOFF} offen offset:1024 sc1
        s_add_u32 s{sOFF}, s{sOFF}, 4096
        s_waitcnt vmcnt(0)""")
        self.mfma(S, KV, Q, None); self.mfma(S, KV + 4, Q + 4, S)
        for r in range(0, 16, 2):
            a(f"v_max3_f32 {v(M)}, {v(S+r)}, {v(S+r+1)}, {v(M)}")
        a(f"""s_sub_u32 s{sLOOP}, s{sLOOP}, 1
        s_cmp_lg_u32 s{sLOOP}, 0
        s_cbranch_scc1 L_slow1
        v_mov_b32 {v(M+1)}, {v(M)}
        v_permlane32_swap_b32 {v(M)}, {v(M+1)}
        v_max_f32 {v(M)}, {v(M)}, {v(M+1)}
        v_sub_f32 {v(M)}, 0, {v(M)}
        v_and_b32 {v(M+1)}, 0xffff0000, {v(M)}
        v_sub_f32 {v(M)}, {v(M)}, {v(M+1)}
        v_and_b32 {v(M+2)}, 0xffff0000, {v(M)}
        v_sub_f32 {v(M)}, {v(M)}, {v(M+2)}
        v_lshrrev_b32 {v(M+1)}, 16, {v(M+1)}""")
        self.exec_hi()
        a(f"v_or_b32 {v(Q+6)}, {v(M+1)}, {v(M+2)}\nv_lshrrev_b32 {v(Q+7)}, 16, {v(M)}")
        self.exec_all()
        for i in range(16): a(f"v_mov_b32 {v(O+i)}, 0")
        a(f"""s_mov_b32 s{sOFF}, s{sOFFMAX}
        s_mov_b32 s{sLOOP}, 64
        L_slow2:""")
        for j in range(4):
            a(f"buffer_load_dwordx4 {v(KV+4*j,4)}, {v(vL16)}, {srd(S_WS)}, s{sOFF} offen offset:{1024*j} sc1")
        a(f"s_add_u32 s{sOFF}, s{sOFF}, 4096\ns_waitcnt vmcnt(0)")
        self.mfma(S, KV, Q, None); self.mfma(S, KV + 4, Q + 4, S)
        for r in range(16): a(f"v_exp_f32 {v(S+r)}, {v(S+r)}")
        self.pack(S, P)
        self.mfma(O, KV + 8, P, O); self.mfma(O, KV + 12, P + 4, O)
        a(f"""s_sub_u32 s{sLOOP}, s{sLOOP}, 1
        s_cmp_lg_u32 s{sLOOP}, 0
        s_cbranch_scc1 L_slow2
        s_branch L_att_fin""")

    def wo_phase(self):
        a = self.a
        OF = 32; SEND = 96; RECV = 112; PK = 128
        a("L_wo:")
        self.vm.clear(); self.lg.clear()
        self.stamp(8)
        self.maybe_stop("mix")
        a(f"""s_cmp_eq_u32 s{sISWO}, 0
        s_cbranch_scc1 L_wo_skip
        s_lshr_b32 s{sD}, s{sWAVE}, 1
        v_and_b32 {v(vT1)}, 7, {v(vLANE)}
        v_lshlrev_b32 {v(vT1)}, 2, {v(vT1)}
        s_lshl_b32 s{sA}, s{sTW}, 1
        s_add_u32 s{sA}, s{sA}, s{sD}
        s_lshl_b32 s{sOFF}, s{sA}, 14
        s_add_u32 s{sOFF}, s{sOFF}, s{sLB}
        s_add_u32 s{sOFF}, s{sOFF}, {hx(OFF_O)}
        s_lshl_b32 s{sA}, s{sA}, 5
        s_add_u32 s{sA}, s{sA}, s{sFB}
        s_add_u32 s{sA}, s{sA}, 4096""")
        def wtr(dst, base, n):
            off = (28 * (n >> 1) + 16 * (n & 1)) * 128
            a(f"ds_read_b64_tr_b16 {v(dst,2)}, {v(base)} offset:{off}"); self.lg.issue(("w", n))
            a(f"ds_read_b64_tr_b16 {v(dst+2,2)}, {v(base)} offset:{off+1024}"); self.lg.issue(("w", n))
        wtr(WF, vWK, 0); wtr(WF + 4, vWS_, 0)
        self.poll(vT1, f"s{sA}")
        self.stamp(9)
        for n in range(16):
            if n and n % 4 == 0: a(f"s_add_u32 s{sOFF}, s{sOFF}, 4096")
            a(f"buffer_load_dwordx4 {v(OF+4*n,4)}, {v(vL16)}, {srd(S_WS)}, s{sOFF} offen offset:{(n%4)*1024} sc1"); self.vm.issue(("o", n))
        for n in range(16):
            p = n & 1
            if n + 1 < 16:
                wtr(WF + 8 * (1 - p), vWK, n + 1); wtr(WF + 8 * (1 - p) + 4, vWS_, n + 1)
            self.wait(vm=("o", n), lg=("w", n))
            self.mfma(SEND, WF + 8 * p + 4, OF + 4 * n, SEND if n else None)
            self.mfma(XRES, WF + 8 * p, OF + 4 * n, XRES)
        a(f"""s_lshl_b32 s{sA}, s{sWAVE}, 12
        s_add_u32 s{sB_}, s{sA}, {SCR}
        v_add_u32 {v(vT0)}, s{sB_}, {v(vL16)}
        s_xor_b32 s{sA}, s{sA}, 8192
        s_add_u32 s{sA}, s{sA}, {SCR}
        v_add_u32 {v(vT1)}, s{sA}, {v(vL16)}""")
        for q in range(4):
            a(f"ds_write_b128 {v(vT0)}, {v(SEND+4*q,4)} offset:{1024*q}")
        a(f"""s_mul_i32 s{sSO0}, s{sTW}, 28672
        s_cmp_eq_u32 s{sL}, 3
        s_cbranch_scc1 L_wo_last
        s_lshl_b32 s{sB_}, s{sC}, 11
        s_add_u32 s{sSO0}, s{sSO0}, s{sB_}
        s_add_u32 s{sSO0}, s{sSO0}, s{sLB}
        s_add_u32 s{sSO1}, s{sSO0}, 1024
        v_mov_b32 {v(vXO)}, {v(vL16)}
        s_branch L_wo_addr
        L_wo_last:
        s_lshl_b32 s{sB_}, s{sC}, 6
        s_add_u32 s{sSO0}, s{sSO0}, s{sB_}
        s_add_u32 s{sSO1}, s{sSO0}, 32
        v_mov_b32 {v(vXO)}, {v(vRM)}
        s_mov_b32 s{S_XOUT}, s{PTR+12}
        s_mov_b32 s{S_XOUT+1}, s{PTR+13}
        s_mov_b32 s{S_XOUT+2}, 1835008
        L_wo_addr:
        s_waitcnt lgkmcnt(0)""")
        self.barrier()
        for q in range(4):
            a(f"ds_read_b128 {v(RECV+4*q,4)}, {v(vT1)} offset:{1024*q}")
        for q in range(4):
            a(f"s_waitcnt lgkmcnt({3-q})")
            a(f"v_pk_add_f32 {v(XRES+4*q,2)}, {v(XRES+4*q,2)}, {v(RECV+4*q,2)}\nv_pk_add_f32 {v(XRES+4*q+2,2)}, {v(XRES+4*q+2,2)}, {v(RECV+4*q+2,2)}")
        self.pack(XRES, PK)
        for f in range(2):
            a(f"v_permlane32_swap_b32 {v(PK+4*f)}, {v(PK+4*f+2)}\nv_permlane32_swap_b32 {v(PK+4*f+1)}, {v(PK+4*f+3)}")
        a(f"""buffer_store_dwordx4 {v(PK,4)}, {v(vXO)}, {srd(S_XOUT)}, s{sSO0} offen sc1
        buffer_store_dwordx4 {v(PK+4,4)}, {v(vXO)}, {srd(S_XOUT)}, s{sSO1} offen sc1
        s_cmp_eq_u32 s{sL}, 3
        s_cbranch_scc1 L_end""")
        a(f"v_pk_add_f32 {v(RECV,2)}, {v(XRES,2)}, {v(XRES+2,2)}\nv_pk_mul_f32 {v(RECV+2,2)}, {v(XRES,2)}, {v(XRES,2)}")
        for r in range(2, 16, 2):
            if r >= 4: a(f"v_pk_add_f32 {v(RECV,2)}, {v(RECV,2)}, {v(XRES+r,2)}")
            a(f"v_pk_fma_f32 {v(RECV+2,2)}, {v(XRES+r,2)}, {v(XRES+r,2)}, {v(RECV+2,2)}")
        a(f"""v_add_f32 {v(RECV+4)}, {v(RECV)}, {v(RECV+1)}
        v_add_f32 {v(RECV+5)}, {v(RECV+2)}, {v(RECV+3)}
        v_add_f32 {v(RECV+6)}, {v(RECV)}, {v(RECV+1)}
        v_add_f32 {v(RECV+7)}, {v(RECV+2)}, {v(RECV+3)}
        s_mul_i32 s{sA}, s{sTW}, 14
        s_add_u32 s{sA}, s{sA}, s{sC}
        s_lshl_b32 s{sA}, s{sA}, 8
        s_add_u32 s{sA}, s{sA}, s{sLB}
        s_add_u32 s{sA}, s{sA}, {hx(OFF_ST)}
        v_permlane32_swap_b32 {v(RECV+4)}, {v(RECV+6)}
        v_permlane32_swap_b32 {v(RECV+5)}, {v(RECV+7)}
        v_lshlrev_b32 {v(vT0)}, 3, {v(vLANE)}
        v_pk_add_f32 {v(RECV+4,2)}, {v(RECV+4,2)}, {v(RECV+6,2)}""")
        self.exec_lo()
        a(f"buffer_store_dwordx2 {v(RECV+4,2)}, {v(vT0)}, {srd(S_WS)}, s{sA} offen sc1")
        self.exec_all()
        a(f"""s_lshl_b32 s{sA}, s{sTW}, 4
        s_add_u32 s{sA}, s{sA}, s{sC}
        s_lshl_b32 s{sA}, s{sA}, 2
        s_add_u32 s{sA}, s{sA}, s{sFB}
        s_add_u32 s{sA}, s{sA}, 8192
        v_mov_b32 {v(vT0)}, 1""")
        self.flag_store(vT0, f"s{sA}")
        a("s_branch L_next\nL_wo_skip:")
        self.barrier()
        a(f"""s_cmp_eq_u32 s{sL}, 3
        s_cbranch_scc1 L_end
        L_next:""")
        self.stamp(10)
        self.maybe_stop("wo")
        a(f"""s_add_u32 s{sL}, s{sL}, 1
        s_add_u32 s{sLB}, s{sLB}, 0x1000000
        s_add_u32 s{sFB}, s{sFB}, 12288
        s_bitcmp1_b32 s{sL}, 0
        s_cbranch_scc1 L_layerB
        s_branch L_layerA""")

    def helper(self):
        a = self.a
        VA = 16
        a("L_helper:")
        a(f"s_sub_u32 s{sHH}, s{sWAVE}, 4")
        for i in range(3):
            a(f"""v_add_u32 v22, {64*i}, {v(vLANE)}
            v_mul_u32_u24 v23, 0xaaab, v22
            v_lshrrev_b32 v23, 19, v23
            v_mul_u32_u24 v28, 12, v23
            v_sub_u32 v22, v22, v28
            v_mul_u32_u24 v23, 2688, v23
            v_lshrrev_b32 v28, 2, v22
            v_mul_u32_u24 v28, 896, v28
            v_and_b32 v22, 3, v22
            v_lshl_add_u32 v23, v22, 4, v23
            v_add_u32 v{VA+i}, v23, v28""")
        a(f"""v_lshrrev_b32 v22, 3, {v(vLANE)}
        v_and_b32 v23, 7, {v(vLANE)}
        v_bfe_u32 v28, {v(vLANE)}, 4, 1
        v_lshlrev_b32 v28, 2, v28
        v_xor_b32 v23, v23, v28
        v_mul_u32_u24 v22, 896, v22
        v_lshl_add_u32 v19, v23, 4, v22
        v_and_b32 v22, 31, {v(vLANE)}
        v_lshlrev_b32 v20, 2, v22
        s_mul_i32 s{sA}, s{sHH}, {112*192}
        v_add_u32 v21, s{sA}, {v(vTQ0)}
        v_mov_b32 v24, 0x3f803f80
        v_mov_b32 v25, 0x3f803f80
        v_mov_b32 v26, 0x3f803f80
        v_mov_b32 v27, 0x3f803f80""")
        a(f"""v_mov_b32 v28, 0
        v_mov_b32 v29, 0
        v_mov_b32 v30, 0
        v_mov_b32 v31, 0
        v_min_u32 v22, 47, {v(vLANE)}
        v_lshlrev_b32 v22, 4, v22
        v_add_u32 v22, {CSA}, v22
        ds_write_b128 v22, v[28:31]""")

        def dma_wq():
            L = a.label("Lhq")
            a(f"""s_mul_i32 s{sA}, s{sHH}, {112*192}
            s_add_u32 s{sA}, s{sA}, {R1}
            s_mul_i32 s{sB_}, s{sHH}, {112*2688}
            s_mul_i32 s{sC_}, s{sH}, 56
            s_add_u32 s{sB_}, s{sB_}, s{sC_}
            s_mov_b32 s{sG}, 7
            {L}:""")
            for i in range(3):
                a(f"""s_mov_b32 m0, s{sA}
                s_add_u32 s{sA}, s{sA}, 1024
                buffer_load_dwordx4 v{VA+i}, {srd(S_WQ)}, s{sB_} offen lds""")
            a(f"""s_add_u32 s{sB_}, s{sB_}, {16*2688}
            s_sub_u32 s{sG}, s{sG}, 1
            s_cmp_lg_u32 s{sG}, 0
            s_cbranch_scc1 {L}""")
        def dma_wo():
            L = a.label("Lho")
            a(f"""s_lshl_b32 s{sA}, s{sHH}, 10
            s_add_u32 s{sA}, s{sA}, {R2}
            s_mul_i32 s{sB_}, s{sHH}, {8*896}
            s_lshl_b32 s{sC_}, s{sCG}, 7
            s_add_u32 s{sB_}, s{sB_}, s{sC_}
            {L}:
            s_mov_b32 m0, s{sA}
            s_add_u32 s{sA}, s{sA}, 4096
            buffer_load_dwordx4 v19, {srd(S_WO)}, s{sB_} offen lds
            s_add_u32 s{sB_}, s{sB_}, {32*896}
            s_cmp_lt_u32 s{sA}, {R2+57*1024}
            s_cbranch_scc1 {L}""")
        def colsum(base):
            for s in range(7):
                for t in range(3):
                    d = 28 + 4 * ((3 * s + t) % 6)
                    a(f"ds_read_b64_tr_b16 v[{d}:{d+1}], v21 offset:{s*3072+t*64}\nds_read_b64_tr_b16 v[{d+2}:{d+3}], v21 offset:{s*3072+t*64+768}")
                a("s_waitcnt lgkmcnt(0)")
                for t in range(3):
                    d = 28 + 4 * ((3 * s + t) % 6)
                    self.mfma(64 + 16 * t, 24, d, 64 + 16 * t if s else None)
            self.exec_lo()
            a(f"v_add_u32 v22, {base}, v20")
            for t in range(3):
                a(f"ds_add_f32 v22, v{64+16*t} offset:{128*t}")
            self.exec_all()
            a("s_waitcnt lgkmcnt(0)")
        def setptr(b, p):
            a(f"s_mov_b32 s{b}, s{PTR+2*p}\ns_mov_b32 s{b+1}, s{PTR+2*p+1}")

        dma_wq()
        a(f"""s_cmp_lg_u32 s{sHH}, 0
        s_cbranch_scc1 L_h_noinit
        v_lshlrev_b32 v22, 2, {v(vLANE)}
        s_lshl_b32 s{sA}, s2, 8
        buffer_store_dword v28, v22, {srd(S_WS)}, s{sA} offen sc1
        L_h_noinit:
        s_cmp_lg_u32 s{sHH}, 1
        s_cbranch_scc1 L_h_nopf
        s_getpc_b64 s[{sPC}:{sPC+1}]
        L_pcref:
        s_sub_u32 s{S_CODE}, s{sPC}, L_pcref-{NAME}
        s_subb_u32 s{S_CODE+1}, s{sPC+1}, 0
        s_mov_b32 s{S_CODE+2}, L_code_end-{NAME}
        s_mov_b32 s{S_CODE+3}, 0x20000
        s_lshr_b32 s{sA}, s2, 3
        s_lshl_b32 s{sA}, s{sA}, 10
        buffer_load_dwordx4 v[60:63], {v(vL16)}, {srd(S_CODE)}, s{sA} offen
        L_h_nopf:
        s_waitcnt vmcnt(0) lgkmcnt(0)
        s_cmp_lg_u32 s{sHH}, 0
        s_cbranch_scc1 L_h_nosig
        s_mov_b64 exec, 1
        v_mov_b32 v22, 1
        v_mov_b32 v23, s2
        buffer_store_byte v22, v23, {srd(S_DBG)}, 0 offen sc1
        s_mov_b64 exec, -1
        L_h_nosig:""")
        self.barrier()
        colsum(CSA)
        a(f"v_lshlrev_b32 v22, 2, {v(vLANE)}\ns_mov_b32 s{sD}, 0x01010101")
        self.poll(22, "0", srd_b=S_DBG, vdst=23, want=f"s{sD}")
        self.barrier()
        dma_wo()
        a("L_h_loop:")
        self.barrier()
        self.barrier()
        a("s_waitcnt vmcnt(0)")
        self.barrier()
        self.barrier()
        setptr(S_WQ, 4)
        dma_wq()
        a(f"""s_cmp_lg_u32 s{sL}, 0
        s_cbranch_scc1 L_h_nocs
        s_waitcnt vmcnt(0)""")
        colsum(CSA + 384)
        a("L_h_nocs:")
        self.barrier()
        a("s_waitcnt vmcnt(0)")
        setptr(S_WO, 5)
        dma_wo()
        self.barrier()
        self.barrier()
        a("s_waitcnt vmcnt(0)")
        self.barrier()
        self.barrier()
        a(f"""s_cmp_lg_u32 s{sL}, 0
        s_cbranch_scc1 L_end
        s_mov_b32 s{sL}, 2""")
        setptr(S_WQ, 1)
        dma_wq()
        self.barrier()
        a("s_waitcnt vmcnt(0)")
        setptr(S_WO, 2)
        dma_wo()
        self.barrier()
        a("s_branch L_h_loop")

    def build(self):
        a = self.a
        self.prologue()
        self.stamp(0)
        self.layer_A()
        self.layer_B()
        self.wo_phase()
        self.slow_path()
        self.helper()
        a("L_end:\ns_endpgm\nL_code_end:")
        body = a.resolve()
        hdr = open("interleave_layers__linear_attn_block__softmax_full_mha__prompt.s.ref").read().split("; Override")[0]
        return hdr + f"""; @launch grid=(256,1,1) block=(512,1,1) lds={LDS_TOTAL}
.amdgcn_target "amdgcn-amd-amdhsa--gfx950"
.text
.globl {NAME}
.p2align 8
.type {NAME},@function
{NAME}:
{body}
.section .rodata,"a"
.p2align 6
.amdhsa_kernel {NAME}
  .amdhsa_next_free_vgpr 256
  .amdhsa_next_free_sgpr 102
  .amdhsa_accum_offset 256
  .amdhsa_group_segment_fixed_size 0
  .amdhsa_kernarg_size 72
  .amdhsa_user_sgpr_count 2
  .amdhsa_user_sgpr_kernarg_segment_ptr 1
  .amdhsa_system_sgpr_workgroup_id_x 1
.end_amdhsa_kernel
"""

if __name__ == "__main__":
    import argparse
    ap = argparse.ArgumentParser()
    ap.add_argument("-o", default="k.s")
    ap.add_argument("--stop", default=None)
    ap.add_argument("--prof", action="store_true")
    args = ap.parse_args()
    stop = None
    if args.stop:
        n, l = args.stop.split(":"); stop = (n, int(l))
    g = Gen(stop=stop, prof=args.prof)
    s = g.build()
    open(args.o, "w").write(s)
    print("wrote", args.o, "lines", s.count("\n"), "nops inserted", g.a.nops)
```

```python
import sys, struct, math
sys.path.insert(0, "dev")
from asmb import Asm

NAME = "interleave_layers__linear_attn_block__softmax_full_mha__prompt_kernel"

def f2u(x): return struct.unpack("<I", struct.pack("<f", x))[0]
def hx(x): return "0x%08x" % (x & 0xffffffff)

R1 = 0
R1Q = 57344
WPK = 0x400000
R2 = 86016
SCR = 144384
CSA = SCR + 16384
STW = CSA + 768
KMX = STW + 1024
LDS_TOTAL = 163840
OFF_X, OFF_O, OFF_KV, OFF_ST = 0x000000, 0x200000, 0x400000, 0x800000
PROF_OFF = 0x8000000

S_X, S_WQ, S_WO, S_OUT, S_DBG, S_WS, S_XOUT, S_CODE = 8, 12, 16, 20, 24, 28, 32, 36
sWAVE, sRB, sH, sTP, sCG, sISWO, sL, sLB = 40, 41, 42, 43, 44, 45, 46, 47
sT, sTW, sC, sFB, sSPIN = 48, 49, 50, 51, 52
sA, sB_, sC_, sD, sE, sF = 53, 54, 55, 56, 57, 58
sMPAD = 60
sK0 = 62
PTR = 64
sSO0, sSO1 = 82, 83
sKMAX = 84
sG, sHH = 85, 86
sPC = 88
sST0 = 90
sPI = 92
sLOOP = 93
sOFF = 94
sOFFMAX = 95
sRETRY = 96
sROT, sXC, sLIM, sLIM2 = 97, 98, 99, 100
def srd(b): return f"s[{b}:{b+3}]"

vTID, vLANE, vL16, vTK, vTV, vWK, vWS_, vRM = 0, 1, 2, 3, 4, 5, 6, 7
vTQ, vPADV, vA, vNM, vCS0, vCS1, vT0, vT1 = 8, 9, 10, 11, 12, 13, 14, 15
vXO = vCS0
XRES = 16
XF = 32
ACK, ACV, ACQ = 144, 160, 176
WF = 192
SA, SB = 208, 224
CS16 = 240
def v(b, n=1): return f"v{b}" if n == 1 else f"v[{b}:{b+n-1}]"

LOG2E = 1.4426950408889634
QSCALE = LOG2E / math.sqrt(28.0)
SHIFT_UP = 40.0
L_MIN = 2.0 ** -60


class Cnt:
    def __init__(self, name, mx): self.name, self.q, self.mx = name, [], mx
    def issue(self, tag): self.q.append(tag)
    def n_after(self, tag):
        idx = max(i for i, t in enumerate(self.q) if t == tag)
        n = len(self.q) - 1 - idx
        self.q = self.q[idx + 1:]
        assert n <= self.mx, (self.name, n)
        return n
    def has(self, tag): return tag in self.q
    def clear(self): self.q = []


class Gen:
    def __init__(self, stop=None, prof=False):
        self.a = Asm(); self.stop = stop; self.prof = prof
        self.vm = Cnt("vmcnt", 63); self.lg = Cnt("lgkmcnt", 15)
        self.nstamp = 0
        self.dly_x, self.dly_o, self.dly_m = 8, 8, 0

    def mfma(self, d, A, B, C):
        c = "0" if C is None else v(C, 16)
        self.a(f"v_mfma_f32_32x32x16_bf16 {v(d,16)}, {v(A,4)}, {v(B,4)}, {c}")
    def wait(self, vm=None, lg=None):
        parts = []
        if vm is not None and self.vm.has(vm): parts.append(f"vmcnt({self.vm.n_after(vm)})")
        if lg is not None and self.lg.has(lg): parts.append(f"lgkmcnt({self.lg.n_after(lg)})")
        if parts: self.a("s_waitcnt " + " ".join(parts))
    def wait_all(self, vm=True, lg=True):
        p = []
        if vm: p.append("vmcnt(0)"); self.vm.clear()
        if lg: p.append("lgkmcnt(0)"); self.lg.clear()
        self.a("s_waitcnt " + " ".join(p))
    def exec_all(self): self.a("s_mov_b64 exec, -1")
    def exec_hi(self): self.a("s_mov_b32 exec_lo, 0\ns_mov_b32 exec_hi, -1")
    def exec_lo(self): self.a("s_mov_b32 exec_lo, -1\ns_mov_b32 exec_hi, 0")
    def barrier(self): self.a("s_barrier")
    def stamp(self, idx):
        if not self.prof: return
        a = self.a
        op = "s_memrealtime" if self.prof == "rt" else "s_memtime"
        a(f"""{op} s[{sST0}:{sST0+1}]
        s_lshl_b32 s{sPI}, s{sL}, 4
        s_add_u32 s{sPI}, s{sPI}, {idx}
        s_mov_b32 m0, s{sPI}
        s_waitcnt lgkmcnt(0)
        v_writelane_b32 v0, s{sST0}, m0""")
    def stamp_flush(self):
        if not self.prof: return
        self.a(f"""s_lshl_b32 s{sPI}, s2, 3
        s_add_u32 s{sPI}, s{sPI}, s{sWAVE}
        s_lshl_b32 s{sPI}, s{sPI}, 8
        s_add_u32 s{sPI}, s{sPI}, {hx(PROF_OFF)}
        s_mov_b64 exec, -1
        v_lshlrev_b32 {v(vT0)}, 2, {v(vLANE)}
        buffer_store_dword v0, {v(vT0)}, {srd(S_WS)}, s{sPI} offen""")
    def maybe_stop(self, name):
        if self.stop and self.stop[0] == name:
            a = self.a
            lab = a.label("Lns")
            a(f"""s_cmp_lg_u32 s{sL}, {self.stop[1]}
            s_cbranch_scc1 {lab}
            s_waitcnt vmcnt(0) lgkmcnt(0)
            s_endpgm
            {lab}:""")

    def poll(self, vaddr, soff, srd_b=S_WS, vdst=vT0, want=None, delay=0):
        a = self.a
        L, D = a.label("Lpoll"), a.label("Lpd")
        cmp_ = f"v_cmp_eq_u32 vcc, 0, {v(vdst)}" if want is None else f"v_cmp_ne_u32 vcc, {want}, {v(vdst)}"
        if delay: a(f"s_sleep {delay}")
        a(f"""s_mov_b32 s{sSPIN}, 40000
        {L}:
        buffer_load_dword {v(vdst)}, {v(vaddr)}, {srd(srd_b)}, {soff} offen sc1
        s_waitcnt vmcnt(0)
        {cmp_}
        s_cbranch_vccz {D}
        s_sub_u32 s{sSPIN}, s{sSPIN}, 1
        s_cmp_eq_u32 s{sSPIN}, 0
        s_cbranch_scc0 {L}
        s_endpgm
        {D}:""")
        self.vm.clear()

    def flag_store(self, vval, soff, wave=0):
        a = self.a
        lab = a.label("Lfl")
        a(f"""s_waitcnt vmcnt(0)
        s_barrier
        s_cmp_lg_u32 s{sWAVE}, {wave}
        s_cbranch_scc1 {lab}
        s_mov_b64 exec, 1
        buffer_store_dword {v(vval)}, off, {srd(S_WS)}, {soff} sc1
        s_mov_b64 exec, -1
        {lab}:""")
        self.vm.clear()
        self.vm.issue("flag")

    def prologue(self):
        a = self.a
        a(f"""s_cmp_ge_u32 s2, 256
        s_cbranch_scc1 L_end
        s_load_dwordx16 s[{PTR}:{PTR+15}], s[0:1], 0
        s_load_dwordx2 s[{PTR+16}:{PTR+17}], s[0:1], 64
        s_getpc_b64 s[{sPC}:{sPC+1}]
        L_pcref:
        s_sub_u32 s{S_CODE}, s{sPC}, L_pcref-{NAME}
        s_subb_u32 s{S_CODE+1}, s{sPC+1}, 0
        s_mov_b32 s{S_CODE+2}, L_code_end-{NAME}
        s_mov_b32 s{S_CODE+3}, 0x20000
        s_lshl_b32 s{sC_}, s2, 10
        s_and_b32 s{sC_}, s{sC_}, 0x6000
        v_lshlrev_b32 {v(vT1)}, 4, v0
        buffer_load_dwordx4 v[252:255], {v(vT1)}, {srd(S_CODE)}, s{sC_} offen
        v_lshrrev_b32 {v(vT0)}, 6, v0
        v_and_b32 {v(vLANE)}, 63, v0
        v_readfirstlane_b32 s{sWAVE}, {v(vT0)}
        v_lshlrev_b32 {v(vL16)}, 4, {v(vLANE)}
        s_and_b32 s{sA}, s2, 7
        s_lshr_b32 s{sB_}, s2, 3
        s_lshr_b32 s{sRB}, s{sA}, 1
        s_lshl_b32 s{sRB}, s{sRB}, 2
        s_and_b32 s{sC_}, s{sB_}, 3
        s_add_u32 s{sRB}, s{sRB}, s{sC_}
        s_and_b32 s{sH}, s{sA}, 1
        s_lshl_b32 s{sH}, s{sH}, 3
        s_lshr_b32 s{sC_}, s{sB_}, 2
        s_add_u32 s{sH}, s{sH}, s{sC_}
        s_mul_i32 s{sC_}, s{sB_}, 37
        s_lshr_b32 s{sC_}, s{sC_}, 8
        s_mul_i32 s{sD}, s{sC_}, 7
        s_sub_u32 s{sCG}, s{sB_}, s{sD}
        s_lshl_b32 s{sTP}, s{sA}, 2
        s_add_u32 s{sTP}, s{sTP}, s{sC_}
        s_cmp_lt_u32 s{sB_}, 28
        s_cselect_b32 s{sISWO}, 1, 0
        s_cselect_b32 s{sTP}, s{sTP}, 0
        s_mov_b32 s{sL}, 0
        s_mov_b32 s{sLB}, 0x1000000
        s_mov_b32 s{sFB}, 0
        s_mov_b32 s{sMPAD}, 0xf0000000
        s_mov_b32 s{sMPAD+1}, 0xf0000000
        """)
        a(f"""v_lshrrev_b32 v16, 5, {v(vLANE)}
        v_bfe_u32 v17, {v(vLANE)}, 4, 1
        v_bfe_u32 v18, {v(vLANE)}, 2, 2
        v_and_b32 v19, 3, {v(vLANE)}
        v_lshlrev_b32 v20, 5, v17
        v_lshl_add_u32 v20, v19, 3, v20
        v_lshl_add_u32 v21, v16, 3, v18
        s_and_b32 s{sD}, s{sH}, 1
        s_lshl_b32 s{sD}, s{sD}, 3
        v_min_u32 v24, 48, v20
        v_add_u32 v24, s{sD}, v24
        v_lshl_add_u32 {v(vTQ)}, v21, 6, v24
        v_add_u32 {v(vTQ)}, {R1Q}, {v(vTQ)}
        v_lshl_add_u32 v24, v21, 7, v24
        v_lshrrev_b32 v22, 1, v18
        v_lshl_add_u32 {v(vTK)}, v22, 6, v24
        v_xor_b32 v22, 1, v22
        v_lshl_add_u32 {v(vTV)}, v22, 6, v24
        v_lshl_add_u32 v21, v16, 2, v18
        v_lshlrev_b32 v21, 7, v21
        v_add_u32 v21, v21, v20
        v_add_u32 v21, {R2}, v21
        v_lshrrev_b32 v22, 1, v18
        v_and_b32 v23, 31, {v(vLANE)}
        v_mul_u32_u24 {v(vRM)}, 896, v23
        v_lshl_add_u32 {v(vRM)}, v16, 4, {v(vRM)}
        v_cmp_eq_u32 vcc, 28, v23
        v_mov_b32 v24, 0x3f803f80
        v_cndmask_b32 {v(vPADV)}, 0, v24, vcc
        s_lshr_b32 s{sA}, s{sWAVE}, 1
        s_and_b32 s{sA}, s{sA}, 1
        v_xor_b32 v22, s{sA}, v22
        v_lshl_add_u32 {v(vWK)}, v22, 6, v21
        v_xor_b32 v22, 1, v22
        v_lshl_add_u32 {v(vWS_)}, v22, 6, v21
        s_mul_i32 s{sB_}, s{sA}, {8*28*128}
        v_add_u32 {v(vWK)}, s{sB_}, {v(vWK)}
        v_add_u32 {v(vWS_)}, s{sB_}, {v(vWS_)}
        s_lshl_b32 s{sC}, s{sCG}, 1
        s_add_u32 s{sC}, s{sC}, s{sA}
        s_and_b32 s{sA}, s{sWAVE}, 1
        s_lshl_b32 s{sTW}, s{sTP}, 1
        s_add_u32 s{sTW}, s{sTW}, s{sA}
        s_and_b32 s{sA}, s{sWAVE}, 3
        s_lshl_b32 s{sT}, s{sRB}, 2
        s_add_u32 s{sT}, s{sT}, s{sA}
        s_waitcnt lgkmcnt(0)
        """)
        def mk(b, p, size):
            a(f"""s_mov_b32 s{b}, s{PTR+2*p}
            s_mov_b32 s{b+1}, s{PTR+2*p+1}
            s_mov_b32 s{b+2}, {size}
            s_mov_b32 s{b+3}, 0x20000""")
        mk(S_X, 0, 1835008); mk(S_WQ, 1, 1204224); mk(S_WO, 2, 401408)
        mk(S_OUT, 6, 1835008); mk(S_DBG, 7, 256); mk(S_WS, 8, 0x10000000); mk(S_XOUT, 8, 0x10000000)
        if self.prof: a("v_mov_b32 v0, 0")
        self.stamp(0)
        a(f"""s_cmp_lt_u32 s{sWAVE}, 4
        s_cbranch_scc1 L_layerA""")

    def stats_finish(self, vS, vQ):
        a = self.a
        a(f"""v_mov_b32 {v(vT0)}, {v(vS)}
        v_mov_b32 {v(vT1)}, {v(vQ)}
        v_permlane32_swap_b32 {v(vT0)}, {v(vS)}
        v_permlane32_swap_b32 {v(vT1)}, {v(vQ)}
        v_add_f32 {v(vS)}, {v(vS)}, {v(vT0)}
        v_add_f32 {v(vQ)}, {v(vQ)}, {v(vT1)}
        v_mul_f32 {v(vNM)}, {hx(f2u(-1.0/448))}, {v(vS)}
        v_mul_f32 {v(vQ)}, {hx(f2u(1.0/448))}, {v(vQ)}
        v_fma_f32 {v(vQ)}, -{v(vNM)}, {v(vNM)}, {v(vQ)}
        v_max_f32 {v(vQ)}, 0, {v(vQ)}
        v_add_f32 {v(vQ)}, {hx(f2u(1e-5))}, {v(vQ)}
        v_rsq_f32 {v(vA)}, {v(vQ)}
        s_lshl_b32 s{sA}, s{sWAVE}, 8
        s_add_u32 s{sA}, s{sA}, {STW}
        v_and_b32 {v(vT0)}, 31, {v(vLANE)}
        v_lshl_add_u32 {v(vT0)}, {v(vT0)}, 2, s{sA}
        v_lshrrev_b32 {v(vT1)}, 5, {v(vLANE)}
        v_lshl_add_u32 {v(vT1)}, {v(vT1)}, 4, s{sA}
        ds_write_b32 {v(vT0)}, {v(vA)}
        ds_write_b32 {v(vT0)}, {v(vNM)} offset:128""")
        self.lg.issue("stw"); self.lg.issue("stw")
    def stats_read(self, which):
        for q in range(4):
            self.a(f"ds_read_b128 {v((SA,SB)[which]+4*q,4)}, {v(vT1)} offset:{128*which+32*q}"); self.lg.issue("st")

    def tr_pair(self, dst, s, seg, tag):
        base, off, d = ((vTQ, s * 1024, 256), (vTK, s * 2048, 512), (vTV, s * 2048, 512))[seg]
        self.a(f"ds_read_b64_tr_b16 {v(dst,2)}, {v(base)} offset:{off}"); self.lg.issue(tag)
        self.a(f"ds_read_b64_tr_b16 {v(dst+2,2)}, {v(base)} offset:{off+d}"); self.lg.issue(tag)

    def xload(self, s):
        a = self.a
        if s and s % 4 == 0: a(f"s_add_u32 s{sOFF}, s{sOFF}, 4096")
        a(f"buffer_load_dwordx4 {v(XF+4*s,4)}, {v(vL16)}, {srd(S_WS)}, s{sOFF} offen offset:{(s%4)*1024} sc1")
        self.vm.issue(("x", s))

    def kv_loop(self, typ, D=12, inserts={}):
        a = self.a
        for s in range(28):
            p = s & 1
            if s + 1 < 28:
                self.tr_pair(WF + 8 * (1 - p), s + 1, 1, ("w", s + 1)); self.tr_pair(WF + 8 * (1 - p) + 4, s + 1, 2, ("w", s + 1))
            self.wait(vm=("x", s), lg=("w", s))
            wk, wv, x = WF + 8 * p, WF + 8 * p + 4, XF + 4 * s
            if typ == "A": self.mfma(ACK, x, wk, ACK if s else None)
            else: self.mfma(ACK, wk, x, ACK if s else None)
            self.mfma(ACV, x, wv, ACV if s else None)
            if s + D < 28: self.xload(s + D)
            if s in inserts: inserts[s]()

    def q_loop(self):
        for s in range(3): self.tr_pair(WF + 4 * s, s, 0, ("w", s))
        for s in range(28):
            if s + 3 < 28: self.tr_pair(WF + 4 * ((s + 3) & 3), s + 3, 0, ("w", s + 3))
            self.wait(lg=("w", s))
            self.mfma(ACQ, WF + 4 * (s & 3), XF + 4 * s, ACQ if s else None)

    def load_cs_lane(self, typ):
        a = self.a
        base = CSA + (0 if typ == "A" else 384)
        a(f"""v_and_b32 {v(vT0)}, 31, {v(vLANE)}
        v_lshlrev_b32 {v(vT0)}, 2, {v(vT0)}
        v_add_u32 {v(vT0)}, {base}, {v(vT0)}
        ds_read_b32 {v(vCS0)}, {v(vT0)} offset:128
        ds_read_b32 {v(vCS1)}, {v(vT0)} offset:256""")
        self.lg.issue("cs"); self.lg.issue("cs")
    def load_cs_reg(self, typ, seg):
        a = self.a
        base = CSA + (0 if typ == "A" else 384) + seg * 128
        a(f"""v_lshrrev_b32 {v(vT0)}, 5, {v(vLANE)}
        v_lshlrev_b32 {v(vT0)}, 4, {v(vT0)}
        v_add_u32 {v(vT0)}, {base}, {v(vT0)}""")
        for q in range(4):
            a(f"ds_read_b128 {v(CS16+4*q,4)}, {v(vT0)} offset:{32*q}"); self.lg.issue("cs16")

    def fix_feat(self, acc, vcs):
        assert vcs % 2 == 0 or True
        pair = vcs & ~1; sel = vcs & 1
        for r in range(0, 16, 2):
            self.a(f"v_pk_fma_f32 {v(acc+r,2)}, {v(SB+r,2)}, {v(pair,2)}, {v(acc+r,2)} op_sel:[0,{sel},0] op_sel_hi:[1,{sel},1]")
    def fix_tok(self, acc):
        pair = vNM & ~1; sel = vNM & 1
        for r in range(0, 16, 2):
            self.a(f"v_pk_fma_f32 {v(acc+r,2)}, {v(CS16+r,2)}, {v(pair,2)}, {v(acc+r,2)} op_sel:[0,{sel},0] op_sel_hi:[1,{sel},1]")
    def scale_lane(self, acc, vs):
        pair = vs & ~1; sel = vs & 1
        for r in range(0, 16, 2):
            self.a(f"v_pk_mul_f32 {v(acc+r,2)}, {v(acc+r,2)}, {v(pair,2)} op_sel:[0,{sel}] op_sel_hi:[1,{sel}]")
    def phi(self, acc, tmp, dst):
        a = self.a
        for r in range(0, 16, 2):
            a(f"v_pk_mul_f32 {v(tmp+r,2)}, {v(acc+r,2)}, s[{sK0}:{sK0+1}] op_sel:[0,0] op_sel_hi:[1,0]")
        for r in range(16):
            a(f"v_exp_f32_e64 {v(tmp+r)}, {v(tmp+r)} clamp")
            a(f"v_max_f32 {v(acc+r)}, s{sK0+1}, {v(acc+r)}")
        for r in range(0, 16, 2):
            a(f"v_pk_add_f32 {v(acc+r,2)}, {v(acc+r,2)}, {v(tmp+r,2)}")
        self.pack(acc, dst)
    def pack(self, src, dst):
        for i in range(8):
            self.a(f"v_cvt_pk_bf16_f32 {v(dst+i)}, {v(src+2*i)}, {v(src+2*i+1)}")

    def finalize_o(self, D, P, eps):
        a = self.a
        a(f"""v_mov_b32 {v(vT0)}, {v(D+12)}
        v_mov_b32 {v(vT1)}, {v(D+12)}
        v_permlane32_swap_b32 {v(vT0)}, {v(vT1)}""")
        if eps: a(f"v_add_f32 {v(vT1)}, {hx(f2u(1e-6))}, {v(vT1)}")
        a(f"""v_rcp_f32 {v(vT0)}, {v(vT1)}
        s_lshl_b32 s{sA}, s{sT}, 4
        s_add_u32 s{sA}, s{sA}, s{sH}
        s_lshl_b32 s{sB_}, s{sA}, 11
        s_add_u32 s{sB_}, s{sB_}, s{sLB}
        s_add_u32 s{sB_}, s{sB_}, {hx(OFF_O)}
        s_lshl_b32 s{sA}, s{sRB}, 4
        s_add_u32 s{sA}, s{sA}, s{sH}
        s_lshl_b32 s{sA}, s{sA}, 7
        s_add_u32 s{sA}, s{sA}, s{sFB}
        s_add_u32 s{sA}, s{sA}, 0x8000""")
        self.scale_lane(D, vT0)
        self.pack(D, P)
        self.exec_hi()
        a(f"v_mov_b32 {v(P+6)}, 0\nv_mov_b32 {v(P+7)}, 0")
        self.exec_all()
        a(f"""buffer_store_dwordx4 {v(P,4)}, {v(vL16)}, {srd(S_WS)}, s{sB_} offen sc1
        buffer_store_dwordx4 {v(P+4,4)}, {v(vL16)}, {srd(S_WS)}, s{sB_} offen offset:1024 sc1""")
        self.vm.issue("o"); self.vm.issue("o")

    def qkv_front(self):
        a = self.a
        D = 12
        a(f"""v_min_u32 {v(vT1)}, 6, {v(vLANE)}
        v_lshlrev_b32 {v(vT1)}, 7, {v(vT1)}
        s_lshr_b32 s{sA}, s{sT}, 1
        s_lshl_b32 s{sA}, s{sA}, 10
        s_add_u32 s{sA}, s{sA}, s{sFB}
        s_sub_u32 s{sA}, s{sA}, 0x8000""")
        a(f"""v_lshrrev_b32 {v(vCS0)}, 5, {v(vLANE)}
        v_mul_u32_u24 {v(vCS0)}, {7*256}, {v(vCS0)}
        v_and_b32 {v(vCS1)}, 31, {v(vLANE)}
        v_lshl_add_u32 {v(vCS0)}, {v(vCS1)}, 3, {v(vCS0)}
        s_mul_i32 s{sB_}, s{sT}, {14*256}
        s_add_u32 s{sB_}, s{sB_}, s{sLB}
        s_add_u32 s{sB_}, s{sB_}, {hx(OFF_ST - 0x1000000)}
        s_mul_i32 s{sOFF}, s{sT}, 28672
        s_add_u32 s{sOFF}, s{sOFF}, s{sLB}
        s_sub_u32 s{sOFF}, s{sOFF}, 0x1000000""")
        self.tr_pair(WF, 0, 1, ("w", 0)); self.tr_pair(WF + 4, 0, 2, ("w", 0))
        self.poll(vT1, f"s{sA}", delay=self.dly_x)
        self.stamp(1)
        self.xload(0); self.xload(1)
        for i in range(7):
            a(f"buffer_load_dwordx2 {v(ACQ+2*i,2)}, {v(vCS0)}, {srd(S_WS)}, s{sB_} offen offset:{256*i} sc1"); self.vm.issue("st")
        for s in range(2, D): self.xload(s)
        def st0():
            for i in range(1, 7):
                a(f"v_pk_add_f32 {v(ACQ,2)}, {v(ACQ,2)}, {v(ACQ+2*i,2)}")
        return {2: st0, 3: lambda: self.stats_finish(ACQ, ACQ + 1), 5: lambda: self.stats_read(0), 7: lambda: self.stats_read(1)}

    def first_qkv(self):
        a = self.a
        a(f"""s_cmp_lg_u32 s{sWAVE}, 3
        s_cbranch_scc1 L_noinit
        v_min_u32 v22, 47, {v(vLANE)}
        v_lshrrev_b32 v23, 2, v22
        v_and_b32 v22, 3, v22
        v_lshlrev_b32 v22, 4, v22
        v_lshl_add_u32 v22, v23, 15, v22
        v_mov_b32 v24, 0
        v_mov_b32 v25, 0
        v_mov_b32 v26, 0
        v_mov_b32 v27, 0
        s_lshl_b32 s{sA}, s2, 7
        buffer_store_dwordx4 v[24:27], v22, {srd(S_WS)}, s{sA} offen sc1
        L_noinit:
        s_mul_i32 s{sOFF}, s{sT}, 28672
        v_lshrrev_b32 v22, 3, {v(vLANE)}
        v_and_b32 v23, 7, {v(vLANE)}
        v_lshrrev_b32 v24, 4, {v(vLANE)}
        v_xor_b32 v23, v23, v24
        v_mul_u32_u24 v22, 896, v22
        v_lshl_add_u32 {v(SB)}, v23, 4, v22
        v_xor_b32 v23, 4, v23
        v_lshl_add_u32 {v(SB+1)}, v23, 4, v22
        s_lshl_b32 s{sE}, s{sWAVE}, 14
        s_add_u32 s{sE}, s{sE}, {R2}""")
        a(f"""s_lshl_b32 s{sXC}, s{sCG}, 7
        s_add_u32 s{sXC}, s{sXC}, s{sOFF}
        s_add_u32 s{sLIM}, s{sOFF}, 896""")
        def xdma(c):
            for i in range(4):
                a(f"""s_add_u32 m0, s{sE}, {(c&3)*4096+i*1024}
                s_add_u32 s{sA}, s{sXC}, {i*8*896}
                buffer_load_dwordx4 {v(SB+(i&1))}, {srd(S_X)}, s{sA} offen lds""")
                self.vm.issue(("xc", c))
            a(f"""s_add_u32 s{sXC}, s{sXC}, 128
            s_cmp_eq_u32 s{sXC}, s{sLIM}
            s_cselect_b32 s{sXC}, s{sOFF}, s{sXC}""")
        for c in range(4): xdma(c)
        a(f"""s_mul_i32 s{sA}, s{sTW}, 28672
        s_lshl_b32 s{sB_}, s{sC}, 6
        s_add_u32 s{sA}, s{sA}, s{sB_}
        buffer_load_dwordx4 {v(SA,4)}, {v(vRM)}, {srd(S_X)}, s{sA} offen
        buffer_load_dwordx4 {v(SA+4,4)}, {v(vRM)}, {srd(S_X)}, s{sA} offen offset:32
        s_mov_b32 s{sB_}, 0x3f803f80
        v_and_b32 v22, 31, {v(vLANE)}
        v_lshrrev_b32 v23, 5, {v(vLANE)}
        v_bfe_u32 v24, {v(vLANE)}, 1, 3
        v_xor_b32 v23, v23, v24
        v_lshlrev_b32 v23, 4, v23
        v_lshl_add_u32 v22, v22, 7, v23""")
        for i in range(4):
            a(f"v_xor_b32 {v(SB+2+i)}, {32*i}, v22\nv_add_u32 {v(SB+2+i)}, s{sE}, {v(SB+2+i)}")
        self.vm.issue("res"); self.vm.issue("res")
        for i in range(4): a(f"v_mov_b32 {v(ACQ+i)}, 0")
        self.stamp(12)
        for c in range(7):
            self.wait(vm=("xc", c))
            if c == 0: self.stamp(13)
            if c == 6: self.stamp(14)
            for i in range(4):
                a(f"ds_read_b128 {v(XF+16*c+4*i,4)}, {v(SB+2+i)} offset:{(c&3)*4096}"); self.lg.issue(("xr", i))
            for i in range(4):
                self.wait(lg=("xr", i))
                if i == 3 and c + 4 < 7: xdma(c + 4)
                for j in range(4):
                    r = XF + 16 * c + 4 * i + j
                    a(f"v_dot2_f32_bf16 {v(ACQ+(j&1)*2)}, {v(r)}, s{sB_}, {v(ACQ+(j&1)*2)}")
                    a(f"v_dot2_f32_bf16 {v(ACQ+(j&1)*2+1)}, {v(r)}, {v(r)}, {v(ACQ+(j&1)*2+1)}")
            if c == 0:
                a(f"""s_cmp_lg_u32 s{sWAVE}, 3
                s_cbranch_scc1 L_nosig
                s_mov_b64 exec, 1
                v_mov_b32 v22, 1
                v_mov_b32 v23, s2
                buffer_store_byte v22, v23, {srd(S_DBG)}, 0 offen sc1
                s_mov_b64 exec, -1
                L_nosig:""")
            if c == 6:
                a(f"v_pk_add_f32 {v(ACQ,2)}, {v(ACQ,2)}, {v(ACQ+2,2)}")
                self.wait(vm="res")
                for f in range(2):
                    a(f"v_permlane32_swap_b32 {v(SA+4*f)}, {v(SA+4*f+2)}\nv_permlane32_swap_b32 {v(SA+4*f+1)}, {v(SA+4*f+3)}")
                for i in range(8):
                    a(f"v_lshlrev_b32 {v(XRES+2*i)}, 16, {v(SA+i)}\nv_and_b32 {v(XRES+2*i+1)}, 0xffff0000, {v(SA+i)}")
                self.stats_finish(ACQ, ACQ + 1)
                self.stats_read(0); self.stats_read(1)
                self.wait_all(vm=False)
            self.barrier()
            if c == 0: self.stamp(2)
            WB = (WF, WF + 8, CS16, CS16 + 8)
            for i in range(3):
                self.tr_pair(WB[i], 4 * c + i, 1, ("w", i)); self.tr_pair(WB[i] + 4, 4 * c + i, 2, ("w", i))
            for i in range(4):
                s = 4 * c + i
                self.wait(lg=("w", i))
                if i == 0:
                    self.tr_pair(WB[3], 4 * c + 3, 1, ("w", 3)); self.tr_pair(WB[3] + 4, 4 * c + 3, 2, ("w", 3))
                self.mfma(ACK, XF + 4 * s, WB[i], ACK if s else None)
                self.mfma(ACV, XF + 4 * s, WB[i] + 4, ACV if s else None)

    def layer_A(self):
        a = self.a
        a("L_layerA:")
        a(f"""s_mov_b32 s{sK0}, {hx(f2u(LOG2E))}
        s_mov_b32 s{sK0+1}, {hx(f2u(1e-6))}
        s_cmp_eq_u32 s{sL}, 0
        s_cbranch_scc0 L_A_later""")
        self.first_qkv()
        self.stamp(11)
        self.barrier()
        a("s_branch L_A_epi\nL_A_later:")
        self.vm.clear(); self.lg.clear()
        ins = self.qkv_front()
        self.kv_loop("A", inserts=ins)
        a("L_A_epi:")
        self.vm.clear(); self.lg.clear()
        self.stamp(3)
        self.load_cs_lane("A")
        self.wait(lg="cs")
        self.fix_feat(ACK, vCS0)
        self.fix_feat(ACV, vCS1)
        for r in range(0, 16, 2):
            a(f"v_pk_fma_f32 {v(ACK+r,2)}, {v(ACK+r,2)}, {v(SA+r,2)}, s[{sK0}:{sK0+1}] op_sel:[0,0,1] op_sel_hi:[1,1,1]")
        for r in range(0, 16, 2):
            a(f"v_pk_mul_f32 {v(ACV+r,2)}, {v(ACV+r,2)}, {v(SA+r,2)}")
        self.pack(ACV, WF + 8)
        for i in range(8):
            a(f"v_cndmask_b32 {v(WF+8+i)}, {v(WF+8+i)}, {v(vPADV)}, s[{sMPAD}:{sMPAD+1}]")
        self.phi(ACK, CS16, WF)
        self.mfma(ACK, WF, WF + 8, None)
        self.mfma(ACK, WF + 4, WF + 12, ACK)
        a(f"""s_lshl_b32 s{sA}, s{sWAVE}, 12
        s_add_u32 s{sA}, s{sA}, {SCR}
        v_add_u32 {v(vT0)}, s{sA}, {v(vL16)}""")
        for q in range(4):
            a(f"ds_write_b128 {v(vT0)}, {v(ACK+4*q,4)} offset:{1024*q}")
        self.wait_all(vm=False)
        self.barrier()
        a(f"""s_cmp_ge_u32 s{sWAVE}, 2
        s_cbranch_scc1 L_A_q
        s_lshl_b32 s{sA}, s{sWAVE}, 11
        s_add_u32 s{sA}, s{sA}, {SCR}
        v_add_u32 {v(vT0)}, s{sA}, {v(vL16)}""")
        for w in range(4):
            a(f"ds_read_b128 {v(ACK+8*w,4)}, {v(vT0)} offset:{4096*w}\nds_read_b128 {v(ACK+8*w+4,4)}, {v(vT0)} offset:{4096*w+1024}")
        a(f"""s_lshl_b32 s{sA}, s{sH}, 4
        s_add_u32 s{sA}, s{sA}, s{sRB}
        s_lshl_b32 s{sA}, s{sA}, 1
        s_add_u32 s{sA}, s{sA}, s{sWAVE}
        s_lshl_b32 s{sB_}, s{sA}, 10
        s_add_u32 s{sB_}, s{sB_}, s{sLB}
        s_add_u32 s{sB_}, s{sB_}, {hx(OFF_KV)}
        s_waitcnt lgkmcnt(0)""")
        for r in range(0, 8, 2):
            a(f"v_pk_add_f32 {v(ACK+r,2)}, {v(ACK+r,2)}, {v(ACK+8+r,2)}\nv_pk_add_f32 {v(ACK+16+r,2)}, {v(ACK+16+r,2)}, {v(ACK+24+r,2)}")
        for r in range(0, 8, 2):
            a(f"v_pk_add_f32 {v(ACK+r,2)}, {v(ACK+r,2)}, {v(ACK+16+r,2)}")
        for i in range(4):
            a(f"v_cvt_pk_bf16_f32 {v(ACK+8+i)}, {v(ACK+2*i)}, {v(ACK+2*i+1)}")
        a(f"""buffer_store_dwordx4 {v(ACK+8,4)}, {v(vL16)}, {srd(S_WS)}, s{sB_} offen sc1""")
        a("L_A_q:")
        self.vm.clear(); self.lg.clear()
        self.q_loop()
        a(f"""s_lshl_b32 s{sA}, s{sH}, 4
        s_add_u32 s{sA}, s{sA}, s{sRB}
        s_lshl_b32 s{sA}, s{sA}, 7
        s_add_u32 s{sA}, s{sA}, s{sFB}
        v_mov_b32 {v(vT0)}, 1""")
        self.flag_store(vT0, f"s{sA}")
        self.stamp(4)
        self.load_cs_reg("A", 0)
        self.wait(lg="cs16")
        self.fix_tok(ACQ)
        pair = vA & ~1; sel = vA & 1
        for r in range(0, 16, 2):
            a(f"v_pk_fma_f32 {v(ACQ+r,2)}, {v(ACQ+r,2)}, {v(pair,2)}, s[{sK0}:{sK0+1}] op_sel:[0,{sel},1] op_sel_hi:[1,{sel},1]")
        PQ = WF
        self.phi(ACQ, CS16, PQ)
        self.exec_hi()
        a(f"v_mov_b32 {v(PQ+6)}, 0\nv_mov_b32 {v(PQ+7)}, 0")
        self.exec_all()
        ID = WF + 8
        a(f"""v_lshrrev_b32 {v(vT0)}, 5, {v(vLANE)}
        v_and_b32 {v(vT1)}, 31, {v(vLANE)}
        v_lshlrev_b32 {v(vT0)}, 2, {v(vT0)}
        v_sub_u32 {v(vT1)}, {v(vT1)}, {v(vT0)}
        v_mov_b32 {v(ACK)}, 0x3f80
        v_mov_b32 {v(ACK+1)}, 0x3f800000""")
        for i in range(8):
            d0 = 16 * (i >> 2) + 8 * ((i & 3) >> 1) + 2 * (i & 1)
            a(f"""v_cmp_eq_u32 vcc, {d0}, {v(vT1)}
            v_cndmask_b32 {v(ID+i)}, 0, {v(ACK)}, vcc
            v_cmp_eq_u32 vcc, {d0+1}, {v(vT1)}
            v_cndmask_b32 {v(ID+i)}, {v(ID+i)}, {v(ACK+1)}, vcc""")
        self.stamp(5)
        self.maybe_stop("A_q")
        a(f"""v_and_b32 {v(vT1)}, 3, {v(vLANE)}
        v_lshlrev_b32 {v(vT1)}, 7, {v(vT1)}
        s_lshl_b32 s{sA}, s{sH}, 2
        s_add_u32 s{sA}, s{sA}, s{sWAVE}
        s_lshl_b32 s{sB_}, s{sA}, 13
        s_add_u32 s{sB_}, s{sB_}, s{sLB}
        s_add_u32 s{sB_}, s{sB_}, {hx(OFF_KV)}
        s_add_u32 s{sC_}, s{sB_}, 4096
        s_lshl_b32 s{sA}, s{sA}, 9
        s_add_u32 s{sA}, s{sA}, s{sFB}""")
        self.poll(vT1, f"s{sA}")
        self.stamp(6)
        for i in range(8):
            so = sB_ if i < 4 else sC_
            a(f"buffer_load_dwordx4 {v(XF+4*i,4)}, {v(vL16)}, {srd(S_WS)}, s{so} offen offset:{(i&3)*1024} sc1"); self.vm.issue(("p", i))
        for i in range(8):
            self.wait(vm=("p", i))
            self.mfma(ACK, ID + 4 * (i & 1), XF + 4 * i, ACK if i else None)
        a(f"""s_lshl_b32 s{sA}, s{sWAVE}, 12
        s_add_u32 s{sA}, s{sA}, {SCR}
        v_add_u32 {v(vT0)}, s{sA}, {v(vL16)}
        v_add_u32 {v(vT1)}, {SCR}, {v(vL16)}""")
        for q in range(4):
            a(f"ds_write_b128 {v(vT0)}, {v(ACK+4*q,4)} offset:{1024*q}")
        self.wait_all(vm=False)
        self.barrier()
        for w in range(4):
            for q in range(4):
                a(f"ds_read_b128 {v(XF+16*w+4*q,4)}, {v(vT1)} offset:{4096*w+1024*q}")
            if w == 1 or w == 3:
                pass
        a("s_waitcnt lgkmcnt(8)")
        for r in range(0, 16, 2):
            a(f"v_pk_add_f32 {v(XF+r,2)}, {v(XF+r,2)}, {v(XF+16+r,2)}")
        a("s_waitcnt lgkmcnt(0)")
        for r in range(0, 16, 2):
            a(f"v_pk_add_f32 {v(XF+32+r,2)}, {v(XF+32+r,2)}, {v(XF+48+r,2)}")
        for r in range(0, 16, 2):
            a(f"v_pk_add_f32 {v(XF+r,2)}, {v(XF+r,2)}, {v(XF+32+r,2)}")
        self.pack(XF, XF + 64)
        self.mfma(ACV, XF + 64, PQ, None)
        self.mfma(ACV, XF + 68, PQ + 4, ACV)
        self.finalize_o(ACV, ACK, True)
        a(f"v_mov_b32 {v(vT0)}, 1")
        self.flag_store(vT0, f"s{sA}")
        a("s_branch L_wo")

    def layer_B(self):
        a = self.a
        a("L_layerB:")
        self.vm.clear(); self.lg.clear()
        ins = self.qkv_front()
        ins[9] = lambda: self.load_cs_lane("B")
        ins[11] = lambda: self.load_cs_reg("B", 1)
        self.kv_loop("B", inserts=ins)
        self.stamp(3)
        self.fix_tok(ACK)
        self.fix_feat(ACV, vCS1)
        self.scale_lane(ACK, vA)
        for r in range(0, 16, 2):
            a(f"v_pk_mul_f32 {v(ACV+r,2)}, {v(ACV+r,2)}, {v(SA+r,2)}")
        self.pack(ACK, WF)
        self.pack(ACV, WF + 8)
        for i in range(8):
            a(f"v_cndmask_b32 {v(WF+8+i)}, {v(WF+8+i)}, {v(vPADV)}, s[{sMPAD}:{sMPAD+1}]")
        self.exec_hi()
        a(f"v_mov_b32 {v(WF+6)}, 0x3f803f80\nv_mov_b32 {v(WF+7)}, 0x3f80")
        for i in range(4): a(f"v_mov_b32 {v(ACK+12+i)}, 0")
        self.exec_all()
        a(f"""s_lshl_b32 s{sA}, s{sH}, 6
        s_add_u32 s{sA}, s{sA}, s{sT}
        s_lshl_b32 s{sB_}, s{sA}, 12
        s_add_u32 s{sB_}, s{sB_}, s{sLB}
        s_add_u32 s{sB_}, s{sB_}, {hx(OFF_KV)}
        s_lshl_b32 s{sA}, s{sH}, 4
        s_add_u32 s{sA}, s{sA}, s{sRB}
        s_lshl_b32 s{sA}, s{sA}, 7
        s_add_u32 s{sA}, s{sA}, s{sFB}""")
        for i in range(4):
            a(f"buffer_store_dwordx4 {v(WF+4*i,4)}, {v(vL16)}, {srd(S_WS)}, s{sB_} offen offset:{1024*i} sc1")
        self.sumsq(ACK, vT0)
        for sh in (1, 2, 4, 8):
            a(f"v_max_f32_dpp {v(vT0)}, {v(vT0)}, {v(vT0)} row_ror:{sh} row_mask:0xf bank_mask:0xf")
        a(f"""v_readlane_b32 s{sB_}, {v(vT0)}, 0
        v_readlane_b32 s{sC_}, {v(vT0)}, 16
        s_max_u32 s{sB_}, s{sB_}, s{sC_}
        s_or_b32 s{sB_}, s{sB_}, 1
        v_mov_b32 {v(vT0)}, s{sB_}
        s_lshl_b32 s{sC_}, s{sWAVE}, 2
        s_add_u32 s{sC_}, s{sC_}, {KMX}
        v_mov_b32 {v(vT1)}, s{sC_}
        ds_write_b32 {v(vT1)}, {v(vT0)}
        v_mov_b32 {v(vT1)}, {KMX}
        s_waitcnt lgkmcnt(0)
        s_barrier
        ds_read_b128 {v(ACV,4)}, {v(vT1)}
        s_waitcnt lgkmcnt(0)
        v_max_u32 {v(vT0)}, {v(ACV)}, {v(ACV+1)}
        v_max3_u32 {v(vT0)}, {v(ACV+2)}, {v(ACV+3)}, {v(vT0)}""")
        self.flag_store(vT0, f"s{sA}")
        self.stamp(4)
        self.load_cs_reg("B", 0)
        self.q_loop()
        self.fix_tok(ACQ)
        a(f"v_mul_f32 {v(vA)}, {hx(f2u(QSCALE))}, {v(vA)}")
        self.scale_lane(ACQ, vA)
        self.exec_hi()
        for i in range(4): a(f"v_mov_b32 {v(ACQ+12+i)}, 0")
        self.exec_all()
        self.pack(ACQ, WF)
        self.sumsq(ACQ, vT0)
        a(f"v_sqrt_f32 {v(vT0)}, {v(vT0)}")
        self.exec_hi()
        a(f"v_mov_b32 {v(WF+6)}, {v(vT0)}")
        self.exec_all()
        a(f"""s_lshl_b32 s{sA}, s{sWAVE}, 11
        s_add_u32 s{sA}, s{sA}, {SCR}
        v_add_u32 {v(vT0)}, s{sA}, {v(vL16)}
        ds_write_b128 {v(vT0)}, {v(WF,4)}
        ds_write_b128 {v(vT0)}, {v(WF+4,4)} offset:1024""")
        self.wait_all(vm=False)
        self.barrier()
        self.stamp(5)
        self.maybe_stop("B_q")
        self.attention()

    def sumsq(self, acc, dst):
        a = self.a
        a(f"v_pk_mul_f32 {v(vCS0,2)}, {v(acc,2)}, {v(acc,2)}")
        for r in range(2, 16, 2):
            a(f"v_pk_fma_f32 {v(vCS0,2)}, {v(acc+r,2)}, {v(acc+r,2)}, {v(vCS0,2)}")
        a(f"""v_add_f32 {v(dst)}, {v(vCS0)}, {v(vCS1)}
        v_add_f32 {v(vT1)}, {v(vCS0)}, {v(vCS1)}
        v_permlane32_swap_b32 {v(dst)}, {v(vT1)}
        v_add_f32 {v(dst)}, {v(dst)}, {v(vT1)}""")

    def attention(self):
        a = self.a
        Q = 32; O = 64; S = 128; P = 160; KV = 168
        for i in range(4):
            a(f"""s_add_u32 s{sA}, s{sWAVE}, {i}
            s_and_b32 s{sA}, s{sA}, 3
            s_lshl_b32 s{sA}, s{sA}, 11
            s_add_u32 s{sA}, s{sA}, {SCR}
            v_add_u32 {v(vT0)}, s{sA}, {v(vL16)}
            ds_read_b128 {v(Q+8*i,4)}, {v(vT0)}
            ds_read_b128 {v(Q+8*i+4,4)}, {v(vT0)} offset:1024""")
        for i in range(64): a(f"v_mov_b32 {v(O+i)}, 0")
        for i in range(4): a(f"v_mov_b32 {v(P+4+i)}, 0\nv_mov_b32 {v(KV+48+12+i)}, 0")
        a(f"""v_and_b32 {v(vT1)}, 15, {v(vLANE)}
        v_lshlrev_b32 {v(vT1)}, 7, {v(vT1)}
        s_lshl_b32 s{sA}, s{sH}, 11
        s_add_u32 s{sA}, s{sA}, s{sFB}
        s_lshl_b32 s{sOFF}, s{sH}, 2
        s_add_u32 s{sOFF}, s{sOFF}, s{sWAVE}
        s_lshl_b32 s{sOFF}, s{sOFF}, 16
        s_add_u32 s{sOFF}, s{sOFF}, s{sLB}
        s_add_u32 s{sOFF}, s{sOFF}, {hx(OFF_KV)}
        s_add_u32 s{sOFFMAX}, s{sOFF}, {15*4096}
        s_waitcnt lgkmcnt(0)""")
        self.poll(vT1, f"s{sA}")
        self.stamp(6)
        def kvload(slot, j):
            a(f"buffer_load_dwordx4 {v(KV+16*slot+4*j,4)}, {v(vL16)}, {srd(S_WS)}, s{sOFF} offen offset:{1024*j} sc1")
        def adv():
            a(f"s_add_u32 s{sOFF}, s{sOFF}, 4096\ns_min_u32 s{sOFF}, s{sOFF}, s{sOFFMAX}")
        for slot in range(3):
            for j in range(4): kvload(slot, j)
            adv()
        for sh in (1, 2, 4, 8):
            a(f"v_max_f32_dpp {v(vT0)}, {v(vT0)}, {v(vT0)} row_ror:{sh} row_mask:0xf bank_mask:0xf")
        a(f"""v_sqrt_f32 {v(vT0)}, {v(vT0)}
        v_mov_b32 {v(vT1)}, {hx(f2u(SHIFT_UP))}""")
        self.exec_hi()
        for i in range(4):
            a(f"v_fma_f32 {v(Q+8*i+6)}, -{v(Q+8*i+6)}, {v(vT0)}, {v(vT1)}")
            a(f"v_cvt_pk_bf16_f32 {v(Q+8*i+6)}, {v(Q+8*i+6)}, 0")
        self.exec_all()
        a("s_waitcnt vmcnt(10)")
        self.mfma(S, KV, Q, None)
        self.mfma(S, KV + 4, Q + 4, S)
        a(f"s_mov_b32 s{sLOOP}, 4\ns_waitcnt vmcnt(8)\ns_nop 7\nL_att:")
        for n in range(16):
            kt, i = n >> 2, n & 3
            pk, pi = ((n - 1) & 15) >> 2, (n - 1) & 3
            nk, ni = ((n + 1) & 15) >> 2, (n + 1) & 3
            Sc, Sn = S + 16 * (n & 1), S + 16 * ((n + 1) & 1)
            ex = lambda r: a(f"v_exp_f32 {v(Sc+r)}, {v(Sc+r)}")
            cv = lambda j: a(f"v_cvt_pk_bf16_f32 {v(P+j)}, {v(Sc+2*j)}, {v(Sc+2*j+1)}")
            ex(0); ex(1)
            self.mfma(O + 16 * pi, KV + 16 * pk + 12, P + 4, O + 16 * pi)
            for r in range(2, 6): ex(r)
            if i == 3: a("s_waitcnt vmcnt(7)")
            self.mfma(Sn, KV + 16 * nk, Q + 8 * ni, None)
            ex(6); ex(7); cv(0); cv(1); cv(2)
            self.mfma(Sn, KV + 16 * nk + 4, Q + 8 * ni + 4, Sn)
            cv(3)
            for r in range(8, 12): ex(r)
            self.mfma(O + 16 * i, KV + 16 * kt + 8, P, O + 16 * i)
            kvload((kt + 3) & 3, i)
            if i == 3: adv()
            for r in range(12, 16): ex(r)
            for j in range(4, 8): cv(j)
        a(f"""s_sub_u32 s{sLOOP}, s{sLOOP}, 1
        s_cmp_lg_u32 s{sLOOP}, 0
        s_cbranch_scc1 L_att""")
        self.mfma(O + 48, KV + 48 + 12, P + 4, O + 48)
        self.stamp(7)
        for i in range(1, 4):
            a(f"""s_add_u32 s{sA}, s{sWAVE}, {i}
            s_and_b32 s{sA}, s{sA}, 3
            s_mul_i32 s{sA}, s{sA}, 12288
            v_add_u32 {v(vT0)}, s{sA}, {v(vL16)}""")
            for q in range(4):
                a(f"ds_write_b128 {v(vT0)}, {v(O+16*i+4*q,4)} offset:{R1+4096*(i-1)+1024*q}")
        a(f"""s_mul_i32 s{sA}, s{sWAVE}, 12288
        v_add_u32 {v(vT0)}, s{sA}, {v(vL16)}
        s_waitcnt lgkmcnt(0)""")
        self.barrier()
        for i in range(3):
            for q in range(4):
                a(f"ds_read_b128 {v(O+16+16*i+4*q,4)}, {v(vT0)} offset:{R1+4096*i+1024*q}")
        for i in range(3):
            a(f"s_waitcnt lgkmcnt({8-4*i})")
            for r in range(0, 16, 2):
                a(f"v_pk_add_f32 {v(O+r,2)}, {v(O+r,2)}, {v(O+16+16*i+r,2)}")
        a(f"s_mov_b32 s{sRETRY}, 0")
        a("L_att_fin:")
        self.finalize_o(O, P, False)
        a(f"v_max3_f32 {v(vT0)}, |{v(O)}|, |{v(O+1)}|, {v(vT1)}")
        for r in range(2, 12, 2):
            a(f"v_max3_f32 {v(vT0)}, |{v(O+r)}|, |{v(O+r+1)}|, {v(vT0)}")
        a(f"v_pk_add_f32 {v(vCS0,2)}, {v(O,2)}, {v(O+2,2)}")
        for r in range(4, 16, 2):
            a(f"v_pk_add_f32 {v(vCS0,2)}, {v(vCS0,2)}, {v(O+r,2)}")
        a(f"""v_add_f32 {v(vCS0)}, {v(vCS0)}, {v(vCS1)}
        v_add_f32 {v(vT0)}, {v(vT0)}, {v(vCS0)}
        s_movk_i32 s{sB_}, 0x207
        v_cmp_class_f32_e64 s[{sK0}:{sK0+1}], {v(vT0)}, s{sB_}
        v_cmp_nle_f32 vcc, {hx(f2u(L_MIN))}, {v(vT1)}
        s_or_b64 vcc, vcc, s[{sK0}:{sK0+1}]
        s_cmp_lg_u32 s{sRETRY}, 0
        s_cbranch_scc1 L_att_ok
        s_cbranch_vccnz L_slow
        L_att_ok:
        v_mov_b32 {v(vT0)}, 1""")
        self.flag_store(vT0, f"s{sA}")

    def slow_path(self):
        a = self.a
        Q = 32; O = 64; S = 128; P = 160; KV = 168; M = 232
        a(f"""L_slow:
        s_mov_b32 s{sRETRY}, 1
        s_lshl_b32 s{sOFFMAX}, s{sH}, 18
        s_add_u32 s{sOFFMAX}, s{sOFFMAX}, s{sLB}
        s_add_u32 s{sOFFMAX}, s{sOFFMAX}, {hx(OFF_KV)}
        s_mov_b32 s{sOFF}, s{sOFFMAX}
        v_mov_b32 {v(M)}, 0xff800000""")
        self.exec_hi()
        a(f"v_mov_b32 {v(Q+6)}, 0\nv_mov_b32 {v(Q+7)}, 0")
        self.exec_all()
        a(f"""s_mov_b32 s{sLOOP}, 64
        L_slow1:
        buffer_load_dwordx4 {v(KV,4)}, {v(vL16)}, {srd(S_WS)}, s{sOFF} offen sc1
        buffer_load_dwordx4 {v(KV+4,4)}, {v(vL16)}, {srd(S_WS)}, s{sOFF} offen offset:1024 sc1
        s_add_u32 s{sOFF}, s{sOFF}, 4096
        s_waitcnt vmcnt(0)""")
        self.mfma(S, KV, Q, None); self.mfma(S, KV + 4, Q + 4, S)
        for r in range(0, 16, 2):
            a(f"v_max3_f32 {v(M)}, {v(S+r)}, {v(S+r+1)}, {v(M)}")
        a(f"""s_sub_u32 s{sLOOP}, s{sLOOP}, 1
        s_cmp_lg_u32 s{sLOOP}, 0
        s_cbranch_scc1 L_slow1
        v_mov_b32 {v(M+1)}, {v(M)}
        v_permlane32_swap_b32 {v(M)}, {v(M+1)}
        v_max_f32 {v(M)}, {v(M)}, {v(M+1)}
        v_sub_f32 {v(M)}, 0, {v(M)}
        v_and_b32 {v(M+1)}, 0xffff0000, {v(M)}
        v_sub_f32 {v(M)}, {v(M)}, {v(M+1)}
        v_and_b32 {v(M+2)}, 0xffff0000, {v(M)}
        v_sub_f32 {v(M)}, {v(M)}, {v(M+2)}
        v_lshrrev_b32 {v(M+1)}, 16, {v(M+1)}""")
        self.exec_hi()
        a(f"v_or_b32 {v(Q+6)}, {v(M+1)}, {v(M+2)}\nv_lshrrev_b32 {v(Q+7)}, 16, {v(M)}")
        self.exec_all()
        for i in range(16): a(f"v_mov_b32 {v(O+i)}, 0")
        a(f"""s_mov_b32 s{sOFF}, s{sOFFMAX}
        s_mov_b32 s{sLOOP}, 64
        L_slow2:""")
        for j in range(4):
            a(f"buffer_load_dwordx4 {v(KV+4*j,4)}, {v(vL16)}, {srd(S_WS)}, s{sOFF} offen offset:{1024*j} sc1")
        a(f"s_add_u32 s{sOFF}, s{sOFF}, 4096\ns_waitcnt vmcnt(0)")
        self.mfma(S, KV, Q, None); self.mfma(S, KV + 4, Q + 4, S)
        for r in range(16): a(f"v_exp_f32 {v(S+r)}, {v(S+r)}")
        self.pack(S, P)
        self.mfma(O, KV + 8, P, O); self.mfma(O, KV + 12, P + 4, O)
        a(f"""s_sub_u32 s{sLOOP}, s{sLOOP}, 1
        s_cmp_lg_u32 s{sLOOP}, 0
        s_cbranch_scc1 L_slow2
        s_branch L_att_fin""")

    def wo_phase(self):
        a = self.a
        OF = 32; SEND = 96; RECV = 112; PK = 128
        a("L_wo:")
        self.vm.clear(); self.lg.clear()
        self.stamp(8)
        self.maybe_stop("mix")
        a(f"""s_cmp_eq_u32 s{sISWO}, 0
        s_cbranch_scc1 L_wo_skip
        s_lshr_b32 s{sD}, s{sWAVE}, 1
        v_and_b32 {v(vT1)}, 7, {v(vLANE)}
        v_lshlrev_b32 {v(vT1)}, 7, {v(vT1)}
        s_lshl_b32 s{sA}, s{sTW}, 1
        s_add_u32 s{sA}, s{sA}, s{sD}
        s_lshl_b32 s{sOFF}, s{sA}, 14
        s_add_u32 s{sOFF}, s{sOFF}, s{sLB}
        s_add_u32 s{sOFF}, s{sOFF}, {hx(OFF_O)}
        s_lshr_b32 s{sA}, s{sTW}, 2
        s_lshl_b32 s{sA}, s{sA}, 1
        s_add_u32 s{sA}, s{sA}, s{sD}
        s_lshl_b32 s{sA}, s{sA}, 10
        s_add_u32 s{sA}, s{sA}, s{sFB}
        s_add_u32 s{sA}, s{sA}, 0x8000""")
        def wtr(dst, base, n):
            off = (28 * (n >> 1) + 16 * (n & 1)) * 128
            a(f"ds_read_b64_tr_b16 {v(dst,2)}, {v(base)} offset:{off}"); self.lg.issue(("w", n))
            a(f"ds_read_b64_tr_b16 {v(dst+2,2)}, {v(base)} offset:{off+1024}"); self.lg.issue(("w", n))
        wtr(WF, vWK, 0); wtr(WF + 4, vWS_, 0)
        self.poll(vT1, f"s{sA}", delay=self.dly_o)
        self.stamp(9)
        for n in range(16):
            if n and n % 4 == 0: a(f"s_add_u32 s{sOFF}, s{sOFF}, 4096")
            a(f"buffer_load_dwordx4 {v(OF+4*n,4)}, {v(vL16)}, {srd(S_WS)}, s{sOFF} offen offset:{(n%4)*1024} sc1"); self.vm.issue(("o", n))
        for n in range(16):
            p = n & 1
            if n + 1 < 16:
                wtr(WF + 8 * (1 - p), vWK, n + 1); wtr(WF + 8 * (1 - p) + 4, vWS_, n + 1)
            self.wait(vm=("o", n), lg=("w", n))
            self.mfma(SEND, WF + 8 * p + 4, OF + 4 * n, SEND if n else None)
            self.mfma(XRES, WF + 8 * p, OF + 4 * n, XRES)
        a(f"""s_lshl_b32 s{sA}, s{sWAVE}, 12
        s_add_u32 s{sB_}, s{sA}, {SCR}
        v_add_u32 {v(vT0)}, s{sB_}, {v(vL16)}
        s_xor_b32 s{sA}, s{sA}, 8192
        s_add_u32 s{sA}, s{sA}, {SCR}
        v_add_u32 {v(vT1)}, s{sA}, {v(vL16)}""")
        for q in range(4):
            a(f"ds_write_b128 {v(vT0)}, {v(SEND+4*q,4)} offset:{1024*q}")
        a(f"""s_mul_i32 s{sSO0}, s{sTW}, 28672
        s_cmp_eq_u32 s{sL}, 3
        s_cbranch_scc1 L_wo_last
        s_lshl_b32 s{sB_}, s{sC}, 11
        s_add_u32 s{sSO0}, s{sSO0}, s{sB_}
        s_add_u32 s{sSO0}, s{sSO0}, s{sLB}
        s_add_u32 s{sSO1}, s{sSO0}, 1024
        v_mov_b32 {v(vXO)}, {v(vL16)}
        s_branch L_wo_addr
        L_wo_last:
        s_lshl_b32 s{sB_}, s{sC}, 6
        s_add_u32 s{sSO0}, s{sSO0}, s{sB_}
        s_add_u32 s{sSO1}, s{sSO0}, 32
        v_mov_b32 {v(vXO)}, {v(vRM)}
        s_mov_b32 s{S_XOUT}, s{PTR+12}
        s_mov_b32 s{S_XOUT+1}, s{PTR+13}
        s_mov_b32 s{S_XOUT+2}, 1835008
        L_wo_addr:
        s_waitcnt lgkmcnt(0)""")
        self.barrier()
        self.stamp(7)
        for q in range(4):
            a(f"ds_read_b128 {v(RECV+4*q,4)}, {v(vT1)} offset:{1024*q}")
        for q in range(4):
            a(f"s_waitcnt lgkmcnt({3-q})")
            a(f"v_pk_add_f32 {v(XRES+4*q,2)}, {v(XRES+4*q,2)}, {v(RECV+4*q,2)}\nv_pk_add_f32 {v(XRES+4*q+2,2)}, {v(XRES+4*q+2,2)}, {v(RECV+4*q+2,2)}")
        self.pack(XRES, PK)
        for f in range(2):
            a(f"v_permlane32_swap_b32 {v(PK+4*f)}, {v(PK+4*f+2)}\nv_permlane32_swap_b32 {v(PK+4*f+1)}, {v(PK+4*f+3)}")
        a(f"""buffer_store_dwordx4 {v(PK,4)}, {v(vXO)}, {srd(S_XOUT)}, s{sSO0} offen sc1
        buffer_store_dwordx4 {v(PK+4,4)}, {v(vXO)}, {srd(S_XOUT)}, s{sSO1} offen sc1
        s_cmp_eq_u32 s{sL}, 3
        s_cbranch_scc1 L_fin""")
        a(f"v_pk_add_f32 {v(RECV,2)}, {v(XRES,2)}, {v(XRES+2,2)}\nv_pk_mul_f32 {v(RECV+2,2)}, {v(XRES,2)}, {v(XRES,2)}")
        for r in range(2, 16, 2):
            if r >= 4: a(f"v_pk_add_f32 {v(RECV,2)}, {v(RECV,2)}, {v(XRES+r,2)}")
            a(f"v_pk_fma_f32 {v(RECV+2,2)}, {v(XRES+r,2)}, {v(XRES+r,2)}, {v(RECV+2,2)}")
        a(f"""v_add_f32 {v(RECV+4)}, {v(RECV)}, {v(RECV+1)}
        v_add_f32 {v(RECV+5)}, {v(RECV+2)}, {v(RECV+3)}
        v_add_f32 {v(RECV+6)}, {v(RECV)}, {v(RECV+1)}
        v_add_f32 {v(RECV+7)}, {v(RECV+2)}, {v(RECV+3)}
        s_mul_i32 s{sA}, s{sTW}, 14
        s_add_u32 s{sA}, s{sA}, s{sC}
        s_lshl_b32 s{sA}, s{sA}, 8
        s_add_u32 s{sA}, s{sA}, s{sLB}
        s_add_u32 s{sA}, s{sA}, {hx(OFF_ST)}
        v_permlane32_swap_b32 {v(RECV+4)}, {v(RECV+6)}
        v_permlane32_swap_b32 {v(RECV+5)}, {v(RECV+7)}
        v_lshlrev_b32 {v(vT0)}, 3, {v(vLANE)}
        v_pk_add_f32 {v(RECV+4,2)}, {v(RECV+4,2)}, {v(RECV+6,2)}""")
        self.exec_lo()
        a(f"buffer_store_dwordx2 {v(RECV+4,2)}, {v(vT0)}, {srd(S_WS)}, s{sA} offen sc1")
        self.exec_all()
        a(f"""s_lshl_b32 s{sA}, s{sTP}, 3
        s_add_u32 s{sA}, s{sA}, s{sCG}
        s_lshl_b32 s{sA}, s{sA}, 7
        s_add_u32 s{sA}, s{sA}, s{sFB}
        s_add_u32 s{sA}, s{sA}, 0x10000
        v_mov_b32 {v(vT0)}, 1""")
        self.flag_store(vT0, f"s{sA}")
        a("s_branch L_next\nL_wo_skip:")
        self.barrier()
        a(f"""s_cmp_eq_u32 s{sL}, 3
        s_cbranch_scc1 L_fin""")
        self.barrier()
        a("L_next:")
        self.stamp(10)
        self.maybe_stop("wo")
        a(f"""s_add_u32 s{sL}, s{sL}, 1
        s_add_u32 s{sLB}, s{sLB}, 0x1000000
        s_add_u32 s{sFB}, s{sFB}, 0x18000
        s_bitcmp1_b32 s{sL}, 0
        s_cbranch_scc1 L_layerB
        s_branch L_layerA""")

    def helper(self):
        a = self.a
        VKV, VQ, VWO, VCS = 16, 17, 18, 19
        ONES, FR, ACC = 24, 28, 64
        NFL = 8
        a("L_helper:")
        a(f"""s_sub_u32 s{sHH}, s{sWAVE}, 4
        v_lshrrev_b32 v22, 3, {v(vLANE)}
        v_and_b32 v23, 7, {v(vLANE)}
        v_bfe_u32 v28, {v(vLANE)}, 4, 1
        v_lshlrev_b32 v28, 2, v28
        v_xor_b32 v23, v23, v28
        v_mul_u32_u24 v29, 896, v22
        v_lshl_add_u32 v{VWO}, v23, 4, v29
        v_mul_u32_u24 v29, 2688, v22
        v_lshrrev_b32 v28, 2, v23
        v_mul_u32_u24 v28, 896, v28
        v_and_b32 v23, 3, v23
        v_lshl_add_u32 v29, v23, 4, v29
        v_add_u32 v{VKV}, v29, v28
        v_lshrrev_b32 v22, 2, {v(vLANE)}
        v_mul_u32_u24 v22, 2688, v22
        v_lshl_add_u32 v{VQ}, v23, 4, v22
        s_mul_i32 s{sE}, s{sH}, 56
        s_and_b32 s{sE}, s{sE}, 0xfff0
        s_mul_i32 s{sB_}, s{sHH}, {8*2688}
        s_add_u32 s{sB_}, s{sB_}, s{sE}
        s_add_u32 s{sXC}, s{sB_}, 896
        s_add_u32 s{sLIM}, s{sXC}, {448*2688}
        s_mul_i32 s{sROT}, s{sCG}, {64*2688}
        s_add_u32 s{sB_}, s{sXC}, s{sROT}
        s_lshl_b32 s{sA}, s{sHH}, 10""")
        def raw_kv():
            a(f"""s_mov_b32 m0, s{sA}
            s_add_u32 s{sA}, s{sA}, 4096
            buffer_load_dwordx4 v{VKV}, {srd(S_WQ)}, s{sB_} offen lds
            s_add_u32 s{sB_}, s{sB_}, {32*2688}
            s_cmp_eq_u32 s{sB_}, s{sLIM}
            s_cselect_b32 s{sB_}, s{sXC}, s{sB_}""")
        for i in range(NFL): raw_kv()
        a(f"""v_and_b32 v22, 31, {v(vLANE)}
        v_lshlrev_b32 v{VCS}, 2, v22
        v_mov_b32 v24, 0x3f803f80
        v_mov_b32 v25, 0x3f803f80
        v_mov_b32 v26, 0x3f803f80
        v_mov_b32 v27, 0x3f803f80
        v_mov_b32 v28, 0
        v_mov_b32 v29, 0
        v_mov_b32 v30, 0
        v_mov_b32 v31, 0
        v_min_u32 v22, 47, {v(vLANE)}
        v_lshlrev_b32 v22, 4, v22
        v_add_u32 v22, {CSA}, v22
        ds_write_b128 v22, v[28:31]
        s_lshl_b32 s{sC_}, s{sHH}, 11
        v_add_u32 v20, s{sC_}, {v(vTK)}
        v_add_u32 v21, s{sC_}, {v(vTV)}
        s_mul_i32 s{sD}, s{sHH}, {16*2688}
        s_add_u32 s{sD}, s{sD}, s{sE}
        s_add_u32 s{sLIM2}, s{sD}, {448*2688}
        s_add_u32 s{sF}, s{sD}, s{sROT}
        s_lshl_b32 s{sG}, s{sHH}, 10
        s_add_u32 s{sG}, s{sG}, {R1Q}
        s_waitcnt lgkmcnt(0)""")
        def raw_q():
            a(f"""s_mov_b32 m0, s{sG}
            s_add_u32 s{sG}, s{sG}, 4096
            buffer_load_dwordx4 v{VQ}, {srd(S_WQ)}, s{sF} offen lds
            s_add_u32 s{sF}, s{sF}, {64*2688}
            s_cmp_eq_u32 s{sF}, s{sLIM2}
            s_cselect_b32 s{sF}, s{sD}, s{sF}""")
        seq = ["kv"] * 14 + ["q"] * 7
        nxt = NFL
        for c in range(7):
            if c == 0: self.stamp(1)
            a(f"s_waitcnt vmcnt({nxt-2*c-2})")
            if c == 0: self.stamp(2)
            if c == 3: self.stamp(11)
            if c == 6: self.stamp(12)
            self.barrier()
            for _ in range(2):
                if nxt < 21:
                    (raw_kv if seq[nxt] == "kv" else raw_q)(); nxt += 1
            a(f"""ds_read_b64_tr_b16 v[{FR}:{FR+1}], v20 offset:{c*8192}
            ds_read_b64_tr_b16 v[{FR+2}:{FR+3}], v20 offset:{c*8192+512}
            ds_read_b64_tr_b16 v[{FR+4}:{FR+5}], v21 offset:{c*8192}
            ds_read_b64_tr_b16 v[{FR+6}:{FR+7}], v21 offset:{c*8192+512}
            s_waitcnt lgkmcnt(0)""")
            self.mfma(ACC + 16, ONES, FR, ACC + 16 if c else None)
            self.mfma(ACC + 32, ONES, FR + 4, ACC + 32 if c else None)
        while nxt < 21:
            raw_q(); nxt += 1
        def cs_add(base, tiles):
            self.exec_lo()
            a(f"v_add_u32 v22, {base}, v{VCS}")
            for t in tiles:
                a(f"ds_add_f32 v22, v{ACC+16*t} offset:{128*t}")
            self.exec_all()
            a("s_waitcnt lgkmcnt(0)")
        cs_add(CSA, (1, 2))
        self.stamp(3)
        self.barrier()
        a(f"""s_lshr_b32 s{sA}, s{sHH}, 1
        s_cmp_eq_u32 s{sA}, 0
        s_cselect_b32 s{S_WQ}, s{PTR+2}, s{PTR+8}
        s_cselect_b32 s{S_WQ+1}, s{PTR+3}, s{PTR+9}
        s_lshl_b32 s{sA}, s{sA}, 4
        s_add_u32 s{sA}, s{sA}, s{sH}
        s_mul_i32 s{sF}, s{sA}, 86016
        s_add_u32 s{sF}, s{sF}, {hx(WPK)}
        s_mul_i32 s{sB_}, s{sRB}, {28*2688}
        s_add_u32 s{sB_}, s{sB_}, s{sE}
        s_bitcmp1_b32 s{sHH}, 0
        s_cbranch_scc1 L_h_packq
        s_add_u32 s{sB_}, s{sB_}, 896
        s_mul_i32 s{sC_}, s{sRB}, {28*128}
        s_add_u32 s{sF}, s{sF}, s{sC_}""")
        for i in range(4):
            a(f"buffer_load_dwordx4 v[{112+4*i}:{115+4*i}], v{VKV}, {srd(S_WQ)}, s{sB_} offen\ns_add_u32 s{sB_}, s{sB_}, {8*2688}")
        a(f"""s_waitcnt vmcnt(4)
        s_branch L_h_packed
        L_h_packq:
        s_mul_i32 s{sC_}, s{sRB}, {28*64}
        s_add_u32 s{sF}, s{sF}, s{sC_}
        s_add_u32 s{sF}, s{sF}, {R1Q}
        buffer_load_dwordx4 v[112:115], v{VQ}, {srd(S_WQ)}, s{sB_} offen
        s_add_u32 s{sB_}, s{sB_}, {16*2688}
        buffer_load_dwordx4 v[116:119], v{VQ}, {srd(S_WQ)}, s{sB_} offen
        s_waitcnt vmcnt(2)
        L_h_packed:""")
        self.barrier()
        a(f"s_lshl_b32 s{sC_}, s{sHH}, 10\nv_add_u32 v20, s{sC_}, {v(vTQ)}")
        for i in range(7):
            a(f"ds_read_b64_tr_b16 v[{FR+4*i}:{FR+4*i+1}], v20 offset:{i*4096}\nds_read_b64_tr_b16 v[{FR+4*i+2}:{FR+4*i+3}], v20 offset:{i*4096+256}")
        a(f"""s_cmp_lg_u32 s{sHH}, 0
        s_cbranch_scc1 L_h_nohs
        v_lshlrev_b32 v22, 2, {v(vLANE)}
        s_mov_b32 s{sD}, 0x01010101""")
        self.poll(22, "0", srd_b=S_DBG, vdst=23, want=f"s{sD}")
        a("L_h_nohs:\ns_waitcnt lgkmcnt(0)")
        for i in range(7):
            self.mfma(ACC, ONES, FR + 4 * i, ACC if i else None)
        cs_add(CSA, (0,))
        self.stamp(4)

        def dma_wq(typ):
            a(f"""s_add_u32 s{sB_}, s{sH}, {16*typ}
            s_mul_i32 s{sB_}, s{sB_}, 86016
            s_add_u32 s{sB_}, s{sB_}, {hx(WPK)}""")
            for base, per, n in ((0, 14336, 14), (R1Q, 7168, 7)):
                L = a.label("Lhq")
                a(f"""s_mul_i32 s{sA}, s{sHH}, {per}
                s_add_u32 s{sA}, s{sA}, {base}
                s_add_u32 s{sG}, s{sA}, {per}
                {L}:
                s_mov_b32 m0, s{sA}
                s_add_u32 s{sC_}, s{sA}, s{sB_}
                buffer_load_dwordx4 {v(vL16)}, {srd(S_WS)}, s{sC_} offen sc1 lds
                s_add_u32 s{sA}, s{sA}, 1024
                s_cmp_lt_u32 s{sA}, s{sG}
                s_cbranch_scc1 {L}""")
        def dma_wo():
            L = a.label("Lho")
            a(f"""s_lshl_b32 s{sA}, s{sHH}, 10
            s_add_u32 s{sA}, s{sA}, {R2}
            s_mul_i32 s{sB_}, s{sHH}, {8*896}
            s_lshl_b32 s{sC_}, s{sCG}, 7
            s_add_u32 s{sB_}, s{sB_}, s{sC_}
            {L}:
            s_mov_b32 m0, s{sA}
            s_add_u32 s{sA}, s{sA}, 4096
            buffer_load_dwordx4 v{VWO}, {srd(S_WO)}, s{sB_} offen lds
            s_add_u32 s{sB_}, s{sB_}, {32*896}
            s_cmp_lt_u32 s{sA}, {R2+57*1024}
            s_cbranch_scc1 {L}""")
        def colsum_own(base):
            a(f"""s_mul_i32 s{sC_}, s{sHH}, 14336
            v_add_u32 v20, s{sC_}, {v(vTK)}
            v_add_u32 v21, s{sC_}, {v(vTV)}
            s_mul_i32 s{sC_}, s{sHH}, 7168
            v_add_u32 v23, s{sC_}, {v(vTQ)}""")
            for s_ in range(7):
                for t, (b, st, d) in enumerate(((23, 1024, 256), (20, 2048, 512), (21, 2048, 512))):
                    r = FR + 4 * ((3 * s_ + t) % 6)
                    a(f"ds_read_b64_tr_b16 v[{r}:{r+1}], v{b} offset:{s_*st}\nds_read_b64_tr_b16 v[{r+2}:{r+3}], v{b} offset:{s_*st+d}")
                a("s_waitcnt lgkmcnt(0)")
                for t in range(3):
                    self.mfma(ACC + 16 * t, ONES, FR + 4 * ((3 * s_ + t) % 6), ACC + 16 * t if s_ else None)
            cs_add(base, (0, 1, 2))
        def setptr(b, p):
            a(f"s_mov_b32 s{b}, s{PTR+2*p}\ns_mov_b32 s{b+1}, s{PTR+2*p+1}")

        self.barrier()
        a(f"""s_waitcnt vmcnt(0)
        buffer_store_dwordx4 v[112:115], {v(vL16)}, {srd(S_WS)}, s{sF} offen sc1
        s_bitcmp1_b32 s{sHH}, 0
        s_cbranch_scc1 L_h_stq
        buffer_store_dwordx4 v[116:119], {v(vL16)}, {srd(S_WS)}, s{sF} offen offset:1024 sc1
        buffer_store_dwordx4 v[120:123], {v(vL16)}, {srd(S_WS)}, s{sF} offen offset:2048 sc1
        s_mov_b32 exec_hi, 0
        buffer_store_dwordx4 v[124:127], {v(vL16)}, {srd(S_WS)}, s{sF} offen offset:3072 sc1
        s_branch L_h_std
        L_h_stq:
        s_mov_b32 exec_hi, 0xffff
        buffer_store_dwordx4 v[116:119], {v(vL16)}, {srd(S_WS)}, s{sF} offen offset:1024 sc1
        L_h_std:
        s_mov_b64 exec, -1""")
        dma_wo()
        a(f"""s_waitcnt vmcnt(14)
        s_lshl_b32 s{sA}, s{sH}, 4
        s_add_u32 s{sC_}, s{sA}, s{sRB}
        s_lshl_b32 s{sC_}, s{sC_}, 5
        s_add_u32 s{sC_}, s{sC_}, s{sHH}
        s_lshl_b32 s{sC_}, s{sC_}, 2
        s_add_u32 s{sC_}, s{sC_}, {hx(11*0x8000)}
        s_lshl_b32 s{sF}, s{sA}, 7
        s_add_u32 s{sF}, s{sF}, {hx(11*0x8000)}
        v_mov_b32 v22, 1
        s_mov_b64 exec, 1
        buffer_store_dword v22, off, {srd(S_WS)}, s{sC_} sc1
        s_mov_b64 exec, -1""")
        self.stamp(5)
        self.barrier()
        a("s_waitcnt vmcnt(0)")
        self.barrier()
        a(f"""v_lshrrev_b32 v22, 2, {v(vLANE)}
        v_and_b32 v23, 3, {v(vLANE)}
        v_lshlrev_b32 v22, 7, v22
        v_lshl_add_u32 v22, v23, 2, v22""")
        self.poll(22, f"s{sF}", vdst=23)
        a("s_branch L_h_A2\nL_h_loop:")
        self.barrier()
        self.barrier()
        self.barrier()
        a("s_waitcnt vmcnt(0)")
        self.barrier()
        a("L_h_A2:")
        self.stamp(6)
        dma_wq(1)
        self.stamp(7)
        a(f"""s_waitcnt vmcnt(0)
        s_cmp_lg_u32 s{sL}, 0
        s_cbranch_scc1 L_h_nocs""")
        colsum_own(CSA + 384)
        a("L_h_nocs:")
        self.stamp(8)
        self.barrier()
        self.barrier()
        setptr(S_WO, 5)
        dma_wo()
        self.stamp(10)
        self.barrier()
        self.barrier()
        self.barrier()
        a("s_waitcnt vmcnt(0)")
        self.barrier()
        self.barrier()
        a(f"""s_cmp_lg_u32 s{sL}, 0
        s_cbranch_scc1 L_fin
        s_mov_b32 s{sL}, 2""")
        dma_wq(0)
        a("s_waitcnt vmcnt(0)")
        self.barrier()
        self.barrier()
        setptr(S_WO, 2)
        dma_wo()
        a("s_branch L_h_loop")

    def build(self):
        a = self.a
        self.prologue()
        self.helper()
        self.layer_A()
        self.layer_B()
        self.wo_phase()
        self.slow_path()
        a("L_fin:")
        self.stamp(15)
        self.stamp_flush()
        a("L_end:\ns_endpgm\nL_code_end:")
        body = a.resolve()
        hdr = open("interleave_layers__linear_attn_block__softmax_full_mha__prompt.s.ref").read().split("; Override")[0]
        return hdr + f"""; @launch grid=(256,1,1) block=(512,1,1) lds={LDS_TOTAL}
.amdgcn_target "amdgcn-amd-amdhsa--gfx950"
.text
.globl {NAME}
.p2align 8
.type {NAME},@function
{NAME}:
{body}
.section .rodata,"a"
.p2align 6
.amdhsa_kernel {NAME}
  .amdhsa_next_free_vgpr 256
  .amdhsa_next_free_sgpr 102
  .amdhsa_accum_offset 256
  .amdhsa_group_segment_fixed_size 0
  .amdhsa_kernarg_size 72
  .amdhsa_user_sgpr_count 2
  .amdhsa_user_sgpr_kernarg_segment_ptr 1
  .amdhsa_system_sgpr_workgroup_id_x 1
.end_amdhsa_kernel
"""

if __name__ == "__main__":
    import argparse
    ap = argparse.ArgumentParser()
    ap.add_argument("-o", default="k.s")
    ap.add_argument("--stop", default=None)
    ap.add_argument("--prof", default=None)
    args = ap.parse_args()
    stop = None
    if args.stop:
        n, l = args.stop.split(":"); stop = (n, int(l))
    g = Gen(stop=stop, prof=args.prof)
    s = g.build()
    open(args.o, "w").write(s)
    print("wrote", args.o, "lines", s.count("\n"), "nops inserted", g.a.nops)
```

```python
import sys, struct, math
sys.path.insert(0, "dev")
from asmb import Asm

NAME = "interleave_layers__linear_attn_block__softmax_full_mha__prompt_kernel"

def f2u(x): return struct.unpack("<I", struct.pack("<f", x))[0]
def hx(x): return "0x%08x" % (x & 0xffffffff)

R1 = 0
R1Q = 57344
OX = 86016 - 49152
R2 = 86016
SCR = 144384
CSA = SCR + 16384
STW = CSA + 768
GO = STW + 1024
LDS_TOTAL = 163840
LN = 128
CST = 4 * LN
SEAM = 32 * CST
DRN = 16 * CST
LBLK = 3 * SEAM
NZERO = 24
WPK = 0x400000
OFF_X, OFF_O, OFF_KV, OFF_ST = 0x000000, 0x200000, 0x400000, 0x800000
PROF_OFF = 0x8000000

sGH, sGR, sGT, sPF, sIM = 3, 4, 5, 6, 7
S_X, S_WQ, S_WO, S_OUT, S_DBG, S_WS, S_XOUT, S_CODE = 8, 12, 16, 20, 24, 28, 32, 36
sWAVE, sRB, sH, sTP, sCG, sISWO, sL, sLB = 40, 41, 42, 43, 44, 45, 46, 47
sT, sTW, sC, sFB, sSPIN = 48, 49, 50, 51, 52
sA, sB_, sC_, sD, sF, sE = 53, 54, 55, 56, 57, 58
sMPAD = 60
sK0 = 62
PTR = 64
sSO0, sSO1 = 82, 83
sG, sHH, sWL = 85, 86, 87
sPC = 88
sST0 = 90
sPI, sLOOP, sOFF, sOFFMAX, sRETRY = 92, 93, 94, 95, 96
sROT, sXC, sLIM, sLIM2 = 97, 98, 99, 100
def srd(b): return f"s[{b}:{b+3}]"

vTID, vLANE, vL16, vTK, vTV, vWK, vWS_, vRM = 0, 1, 2, 3, 4, 5, 6, 7
vTQ, vPADV, vA, vNM, vCS0, vCS1, vT0, vT1 = 8, 9, 10, 11, 12, 13, 14, 15
vXO = vCS0
XRES = 16
XF = 32
ACK, ACV, ACQ = 144, 160, 176
WF = 192
SA, SB = 208, 224
CS16 = 240
def v(b, n=1): return f"v{b}" if n == 1 else f"v[{b}:{b+n-1}]"

LOG2E = 1.4426950408889634
QSCALE = LOG2E / math.sqrt(28.0)
SHIFT_UP = 40.0
L_MIN = 2.0 ** -60


class Cnt:
    def __init__(self, name, mx): self.name, self.q, self.mx = name, [], mx
    def issue(self, tag): self.q.append(tag)
    def n_after(self, tag):
        idx = max(i for i, t in enumerate(self.q) if t == tag)
        n = len(self.q) - 1 - idx
        self.q = self.q[idx + 1:]
        assert n <= self.mx, (self.name, n)
        return n
    def has(self, tag): return tag in self.q
    def clear(self): self.q = []


class Gen:
    def __init__(self, prof=None, opt={}):
        self.a = Asm(); self.prof = prof; self.opt = opt
        self.vm = Cnt("vmcnt", 63); self.lg = Cnt("lgkmcnt", 15)
        self.D = opt.get("D", 12)
        self.thr = opt.get("thr", 2)

    def mfma(self, d, A, B, C):
        c = "0" if C is None else v(C, 16)
        self.a(f"v_mfma_f32_32x32x16_bf16 {v(d,16)}, {v(A,4)}, {v(B,4)}, {c}")
    def wait(self, vm=None, lg=None):
        parts = []
        if vm is not None and self.vm.has(vm): parts.append(f"vmcnt({self.vm.n_after(vm)})")
        if lg is not None and self.lg.has(lg): parts.append(f"lgkmcnt({self.lg.n_after(lg)})")
        if parts: self.a("s_waitcnt " + " ".join(parts))
    def wait_all(self, vm=True, lg=True):
        p = []
        if vm: p.append("vmcnt(0)"); self.vm.clear()
        if lg: p.append("lgkmcnt(0)"); self.lg.clear()
        self.a("s_waitcnt " + " ".join(p))
    def exec_all(self): self.a("s_mov_b64 exec, -1")
    def exec_hi(self): self.a("s_mov_b32 exec_lo, 0\ns_mov_b32 exec_hi, -1")
    def exec_lo(self): self.a("s_mov_b32 exec_lo, -1\ns_mov_b32 exec_hi, 0")
    def barrier(self): self.a("s_barrier")
    def stamp(self, idx, L=None):
        if not self.prof: return
        op = "s_memrealtime" if self.prof == "rt" else "s_memtime"
        self.a(f"{op} s[{sST0}:{sST0+1}]")
        if L is None:
            self.a(f"s_lshl_b32 s{sPI}, s{sL}, 4\ns_add_u32 s{sPI}, s{sPI}, {idx}\ns_mov_b32 m0, s{sPI}")
        else:
            self.a(f"s_mov_b32 m0, {16*L+idx}")
        self.a(f"s_waitcnt lgkmcnt(0)\nv_writelane_b32 v0, s{sST0}, m0")
    def stamp_flush(self):
        if not self.prof: return
        self.a(f"""s_lshl_b32 s{sPI}, s2, 3
        s_add_u32 s{sPI}, s{sPI}, s{sWAVE}
        s_lshl_b32 s{sPI}, s{sPI}, 8
        s_add_u32 s{sPI}, s{sPI}, {hx(PROF_OFF)}
        s_mov_b64 exec, -1
        v_lshlrev_b32 {v(vT0)}, 2, {v(vLANE)}
        buffer_store_dword v0, {v(vT0)}, {srd(S_WS)}, s{sPI} offen""")

    def poll_ctr(self, soff, want, vdst, srd_b=S_WS, ld=False, four=None):
        a = self.a
        L, D = a.label("Lpc"), a.label("Lpd")
        if four is not None: a(f"v_lshlrev_b32 {v(four)}, 7, {v(vLANE)}")
        ad = ("off", "") if four is None else (v(four), "offen")
        a(f"""s_mov_b32 s{sSPIN}, 40000
        s_mov_b64 exec, {1 if four is None else 15}
        {L}:
        v_mov_b32 {v(vdst)}, 0""")
        if ld:
            a(f"buffer_load_dword {v(vdst)}, {ad[0]}, {srd(srd_b)}, {soff} {ad[1]} sc1")
        else:
            a(f"buffer_atomic_add {v(vdst)}, {ad[0]}, {srd(srd_b)}, {soff} {ad[1]} sc0 sc1")
        a(f"""s_waitcnt vmcnt(0)
        v_cmp_ne_u32 vcc, {want}, {v(vdst)}
        s_cbranch_vccz {D}
        s_sub_u32 s{sSPIN}, s{sSPIN}, 1
        s_cmp_eq_u32 s{sSPIN}, 0
        s_cbranch_scc0 {L}
        s_endpgm
        {D}:
        s_mov_b64 exec, -1""")
    def ctr_add(self, sgrp, extra, vone, fb=True):
        a = self.a
        if fb:
            a(f"s_add_u32 s{sA}, s{sFB}, s{sgrp}")
            if extra: a(f"s_add_u32 s{sA}, s{sA}, {hx(extra)}")
        else:
            a(f"s_add_u32 s{sA}, s{sgrp}, {hx(extra)}")
        a(f"""s_mov_b64 exec, 1
        buffer_atomic_add {v(vone)}, off, {srd(S_WS)}, s{sA} sc1
        s_mov_b64 exec, -1""")
        self.vm.issue("flag")
    def drained(self, sgrp, k):
        self.a(f"s_waitcnt vmcnt(0)\nv_mov_b32 {v(vT0)}, 1")
        self.vm.clear()
        self.a(f"s_add_u32 s{sB_}, s{sgrp}, s{sWL}")
        self.ctr_add(sB_, k * SEAM + DRN, vT0)
    def wait_go(self, k, dst=vT0, L=None):
        a = self.a
        Lb, D = a.label("Lgo"), a.label("Lgd")
        if L is None:
            a(f"s_mul_i32 s{sA}, s{sL}, 12\ns_add_u32 s{sA}, s{sA}, {GO+4*k}\nv_mov_b32 {v(vT1)}, s{sA}")
        else:
            a(f"v_mov_b32 {v(vT1)}, {GO+12*L+4*k}")
        a(f"""s_mov_b32 s{sSPIN}, 400000
        {Lb}:
        ds_read_b32 {v(dst)}, {v(vT1)}
        s_waitcnt lgkmcnt(0)
        v_cmp_eq_u32 vcc, 0, {v(dst)}
        s_cbranch_vccz {D}
        s_sub_u32 s{sSPIN}, s{sSPIN}, 1
        s_cmp_eq_u32 s{sSPIN}, 0
        s_cbranch_scc0 {Lb}
        s_endpgm
        {D}:""")
        self.lg.clear()
    def nan_check(self, reg, redo, want):
        a = self.a
        bad, ok = a.label("Lbad"), a.label("Lok")
        a(f"""v_cmp_u_f32 vcc, {v(reg)}, {v(reg)}
        s_cbranch_vccnz {bad}
        {ok}:""")
        self.tail.append((bad, ok, redo, want))
    def emit_tail(self):
        a = self.a
        for bad, ok, redo, want in self.tail:
            a(f"""{bad}:
            s_cmp_lg_u32 s{sRETRY}, 0
            s_cbranch_scc1 {ok}
            s_mov_b32 s{sRETRY}, 1""")
            self.poll_ctr(f"s{sPF}", want, vT0, four=vT1)
            a(f"s_branch {redo}")

    def prologue(self):
        a = self.a
        a(f"""s_cmp_ge_u32 s2, 256
        s_cbranch_scc1 L_end
        s_load_dwordx16 s[{PTR}:{PTR+15}], s[0:1], 0
        s_load_dwordx2 s[{PTR+16}:{PTR+17}], s[0:1], 64
        s_getpc_b64 s[{sPC}:{sPC+1}]
        L_pcref:
        s_sub_u32 s{S_CODE}, s{sPC}, L_pcref-{NAME}
        s_subb_u32 s{S_CODE+1}, s{sPC+1}, 0
        s_mov_b32 s{S_CODE+2}, L_code_end-{NAME}
        s_mov_b32 s{S_CODE+3}, 0x20000
        s_lshl_b32 s{sC_}, s2, 10
        s_and_b32 s{sC_}, s{sC_}, 0x6000
        v_lshlrev_b32 {v(vT1)}, 4, v0
        buffer_load_dwordx4 v[252:255], {v(vT1)}, {srd(S_CODE)}, s{sC_} offen
        v_lshrrev_b32 {v(vT0)}, 6, v0
        v_and_b32 {v(vLANE)}, 63, v0
        v_readfirstlane_b32 s{sWAVE}, {v(vT0)}
        v_lshlrev_b32 {v(vL16)}, 4, {v(vLANE)}
        s_and_b32 s{sA}, s2, 7
        s_lshr_b32 s{sB_}, s2, 3
        s_lshr_b32 s{sRB}, s{sA}, 1
        s_lshl_b32 s{sRB}, s{sRB}, 2
        s_and_b32 s{sC_}, s{sB_}, 3
        s_add_u32 s{sRB}, s{sRB}, s{sC_}
        s_and_b32 s{sH}, s{sA}, 1
        s_lshl_b32 s{sH}, s{sH}, 3
        s_lshr_b32 s{sC_}, s{sB_}, 2
        s_add_u32 s{sH}, s{sH}, s{sC_}
        s_mul_i32 s{sC_}, s{sB_}, 37
        s_lshr_b32 s{sC_}, s{sC_}, 8
        s_mul_i32 s{sD}, s{sC_}, 7
        s_sub_u32 s{sCG}, s{sB_}, s{sD}
        s_lshl_b32 s{sTP}, s{sA}, 2
        s_add_u32 s{sTP}, s{sTP}, s{sC_}
        s_cmp_lt_u32 s{sB_}, 28
        s_cselect_b32 s{sISWO}, 1, 0
        s_cselect_b32 s{sTP}, s{sTP}, 0
        s_mov_b32 s{sL}, 0
        s_mov_b32 s{sLB}, 0x1000000
        s_mov_b32 s{sFB}, 0
        s_lshl_b32 s{sIM}, s{sH}, 4
        s_add_u32 s{sIM}, s{sIM}, s{sRB}
        s_mul_i32 s{sGH}, s{sH}, {CST}
        s_mul_i32 s{sGR}, s{sRB}, {CST}
        s_lshr_b32 s{sGT}, s{sTP}, 1
        s_mul_i32 s{sGT}, s{sGT}, {CST}
        s_mov_b32 s{sMPAD}, 0xf0000000
        s_mov_b32 s{sMPAD+1}, 0xf0000000
        """)
        a(f"""v_lshrrev_b32 v16, 5, {v(vLANE)}
        v_bfe_u32 v17, {v(vLANE)}, 4, 1
        v_bfe_u32 v18, {v(vLANE)}, 2, 2
        v_and_b32 v19, 3, {v(vLANE)}
        v_lshlrev_b32 v20, 5, v17
        v_lshl_add_u32 v20, v19, 3, v20
        v_lshl_add_u32 v21, v16, 3, v18
        s_and_b32 s{sD}, s{sH}, 1
        s_lshl_b32 s{sD}, s{sD}, 3
        v_add_u32 v24, s{sD}, v20
        v_and_b32 v24, 63, v24
        v_lshl_add_u32 {v(vTQ)}, v21, 6, v24
        v_add_u32 {v(vTQ)}, {R1Q}, {v(vTQ)}
        v_lshl_add_u32 v24, v21, 7, v24
        v_lshrrev_b32 v22, 1, v18
        v_lshl_add_u32 {v(vTK)}, v22, 6, v24
        v_xor_b32 v22, 1, v22
        v_lshl_add_u32 {v(vTV)}, v22, 6, v24
        v_lshl_add_u32 v21, v16, 2, v18
        v_lshlrev_b32 v21, 7, v21
        v_add_u32 v21, v21, v20
        v_add_u32 v21, {R2}, v21
        v_lshrrev_b32 v22, 1, v18
        v_and_b32 v23, 31, {v(vLANE)}
        v_mul_u32_u24 {v(vRM)}, 896, v23
        v_lshl_add_u32 {v(vRM)}, v16, 4, {v(vRM)}
        v_cmp_eq_u32 vcc, 28, v23
        v_mov_b32 v24, 0x3f803f80
        v_cndmask_b32 {v(vPADV)}, 0, v24, vcc
        s_lshr_b32 s{sA}, s{sWAVE}, 1
        s_and_b32 s{sA}, s{sA}, 1
        v_xor_b32 v22, s{sA}, v22
        v_lshl_add_u32 {v(vWK)}, v22, 6, v21
        v_xor_b32 v22, 1, v22
        v_lshl_add_u32 {v(vWS_)}, v22, 6, v21
        s_mul_i32 s{sB_}, s{sA}, {8*28*128}
        v_add_u32 {v(vWK)}, s{sB_}, {v(vWK)}
        v_add_u32 {v(vWS_)}, s{sB_}, {v(vWS_)}
        s_lshl_b32 s{sC}, s{sCG}, 1
        s_add_u32 s{sC}, s{sC}, s{sA}
        s_and_b32 s{sA}, s{sWAVE}, 1
        s_lshl_b32 s{sTW}, s{sTP}, 1
        s_add_u32 s{sTW}, s{sTW}, s{sA}
        s_and_b32 s{sA}, s{sWAVE}, 3
        s_lshl_b32 s{sWL}, s{sA}, 7
        s_lshl_b32 s{sT}, s{sRB}, 2
        s_add_u32 s{sT}, s{sT}, s{sA}
        s_waitcnt lgkmcnt(0)
        """)
        def mk(b, p, size):
            a(f"""s_mov_b32 s{b}, s{PTR+2*p}
            s_mov_b32 s{b+1}, s{PTR+2*p+1}
            s_mov_b32 s{b+2}, {size}
            s_mov_b32 s{b+3}, 0x20000""")
        mk(S_X, 0, 1835008); mk(S_WQ, 1, 1204224); mk(S_WO, 2, 401408)
        mk(S_OUT, 6, 1835008); mk(S_DBG, 7, 256); mk(S_WS, 8, 0x10000000); mk(S_XOUT, 8, 0x10000000)
        if self.prof: a("v_mov_b32 v0, 0")
        self.stamp(0)
        a(f"""s_cmp_lt_u32 s{sWAVE}, 4
        s_cbranch_scc1 L_layerA""")

    def stats_finish(self, vS, vQ):
        a = self.a
        a(f"""v_mov_b32 {v(vT0)}, {v(vS)}
        v_mov_b32 {v(vT1)}, {v(vQ)}
        v_permlane32_swap_b32 {v(vT0)}, {v(vS)}
        v_permlane32_swap_b32 {v(vT1)}, {v(vQ)}
        v_add_f32 {v(vS)}, {v(vS)}, {v(vT0)}
        v_add_f32 {v(vQ)}, {v(vQ)}, {v(vT1)}
        v_mul_f32 {v(vNM)}, {hx(f2u(-1.0/448))}, {v(vS)}
        v_mul_f32 {v(vQ)}, {hx(f2u(1.0/448))}, {v(vQ)}
        v_fma_f32 {v(vQ)}, -{v(vNM)}, {v(vNM)}, {v(vQ)}
        v_and_b32 {v(vQ)}, 0x7fffffff, {v(vQ)}
        v_add_f32 {v(vQ)}, {hx(f2u(1e-5))}, {v(vQ)}
        v_rsq_f32 {v(vA)}, {v(vQ)}
        s_lshl_b32 s{sA}, s{sWAVE}, 8
        s_add_u32 s{sA}, s{sA}, {STW}
        v_and_b32 {v(vT0)}, 31, {v(vLANE)}
        v_lshl_add_u32 {v(vT0)}, {v(vT0)}, 2, s{sA}
        v_lshrrev_b32 {v(vT1)}, 5, {v(vLANE)}
        v_lshl_add_u32 {v(vT1)}, {v(vT1)}, 4, s{sA}
        ds_write_b32 {v(vT0)}, {v(vA)}
        ds_write_b32 {v(vT0)}, {v(vNM)} offset:128""")
        self.lg.issue("stw"); self.lg.issue("stw")
    def stats_read(self, which):
        for q in range(4):
            self.a(f"ds_read_b128 {v((SA,SB)[which]+4*q,4)}, {v(vT1)} offset:{128*which+32*q}"); self.lg.issue("st")

    def tr_pair(self, dst, s, seg, tag):
        base, off, d = ((vTQ, s * 1024, 256), (vTK, s * 2048, 512), (vTV, s * 2048, 512))[seg]
        self.a(f"ds_read_b64_tr_b16 {v(dst,2)}, {v(base)} offset:{off}"); self.lg.issue(tag)
        self.a(f"ds_read_b64_tr_b16 {v(dst+2,2)}, {v(base)} offset:{off+d}"); self.lg.issue(tag)

    def xload(self, s):
        a = self.a
        if s and s % 4 == 0: a(f"s_add_u32 s{sOFF}, s{sOFF}, 4096")
        a(f"buffer_load_dwordx4 {v(XF+4*s,4)}, {v(vL16)}, {srd(S_WS)}, s{sOFF} offen offset:{(s%4)*1024} sc1")
        self.vm.issue(("x", s))

    def kv_loop(self, typ, inserts={}):
        D = self.D
        for s in range(28):
            p = s & 1
            if s + 1 < 28:
                self.tr_pair(WF + 8 * (1 - p), s + 1, 1, ("w", s + 1)); self.tr_pair(WF + 8 * (1 - p) + 4, s + 1, 2, ("w", s + 1))
            self.wait(vm=("x", s), lg=("w", s))
            wk, wv, x = WF + 8 * p, WF + 8 * p + 4, XF + 4 * s
            if typ == "A": self.mfma(ACK, x, wk, ACK if s else None)
            else: self.mfma(ACK, wk, x, ACK if s else None)
            self.mfma(ACV, x, wv, ACV if s else None)
            if s + D < 28: self.xload(s + D)
            if s in inserts: inserts[s]()

    def q_loop(self, inserts={}):
        for s in range(3): self.tr_pair(WF + 4 * s, s, 0, ("w", s))
        for s in range(28):
            if s + 3 < 28: self.tr_pair(WF + 4 * ((s + 3) & 3), s + 3, 0, ("w", s + 3))
            self.wait(lg=("w", s))
            self.mfma(ACQ, WF + 4 * (s & 3), XF + 4 * s, ACQ if s else None)
            if s in inserts: inserts[s]()

    def load_cs_lane(self, typ):
        base = CSA + (0 if typ == "A" else 384)
        self.a(f"""v_and_b32 {v(vT0)}, 31, {v(vLANE)}
        v_lshlrev_b32 {v(vT0)}, 2, {v(vT0)}
        v_add_u32 {v(vT0)}, {base}, {v(vT0)}
        ds_read_b32 {v(vCS0)}, {v(vT0)} offset:128
        ds_read_b32 {v(vCS1)}, {v(vT0)} offset:256""")
        self.lg.issue("cs"); self.lg.issue("cs")
    def load_cs_reg(self, typ, seg):
        a = self.a
        base = CSA + (0 if typ == "A" else 384) + seg * 128
        a(f"""v_lshrrev_b32 {v(vT0)}, 5, {v(vLANE)}
        v_lshlrev_b32 {v(vT0)}, 4, {v(vT0)}
        v_add_u32 {v(vT0)}, {base}, {v(vT0)}""")
        for q in range(4):
            a(f"ds_read_b128 {v(CS16+4*q,4)}, {v(vT0)} offset:{32*q}"); self.lg.issue("cs16")

    def fix_feat(self, acc, vcs):
        pair = vcs & ~1; sel = vcs & 1
        for r in range(0, 16, 2):
            self.a(f"v_pk_fma_f32 {v(acc+r,2)}, {v(SB+r,2)}, {v(pair,2)}, {v(acc+r,2)} op_sel:[0,{sel},0] op_sel_hi:[1,{sel},1]")
    def fix_tok(self, acc):
        pair = vNM & ~1; sel = vNM & 1
        for r in range(0, 16, 2):
            self.a(f"v_pk_fma_f32 {v(acc+r,2)}, {v(CS16+r,2)}, {v(pair,2)}, {v(acc+r,2)} op_sel:[0,{sel},0] op_sel_hi:[1,{sel},1]")
    def scale_lane(self, acc, vs):
        pair = vs & ~1; sel = vs & 1
        for r in range(0, 16, 2):
            self.a(f"v_pk_mul_f32 {v(acc+r,2)}, {v(acc+r,2)}, {v(pair,2)} op_sel:[0,{sel}] op_sel_hi:[1,{sel}]")
    def phi(self, acc, tmp, dst):
        a = self.a
        for r in range(0, 16, 2):
            a(f"v_pk_mul_f32 {v(tmp+r,2)}, {v(acc+r,2)}, s[{sK0}:{sK0+1}] op_sel:[0,0] op_sel_hi:[1,0]")
        for r in range(16):
            a(f"v_exp_f32_e64 {v(tmp+r)}, {v(tmp+r)} clamp")
            a(f"v_max_f32 {v(acc+r)}, s{sK0+1}, {v(acc+r)}")
        for r in range(0, 16, 2):
            a(f"v_pk_add_f32 {v(acc+r,2)}, {v(acc+r,2)}, {v(tmp+r,2)}")
        self.pack(acc, dst)
    def pack(self, src, dst):
        for i in range(8):
            self.a(f"v_cvt_pk_bf16_f32 {v(dst+i)}, {v(src+2*i)}, {v(src+2*i+1)}")
    def sumsq(self, acc, dst):
        a = self.a
        a(f"v_pk_mul_f32 {v(vCS0,2)}, {v(acc,2)}, {v(acc,2)}")
        for r in range(2, 16, 2):
            a(f"v_pk_fma_f32 {v(vCS0,2)}, {v(acc+r,2)}, {v(acc+r,2)}, {v(vCS0,2)}")
        a(f"""v_add_f32 {v(dst)}, {v(vCS0)}, {v(vCS1)}
        v_add_f32 {v(vT1)}, {v(vCS0)}, {v(vCS1)}
        v_permlane32_swap_b32 {v(dst)}, {v(vT1)}
        v_add_f32 {v(dst)}, {v(dst)}, {v(vT1)}""")

    def finalize_o(self, D, P, eps):
        a = self.a
        a(f"""v_mov_b32 {v(vT0)}, {v(D+12)}
        v_mov_b32 {v(vT1)}, {v(D+12)}
        s_lshl_b32 s{sB_}, s{sT}, 4
        s_add_u32 s{sB_}, s{sB_}, s{sH}
        v_permlane32_swap_b32 {v(vT0)}, {v(vT1)}""")
        if eps: a(f"v_add_f32 {v(vT1)}, {hx(f2u(1e-6))}, {v(vT1)}")
        a(f"""v_rcp_f32 {v(vT0)}, {v(vT1)}
        s_lshl_b32 s{sB_}, s{sB_}, 11
        s_add_u32 s{sB_}, s{sB_}, s{sLB}
        s_add_u32 s{sB_}, s{sB_}, {hx(OFF_O)}""")
        pr = vT0
        for r in range(0, 8, 2):
            a(f"v_pk_mul_f32 {v(D+r,2)}, {v(D+r,2)}, {v(pr,2)} op_sel:[0,0] op_sel_hi:[1,0]")
        for i in range(4): a(f"v_cvt_pk_bf16_f32 {v(P+i)}, {v(D+2*i)}, {v(D+2*i+1)}")
        a(f"buffer_store_dwordx4 {v(P,4)}, {v(vL16)}, {srd(S_WS)}, s{sB_} offen sc1")
        for r in range(8, 16, 2):
            a(f"v_pk_mul_f32 {v(D+r,2)}, {v(D+r,2)}, {v(pr,2)} op_sel:[0,0] op_sel_hi:[1,0]")
        a(f"v_mov_b32 {v(P+6)}, 0\nv_mov_b32 {v(P+7)}, 0")
        for i in range(4, 6): a(f"v_cvt_pk_bf16_f32 {v(P+i)}, {v(D+2*i)}, {v(D+2*i+1)}")
        self.exec_lo()
        for i in range(6, 8): a(f"v_cvt_pk_bf16_f32 {v(P+i)}, {v(D+2*i)}, {v(D+2*i+1)}")
        self.exec_all()
        a(f"buffer_store_dwordx4 {v(P+4,4)}, {v(vL16)}, {srd(S_WS)}, s{sB_} offen offset:1024 sc1")
        self.vm.issue("o"); self.vm.issue("o")

    def prefill(self, L, R, parts="ox", thr=False, track=False):
        a = self.a
        LB = (L + 1) << 24
        def st(so, off):
            a(f"buffer_store_dwordx4 {v(R,4)}, {v(vL16)}, {srd(S_WS)}, s{so} offen offset:{off} sc1")
            if thr: a(f"s_waitcnt vmcnt({self.thr})")
            if track: self.vm.issue("pf")
        if "o" in parts:
            a(f"""s_lshl_b32 s{sC_}, s{sT}, 4
            s_add_u32 s{sC_}, s{sC_}, s{sH}
            s_lshl_b32 s{sC_}, s{sC_}, 11
            s_add_u32 s{sC_}, s{sC_}, {hx(LB+OFF_O)}""")
            st(sC_, 0); st(sC_, 1024)
            if L % 2 == 0:
                a(f"""s_lshl_b32 s{sC_}, s{sIM}, 11
                s_and_b32 s{sSO0}, s{sWAVE}, 1
                s_lshl_b32 s{sSO0}, s{sSO0}, 10
                s_add_u32 s{sC_}, s{sC_}, s{sSO0}
                s_add_u32 s{sC_}, s{sC_}, {hx(LB+OFF_KV)}""")
                st(sC_, 0)
            else:
                a(f"""s_lshl_b32 s{sC_}, s{sH}, 6
                s_add_u32 s{sC_}, s{sC_}, s{sT}
                s_lshl_b32 s{sC_}, s{sC_}, 12
                s_add_u32 s{sC_}, s{sC_}, {hx(LB+OFF_KV)}""")
                for i in range(4): st(sC_, 1024 * i)
        if "x" in parts and L < 3:
            lab = a.label("Lpf")
            a(f"""s_cmp_eq_u32 s{sISWO}, 0
            s_cbranch_scc1 {lab}
            s_mul_i32 s{sC_}, s{sTW}, 14
            s_add_u32 s{sC_}, s{sC_}, s{sC}
            s_lshl_b32 s{sSO0}, s{sC_}, 11
            s_add_u32 s{sSO0}, s{sSO0}, {hx(LB+OFF_X)}
            s_lshl_b32 s{sC_}, s{sC_}, 8
            s_add_u32 s{sC_}, s{sC_}, {hx(LB+OFF_ST)}""")
            st(sSO0, 0); st(sSO0, 1024)
            a("s_mov_b64 exec, 0xffff")
            st(sC_, 0)
            a(f"s_mov_b64 exec, -1\n{lab}:")

    def qkv_front(self, redo):
        a = self.a
        D = self.D
        a(f"""s_add_u32 s{sPF}, s{sFB}, s{sGR}
        s_add_u32 s{sPF}, s{sPF}, {hx(2*SEAM + DRN - LBLK)}
        s_mov_b32 s{sRETRY}, 0""")
        self.wait_go(-1)
        self.stamp(1)
        a(f"""{redo}:
        s_mul_i32 s{sOFF}, s{sT}, 28672
        s_add_u32 s{sOFF}, s{sOFF}, s{sLB}
        s_sub_u32 s{sOFF}, s{sOFF}, 0x1000000""")
        self.xload(0); self.xload(1)
        a(f"""v_lshrrev_b32 {v(vCS0)}, 5, {v(vLANE)}
        v_mul_u32_u24 {v(vCS0)}, {7*256}, {v(vCS0)}
        v_and_b32 {v(vCS1)}, 31, {v(vLANE)}
        v_lshl_add_u32 {v(vCS0)}, {v(vCS1)}, 3, {v(vCS0)}
        s_mul_i32 s{sB_}, s{sT}, {14*256}
        s_add_u32 s{sB_}, s{sB_}, s{sLB}
        s_add_u32 s{sB_}, s{sB_}, {hx(OFF_ST - 0x1000000)}""")
        for i in range(7):
            a(f"buffer_load_dwordx2 {v(ACQ+2*i,2)}, {v(vCS0)}, {srd(S_WS)}, s{sB_} offen offset:{256*i} sc1"); self.vm.issue("st")
        for s in range(2, D): self.xload(s)
        self.tr_pair(WF, 0, 1, ("w", 0)); self.tr_pair(WF + 4, 0, 2, ("w", 0))
        def st0():
            for i in range(1, 7):
                a(f"v_pk_add_f32 {v(ACQ,2)}, {v(ACQ,2)}, {v(ACQ+2*i,2)}")
        return {2: st0, 3: lambda: self.stats_finish(ACQ, ACQ + 1), 5: lambda: self.stats_read(0), 7: lambda: self.stats_read(1)}

    def first_qkv(self):
        a = self.a
        a(f"""s_mov_b32 s{sRETRY}, 1
        s_mov_b32 s{sPF}, 0
        s_mul_i32 s{sOFF}, s{sT}, 28672
        v_lshrrev_b32 v22, 3, {v(vLANE)}
        v_and_b32 v23, 7, {v(vLANE)}
        v_lshrrev_b32 v24, 4, {v(vLANE)}
        v_xor_b32 v23, v23, v24
        v_mul_u32_u24 v22, 896, v22
        v_lshl_add_u32 {v(SB)}, v23, 4, v22
        v_xor_b32 v23, 4, v23
        v_lshl_add_u32 {v(SB+1)}, v23, 4, v22
        s_lshl_b32 s{sE}, s{sWAVE}, 14
        s_add_u32 s{sE}, s{sE}, {R2}
        s_lshl_b32 s{sXC}, s{sCG}, 7
        s_add_u32 s{sXC}, s{sXC}, s{sOFF}
        s_add_u32 s{sLIM}, s{sOFF}, 896""")
        def xdma(c):
            for i in range(4):
                a(f"""s_add_u32 m0, s{sE}, {(c&3)*4096+i*1024}
                s_add_u32 s{sA}, s{sXC}, {i*8*896}
                buffer_load_dwordx4 {v(SB+(i&1))}, {srd(S_X)}, s{sA} offen lds""")
                self.vm.issue(("xc", c))
            a(f"""s_add_u32 s{sXC}, s{sXC}, 128
            s_cmp_eq_u32 s{sXC}, s{sLIM}
            s_cselect_b32 s{sXC}, s{sOFF}, s{sXC}""")
        NX0 = self.opt.get("nx0", 4)
        for c in range(NX0): xdma(c)
        a(f"""s_mov_b32 s{sB_}, 0x3f803f80
        v_and_b32 v22, 31, {v(vLANE)}
        v_lshrrev_b32 v23, 5, {v(vLANE)}
        v_bfe_u32 v24, {v(vLANE)}, 1, 3
        v_xor_b32 v23, v23, v24
        v_lshlrev_b32 v23, 4, v23
        v_lshl_add_u32 v22, v22, 7, v23""")
        for i in range(4):
            a(f"v_xor_b32 {v(SB+2+i)}, {32*i}, v22\nv_add_u32 {v(SB+2+i)}, s{sE}, {v(SB+2+i)}")
        for i in range(4): a(f"v_mov_b32 {v(ACQ+i)}, 0\nv_mov_b32 {v(ACQ+4+i)}, -1")
        self.stamp(12)
        def xstage(c):
            self.wait(vm=("xc", c))
            for i in range(4):
                a(f"ds_read_b128 {v(XF+16*c+4*i,4)}, {v(SB+2+i)} offset:{(c&3)*4096}"); self.lg.issue(("xr", i))
            for i in range(4):
                self.wait(lg=("xr", i))
                if i == 3 and c + NX0 < 7: xdma(c + NX0)
                for j in range(4):
                    r = XF + 16 * c + 4 * i + j
                    a(f"v_dot2_f32_bf16 {v(ACQ+(j&1)*2)}, {v(r)}, s{sB_}, {v(ACQ+(j&1)*2)}")
                    a(f"v_dot2_f32_bf16 {v(ACQ+(j&1)*2+1)}, {v(r)}, {v(r)}, {v(ACQ+(j&1)*2+1)}")
            if c == 7 - NX0:
                a(f"""s_mul_i32 s{sA}, s{sTW}, 28672
                s_lshl_b32 s{sC_}, s{sC}, 6
                s_add_u32 s{sA}, s{sA}, s{sC_}
                buffer_load_dwordx4 {v(ACQ+8,4)}, {v(vRM)}, {srd(S_X)}, s{sA} offen
                buffer_load_dwordx4 {v(ACQ+12,4)}, {v(vRM)}, {srd(S_X)}, s{sA} offen offset:32""")
                self.vm.issue("res"); self.vm.issue("res")
                self.prefill(0, ACQ + 4, parts="o", track=True)
            if c == 6:
                a(f"v_pk_add_f32 {v(ACQ,2)}, {v(ACQ,2)}, {v(ACQ+2,2)}")
                self.stats_finish(ACQ, ACQ + 1)
                self.stats_read(0); self.stats_read(1)
                self.wait_all(vm=False)
        def wstage(c):
            self.barrier()
            if c == 0: self.stamp(2)
            WB = (WF, WF + 8, CS16, CS16 + 8)
            for i in range(3):
                self.tr_pair(WB[i], 4 * c + i, 1, ("w", i)); self.tr_pair(WB[i] + 4, 4 * c + i, 2, ("w", i))
            for i in range(4):
                s = 4 * c + i
                self.wait(lg=("w", i))
                if i == 0:
                    self.tr_pair(WB[3], 4 * c + 3, 1, ("w", 3)); self.tr_pair(WB[3] + 4, 4 * c + 3, 2, ("w", 3))
                self.mfma(ACK, XF + 4 * s, WB[i], ACK if s else None)
                self.mfma(ACV, XF + 4 * s, WB[i] + 4, ACV if s else None)
            if c == 5:
                R = ACQ + 8
                self.wait(vm="res")
                for f in range(2):
                    a(f"v_permlane32_swap_b32 {v(R+4*f)}, {v(R+4*f+2)}\nv_permlane32_swap_b32 {v(R+4*f+1)}, {v(R+4*f+3)}")
                for i in range(8):
                    a(f"v_lshlrev_b32 {v(XRES+2*i)}, 16, {v(R+i)}\nv_and_b32 {v(XRES+2*i+1)}, 0xffff0000, {v(R+i)}")
        AH = self.opt.get("ah", 3)
        for c in range(AH): xstage(c)
        for c in range(7):
            if c + AH < 7: xstage(c + AH)
            wstage(c)

    def layer_A(self):
        a = self.a
        a("L_layerA:")
        a(f"""s_mov_b32 s{sK0}, {hx(f2u(LOG2E))}
        s_mov_b32 s{sK0+1}, {hx(f2u(1e-6))}
        s_cmp_eq_u32 s{sL}, 0
        s_cbranch_scc0 L_A_later""")
        self.first_qkv()
        self.stamp(11)
        self.barrier()
        self.load_cs_lane("A")
        self.wait(lg="cs")
        a("s_branch L_A_epi\nL_A_later:")
        self.vm.clear(); self.lg.clear()
        ins = self.qkv_front("L_A_redo")
        ins[9] = lambda: self.load_cs_lane("A")
        self.kv_loop("A", inserts=ins)
        a("L_A_epi:")
        self.vm.clear(); self.lg.clear()
        self.stamp(3)
        self.fix_feat(ACK, vCS0)
        self.fix_feat(ACV, vCS1)
        for r in range(0, 16, 2):
            a(f"v_pk_fma_f32 {v(ACK+r,2)}, {v(ACK+r,2)}, {v(SA+r,2)}, s[{sK0}:{sK0+1}] op_sel:[0,0,1] op_sel_hi:[1,1,1]")
        for r in range(0, 16, 2):
            a(f"v_pk_mul_f32 {v(ACV+r,2)}, {v(ACV+r,2)}, {v(SA+r,2)}")
        self.pack(ACV, WF + 8)
        for i in range(8):
            a(f"v_cndmask_b32 {v(WF+8+i)}, {v(WF+8+i)}, {v(vPADV)}, s[{sMPAD}:{sMPAD+1}]")
        self.phi(ACK, CS16, WF)
        self.mfma(ACK, WF, WF + 8, None)
        self.mfma(ACK, WF + 4, WF + 12, ACK)
        a(f"""s_lshl_b32 s{sA}, s{sWAVE}, 12
        s_add_u32 s{sA}, s{sA}, {SCR}
        v_add_u32 {v(vCS0)}, s{sA}, {v(vL16)}
        s_lshl_b32 s{sA}, s{sWAVE}, 11
        s_add_u32 s{sA}, s{sA}, {SCR}
        v_add_u32 {v(vCS1)}, s{sA}, {v(vL16)}
        s_lshl_b32 s{sC_}, s{sIM}, 11
        s_lshl_b32 s{sA}, s{sWAVE}, 10
        s_add_u32 s{sC_}, s{sC_}, s{sA}
        s_add_u32 s{sC_}, s{sC_}, s{sLB}
        s_add_u32 s{sC_}, s{sC_}, {hx(OFF_KV)}""")
        self.nan_check(ACK, "L_A_redo", 14)
        for q in range(4):
            a(f"ds_write_b128 {v(vCS0)}, {v(ACK+4*q,4)} offset:{1024*q}")
        self.stamp(13)
        self.wait_all()
        self.stamp(14)
        self.barrier()
        self.stamp(7)
        a(f"""s_cmp_ge_u32 s{sWAVE}, 2
        s_cbranch_scc1 L_A_q""")
        for w in range(4):
            a(f"ds_read_b128 {v(ACK+8*w,4)}, {v(vCS1)} offset:{4096*w}\nds_read_b128 {v(ACK+8*w+4,4)}, {v(vCS1)} offset:{4096*w+1024}")
        for w in range(1, 4):
            a(f"s_waitcnt lgkmcnt({6-2*w})")
            for r in range(0, 8, 2):
                a(f"v_pk_add_f32 {v(ACK+r,2)}, {v(ACK+r,2)}, {v(ACK+8*w+r,2)}")
        for i in range(4):
            a(f"v_cvt_pk_bf16_f32 {v(ACK+8+i)}, {v(ACK+2*i)}, {v(ACK+2*i+1)}")
        a(f"""v_mov_b32 {v(vT0)}, 1
        buffer_store_dwordx4 {v(ACK+8,4)}, {v(vL16)}, {srd(S_WS)}, s{sC_} offen sc1""")
        self.ctr_add(sGH, 0, vT0)
        a("L_A_q:")
        self.vm.clear(); self.lg.clear()
        self.stamp(4)
        ID = ACV
        def ident(i):
            d0 = 16 * (i >> 2) + 8 * ((i & 3) >> 1) + 2 * (i & 1)
            a(f"""v_cmp_eq_u32 vcc, {d0}, {v(vCS1)}
            v_cmp_eq_u32 s[{sE}:{sE+1}], {d0+1}, {v(vCS1)}
            v_cndmask_b32 {v(ID+i)}, 0, {v(ID+8)}, vcc
            v_cndmask_b32 {v(ID+i)}, {v(ID+i)}, {v(ID+9)}, s[{sE}:{sE+1}]""")
        def ident0():
            a(f"""v_lshrrev_b32 {v(vCS0)}, 5, {v(vLANE)}
            v_and_b32 {v(vCS1)}, 31, {v(vLANE)}
            v_lshlrev_b32 {v(vCS0)}, 2, {v(vCS0)}
            v_sub_u32 {v(vCS1)}, {v(vCS1)}, {v(vCS0)}
            v_mov_b32 {v(ID+8)}, 0x3f80
            v_mov_b32 {v(ID+9)}, 0x3f800000""")
        ins = {1: ident0, 24: lambda: self.load_cs_reg("A", 0)}
        for i in range(8): ins[3 + 2 * i] = (lambda i=i: ident(i))
        self.q_loop(ins)
        self.drained(sGH, 0)
        a(f"""s_lshl_b32 s{sOFF}, s{sH}, 2
        s_add_u32 s{sOFF}, s{sOFF}, s{sWAVE}
        s_lshl_b32 s{sOFF}, s{sOFF}, 13
        s_add_u32 s{sOFF}, s{sOFF}, s{sLB}
        s_add_u32 s{sOFF}, s{sOFF}, {hx(OFF_KV)}
        s_add_u32 s{sOFFMAX}, s{sOFF}, 4096
        s_add_u32 s{sPF}, s{sFB}, s{sGH}
        s_add_u32 s{sPF}, s{sPF}, {DRN}
        s_mov_b32 s{sRETRY}, 0""")
        self.wait_all(vm=False)
        self.fix_tok(ACQ)
        pair = vA & ~1; sel = vA & 1
        for r in range(0, 16, 2):
            a(f"v_pk_fma_f32 {v(ACQ+r,2)}, {v(ACQ+r,2)}, {v(pair,2)}, s[{sK0}:{sK0+1}] op_sel:[0,{sel},1] op_sel_hi:[1,{sel},1]")
        PQ = WF
        self.stamp(5)
        self.barrier()
        self.stamp(6)
        a("L_A_mredo:")
        for i in range(8):
            so = sOFF if i < 4 else sOFFMAX
            a(f"buffer_load_dwordx4 {v(XF+4*i,4)}, {v(vL16)}, {srd(S_WS)}, s{so} offen offset:{(i&3)*1024} sc1"); self.vm.issue(("p", i))
        a(f"""s_cmp_lg_u32 s{sRETRY}, 0
        s_cbranch_scc1 L_A_nophi""")
        self.phi(ACQ, CS16, PQ)
        self.exec_hi()
        a(f"v_mov_b32 {v(PQ+6)}, 0\nv_mov_b32 {v(PQ+7)}, 0")
        self.exec_all()
        a(f"""L_A_nophi:
        s_lshl_b32 s{sA}, s{sWAVE}, 11
        s_add_u32 s{sA}, s{sA}, {SCR}
        v_add_u32 {v(vCS0)}, s{sA}, {v(vL16)}
        v_add_u32 {v(vCS1)}, {SCR}, {v(vL16)}""")
        for i in range(8):
            self.wait(vm=("p", i))
            self.mfma(ACK, ID + 4 * (i & 1), XF + 4 * i, ACK if i else None)
        self.nan_check(ACK, "L_A_mredo", 16)
        self.pack(ACK, XF + 64)
        a(f"ds_write_b128 {v(vCS0)}, {v(XF+64,4)}\nds_write_b128 {v(vCS0)}, {v(XF+68,4)} offset:1024")
        self.wait_all(vm=False)
        self.barrier()
        for i in range(8):
            a(f"ds_read_b128 {v(XF+4*i,4)}, {v(vCS1)} offset:{1024*i}")
        for i in range(8):
            a(f"s_waitcnt lgkmcnt({7-i})")
            acc = ACQ if i & 1 else ACK
            self.mfma(ACQ, XF + 4 * i, PQ + 4 * (i & 1), ACQ if i else None)
        self.finalize_o(ACQ, ACK, True)
        self.barrier()
        a("s_branch L_wo")

    def layer_B(self):
        a = self.a
        Q = 32; O = 64
        a("L_layerB:")
        self.vm.clear(); self.lg.clear()
        ins = self.qkv_front("L_B_redo")
        ins[9] = lambda: self.load_cs_lane("B")
        ins[11] = lambda: self.load_cs_reg("B", 1)
        def padf():
            a(f"v_and_b32 {v(vCS0)}, 0xffff0000, {v(vPADV)}")
        ins[14] = padf
        self.kv_loop("B", inserts=ins)
        a(f"""s_cmp_lg_u32 s{sL}, 1
        s_cbranch_scc1 L_B_cs
        s_cmp_lg_u32 s{sRETRY}, 0
        s_cbranch_scc1 L_B_cs""")
        self.barrier()
        self.load_cs_lane("B"); self.load_cs_reg("B", 1)
        self.wait_all(vm=False)
        padf()
        a("L_B_cs:")
        self.stamp(3)
        a(f"""s_lshl_b32 s{sC_}, s{sH}, 6
        s_add_u32 s{sC_}, s{sC_}, s{sT}
        s_lshl_b32 s{sC_}, s{sC_}, 12
        s_add_u32 s{sC_}, s{sC_}, s{sLB}
        s_add_u32 s{sC_}, s{sC_}, {hx(OFF_KV)}""")
        self.fix_tok(ACK)
        self.scale_lane(ACK, vA)
        self.nan_check(ACK, "L_B_redo", 14)
        self.pack(ACK, WF)
        self.exec_hi()
        a(f"v_mov_b32 {v(WF+6)}, 0x3f803f80\nv_mov_b32 {v(WF+7)}, 0x3f80")
        self.exec_all()
        for i in range(2):
            a(f"buffer_store_dwordx4 {v(WF+4*i,4)}, {v(vL16)}, {srd(S_WS)}, s{sC_} offen offset:{1024*i} sc1")
        self.fix_feat(ACV, vCS1)
        for r in range(0, 16, 2):
            a(f"v_pk_fma_f32 {v(ACV+r,2)}, {v(ACV+r,2)}, {v(SA+r,2)}, {v(vCS0,2)} op_sel:[0,0,0] op_sel_hi:[1,1,0]")
        self.pack(ACV, WF + 8)
        for i in range(2, 4):
            a(f"buffer_store_dwordx4 {v(WF+4*i,4)}, {v(vL16)}, {srd(S_WS)}, s{sC_} offen offset:{1024*i} sc1")
        self.sumsq(ACK, vT0)
        for sh in (1, 2, 4, 8):
            a(f"v_max_f32_dpp {v(vT0)}, {v(vT0)}, {v(vT0)} row_ror:{sh} row_mask:0xf bank_mask:0xf")
        a(f"""v_readlane_b32 s{sC_}, {v(vT0)}, 16
        s_add_u32 s{sA}, s{sFB}, s{sGH}
        s_add_u32 s{sA}, s{sA}, s{sWL}
        s_lshl_b32 s{sB_}, s{sRB}, 2
        s_add_u32 s{sA}, s{sA}, s{sB_}
        v_max3_u32 {v(vT0)}, s{sC_}, {v(vT0)}, 1
        s_mov_b64 exec, 1
        buffer_atomic_add {v(vT0)}, off, {srd(S_WS)}, s{sA} sc1
        s_mov_b64 exec, -1""")
        self.stamp(4)
        self.load_cs_reg("B", 0)
        self.q_loop()
        self.drained(sGH, 0)
        self.fix_tok(ACQ)
        a(f"v_mul_f32 {v(vA)}, {hx(f2u(QSCALE))}, {v(vA)}")
        self.scale_lane(ACQ, vA)
        self.pack(ACQ, WF)
        self.sumsq(ACQ, vT0)
        a(f"v_sqrt_f32 {v(vT0)}, {v(vT0)}")
        self.exec_hi()
        a(f"v_mov_b32 {v(WF+6)}, {v(vT0)}")
        self.exec_all()
        a(f"""s_lshl_b32 s{sA}, s{sWAVE}, 11
        s_add_u32 s{sA}, s{sA}, {SCR}
        v_add_u32 {v(vT0)}, s{sA}, {v(vL16)}
        ds_write_b128 {v(vT0)}, {v(WF,4)}
        ds_write_b128 {v(vT0)}, {v(WF+4,4)} offset:1024
        s_add_u32 s{sPF}, s{sFB}, s{sGH}
        s_add_u32 s{sPF}, s{sPF}, {DRN}""")
        self.attention()

    def attention(self):
        a = self.a
        Q = 32; O = 64; S = 128; P = 160; KV = 168
        for i in range(64): a(f"v_mov_b32 {v(O+i)}, 0")
        for i in range(4): a(f"v_mov_b32 {v(P+4+i)}, 0\nv_mov_b32 {v(KV+48+12+i)}, 0")
        for i in range(4):
            a(f"""s_add_u32 s{sA}, s{sWAVE}, {i}
            s_and_b32 s{sA}, s{sA}, 3
            s_lshl_b32 s{sA}, s{sA}, 11
            s_add_u32 s{sA}, s{sA}, {SCR}
            v_add_u32 {v(S+i)}, s{sA}, {v(vL16)}""")
        a(f"""s_lshl_b32 s{sOFF}, s{sH}, 2
        s_add_u32 s{sOFF}, s{sOFF}, s{sWAVE}
        s_lshl_b32 s{sOFF}, s{sOFF}, 16
        s_add_u32 s{sOFF}, s{sOFF}, s{sLB}
        s_add_u32 s{sOFF}, s{sOFF}, {hx(OFF_KV)}
        s_add_u32 s{sOFFMAX}, s{sOFF}, {15*4096}
        s_mul_i32 s{sA}, s{sL}, 12
        s_add_u32 s{sA}, s{sA}, {GO}
        v_mov_b32 {v(vT1)}, s{sA}
        s_waitcnt lgkmcnt(0)""")
        self.stamp(5)
        self.barrier()
        self.stamp(6)
        def kvload(slot, j):
            a(f"buffer_load_dwordx4 {v(KV+16*slot+4*j,4)}, {v(vL16)}, {srd(S_WS)}, s{sOFF} offen offset:{1024*j} sc1")
        def adv():
            a(f"s_add_u32 s{sOFF}, s{sOFF}, 4096\ns_min_u32 s{sOFF}, s{sOFF}, s{sOFFMAX}")
        for slot in range(3):
            for j in range(4): kvload(slot, j)
            adv()
            if slot == 0:
                a(f"ds_read_b32 {v(vT0)}, {v(vT1)}")
                for i in range(4):
                    a(f"ds_read_b128 {v(Q+8*i,4)}, {v(S+i)}\nds_read_b128 {v(Q+8*i+4,4)}, {v(S+i)} offset:1024")
        a(f"""s_waitcnt lgkmcnt(0)
        v_sqrt_f32 {v(vT0)}, {v(vT0)}
        v_mov_b32 {v(vT1)}, {hx(f2u(SHIFT_UP))}""")
        self.exec_hi()
        for i in range(4):
            a(f"v_fma_f32 {v(Q+8*i+6)}, -{v(Q+8*i+6)}, {v(vT0)}, {v(vT1)}")
            a(f"v_cvt_pk_bf16_f32 {v(Q+8*i+6)}, {v(Q+8*i+6)}, 0")
        self.exec_all()
        a("s_waitcnt vmcnt(10)")
        self.mfma(S, KV, Q, None)
        self.mfma(S, KV + 4, Q + 4, S)
        a(f"s_mov_b32 s{sLOOP}, 4\ns_mov_b32 s{sRETRY}, 0\ns_waitcnt vmcnt(8)\ns_nop 7\nL_att:")
        for n in range(16):
            kt, i = n >> 2, n & 3
            pk, pi = ((n - 1) & 15) >> 2, (n - 1) & 3
            nk, ni = ((n + 1) & 15) >> 2, (n + 1) & 3
            Sc, Sn = S + 16 * (n & 1), S + 16 * ((n + 1) & 1)
            ex = lambda r: a(f"v_exp_f32 {v(Sc+r)}, {v(Sc+r)}")
            cv = lambda j: a(f"v_cvt_pk_bf16_f32 {v(P+j)}, {v(Sc+2*j)}, {v(Sc+2*j+1)}")
            ex(0); ex(1)
            self.mfma(O + 16 * pi, KV + 16 * pk + 12, P + 4, O + 16 * pi)
            for r in range(2, 6): ex(r)
            if i == 3: a("s_waitcnt vmcnt(7)")
            self.mfma(Sn, KV + 16 * nk, Q + 8 * ni, None)
            ex(6); ex(7); cv(0); cv(1); cv(2)
            self.mfma(Sn, KV + 16 * nk + 4, Q + 8 * ni + 4, Sn)
            cv(3)
            for r in range(8, 12): ex(r)
            self.mfma(O + 16 * i, KV + 16 * kt + 8, P, O + 16 * i)
            kvload((kt + 3) & 3, i)
            if i == 3: adv()
            for r in range(12, 16): ex(r)
            for j in range(4, 8): cv(j)
        a(f"""s_sub_u32 s{sLOOP}, s{sLOOP}, 1
        s_cmp_lg_u32 s{sLOOP}, 0
        s_cbranch_scc1 L_att""")
        self.mfma(O + 48, KV + 48 + 12, P + 4, O + 48)
        self.stamp(7)
        for i in range(1, 4):
            a(f"""s_add_u32 s{sA}, s{sWAVE}, {i}
            s_and_b32 s{sA}, s{sA}, 3
            s_mul_i32 s{sA}, s{sA}, 12288
            v_add_u32 {v(vT0)}, s{sA}, {v(vL16)}""")
            for q in range(4):
                a(f"ds_write_b128 {v(vT0)}, {v(O+16*i+4*q,4)} offset:{OX+4096*(i-1)+1024*q}")
        a(f"""s_mul_i32 s{sA}, s{sWAVE}, 12288
        v_add_u32 {v(vT0)}, s{sA}, {v(vL16)}
        s_waitcnt lgkmcnt(0)""")
        self.barrier()
        for i in range(3):
            for q in range(4):
                a(f"ds_read_b128 {v(O+16+16*i+4*q,4)}, {v(vT0)} offset:{OX+4096*i+1024*q}")
        for i in range(3):
            a(f"s_waitcnt lgkmcnt({8-4*i})")
            for r in range(0, 16, 2):
                a(f"v_pk_add_f32 {v(O+r,2)}, {v(O+r,2)}, {v(O+16+16*i+r,2)}")
        a("L_att_fin:")
        self.finalize_o(O, P, False)
        a(f"v_pk_add_f32 {v(vCS0,2)}, {v(O,2)}, {v(O+2,2)}")
        for r in range(4, 16, 2):
            a(f"v_pk_add_f32 {v(vCS0,2)}, {v(vCS0,2)}, {v(O+r,2)}")
        a(f"""v_add_f32 {v(vCS0)}, {v(vCS0)}, {v(vCS1)}
        v_add_f32 {v(vT0)}, {v(vT1)}, {v(vCS0)}
        s_movk_i32 s{sB_}, 0x207
        v_cmp_class_f32_e64 s[{sK0}:{sK0+1}], {v(vT0)}, s{sB_}
        v_cmp_nle_f32 vcc, {hx(f2u(L_MIN))}, {v(vT1)}
        s_or_b64 vcc, vcc, s[{sK0}:{sK0+1}]
        s_cmp_lg_u32 s{sRETRY}, 0
        s_cbranch_scc1 L_att_ok2
        s_cbranch_vccnz L_slow
        L_att_ok:""")
        self.barrier()

    def slow_path(self):
        a = self.a
        Q = 32; O = 64; S = 128; P = 160; KV = 168; M = 232
        a("L_slow:")
        self.poll_ctr(f"s{sPF}", 16, vT0, four=vT1)
        a(f"""s_mov_b32 s{sRETRY}, 1
        s_lshl_b32 s{sOFFMAX}, s{sH}, 18
        s_add_u32 s{sOFFMAX}, s{sOFFMAX}, s{sLB}
        s_add_u32 s{sOFFMAX}, s{sOFFMAX}, {hx(OFF_KV)}
        s_mov_b32 s{sOFF}, s{sOFFMAX}
        v_mov_b32 {v(M)}, 0xff800000""")
        self.exec_hi()
        a(f"v_mov_b32 {v(Q+6)}, 0\nv_mov_b32 {v(Q+7)}, 0")
        self.exec_all()
        a(f"""s_mov_b32 s{sLOOP}, 64
        L_slow1:
        buffer_load_dwordx4 {v(KV,4)}, {v(vL16)}, {srd(S_WS)}, s{sOFF} offen sc1
        buffer_load_dwordx4 {v(KV+4,4)}, {v(vL16)}, {srd(S_WS)}, s{sOFF} offen offset:1024 sc1
        s_add_u32 s{sOFF}, s{sOFF}, 4096
        s_waitcnt vmcnt(0)""")
        self.mfma(S, KV, Q, None); self.mfma(S, KV + 4, Q + 4, S)
        for r in range(0, 16, 2):
            a(f"v_max3_f32 {v(M)}, {v(S+r)}, {v(S+r+1)}, {v(M)}")
        a(f"""s_sub_u32 s{sLOOP}, s{sLOOP}, 1
        s_cmp_lg_u32 s{sLOOP}, 0
        s_cbranch_scc1 L_slow1
        v_mov_b32 {v(M+1)}, {v(M)}
        v_permlane32_swap_b32 {v(M)}, {v(M+1)}
        v_max_f32 {v(M)}, {v(M)}, {v(M+1)}
        v_sub_f32 {v(M)}, 0, {v(M)}
        v_and_b32 {v(M+1)}, 0xffff0000, {v(M)}
        v_sub_f32 {v(M)}, {v(M)}, {v(M+1)}
        v_and_b32 {v(M+2)}, 0xffff0000, {v(M)}
        v_sub_f32 {v(M)}, {v(M)}, {v(M+2)}
        v_lshrrev_b32 {v(M+1)}, 16, {v(M+1)}""")
        self.exec_hi()
        a(f"v_or_b32 {v(Q+6)}, {v(M+1)}, {v(M+2)}\nv_lshrrev_b32 {v(Q+7)}, 16, {v(M)}")
        self.exec_all()
        for i in range(16): a(f"v_mov_b32 {v(O+i)}, 0")
        a(f"""s_mov_b32 s{sOFF}, s{sOFFMAX}
        s_mov_b32 s{sLOOP}, 64
        L_slow2:""")
        for j in range(4):
            a(f"buffer_load_dwordx4 {v(KV+4*j,4)}, {v(vL16)}, {srd(S_WS)}, s{sOFF} offen offset:{1024*j} sc1")
        a(f"s_add_u32 s{sOFF}, s{sOFF}, 4096\ns_waitcnt vmcnt(0)")
        self.mfma(S, KV, Q, None); self.mfma(S, KV + 4, Q + 4, S)
        for r in range(16): a(f"v_exp_f32 {v(S+r)}, {v(S+r)}")
        self.pack(S, P)
        self.mfma(O, KV + 8, P, O); self.mfma(O, KV + 12, P + 4, O)
        a(f"""s_sub_u32 s{sLOOP}, s{sLOOP}, 1
        s_cmp_lg_u32 s{sLOOP}, 0
        s_cbranch_scc1 L_slow2
        s_branch L_att_fin
        L_att_ok2:
        s_waitcnt vmcnt(0)
        s_branch L_att_ok""")

    def wo_phase(self):
        a = self.a
        OF = 32; SEND = 96; RECV = 112; PK = 128; KEEP = 144
        a("L_wo:")
        self.vm.clear(); self.lg.clear()
        self.stamp(8)
        self.drained(sGR, 1)
        a(f"""s_cmp_eq_u32 s{sISWO}, 0
        s_cbranch_scc1 L_wo_skip
        s_lshr_b32 s{sD}, s{sWAVE}, 1
        s_lshl_b32 s{sA}, s{sTW}, 1
        s_add_u32 s{sA}, s{sA}, s{sD}
        s_lshl_b32 s{sOFFMAX}, s{sA}, 14
        s_add_u32 s{sOFFMAX}, s{sOFFMAX}, s{sLB}
        s_add_u32 s{sOFFMAX}, s{sOFFMAX}, {hx(OFF_O)}
        s_add_u32 s{sPF}, s{sFB}, s{sGT}
        s_add_u32 s{sPF}, s{sPF}, {SEAM+DRN}
        s_mov_b32 s{sRETRY}, 0
        s_mul_i32 s{sSO0}, s{sTW}, 28672
        s_cmp_eq_u32 s{sL}, 3
        s_cbranch_scc1 L_wo_last
        s_lshl_b32 s{sB_}, s{sC}, 11
        s_add_u32 s{sSO0}, s{sSO0}, s{sB_}
        s_add_u32 s{sSO0}, s{sSO0}, s{sLB}
        s_add_u32 s{sSO1}, s{sSO0}, 1024
        v_mov_b32 {v(vXO)}, {v(vL16)}
        s_branch L_wo_addr
        L_wo_last:
        s_lshl_b32 s{sB_}, s{sC}, 6
        s_add_u32 s{sSO0}, s{sSO0}, s{sB_}
        s_add_u32 s{sSO1}, s{sSO0}, 32
        v_mov_b32 {v(vXO)}, {v(vRM)}
        s_mov_b32 s{S_XOUT}, s{PTR+12}
        s_mov_b32 s{S_XOUT+1}, s{PTR+13}
        s_mov_b32 s{S_XOUT+2}, 1835008
        L_wo_addr:
        s_lshl_b32 s{sA}, s{sWAVE}, 12
        s_add_u32 s{sB_}, s{sA}, {SCR}
        v_add_u32 {v(vA)}, s{sB_}, {v(vL16)}
        s_xor_b32 s{sA}, s{sA}, 8192
        s_add_u32 s{sA}, s{sA}, {SCR}
        v_add_u32 {v(vNM)}, s{sA}, {v(vL16)}
        s_mul_i32 s{sG}, s{sTW}, 14
        s_add_u32 s{sG}, s{sG}, s{sC}
        s_lshl_b32 s{sG}, s{sG}, 8
        s_add_u32 s{sG}, s{sG}, s{sLB}
        s_add_u32 s{sG}, s{sG}, {hx(OFF_ST)}
        v_lshlrev_b32 {v(vCS1)}, 3, {v(vLANE)}""")
        def wtr(dst, base, n):
            off = (28 * (n >> 1) + 16 * (n & 1)) * 128
            a(f"ds_read_b64_tr_b16 {v(dst,2)}, {v(base)} offset:{off}"); self.lg.issue(("w", n))
            a(f"ds_read_b64_tr_b16 {v(dst+2,2)}, {v(base)} offset:{off+1024}"); self.lg.issue(("w", n))
        self.wait_go(1)
        self.stamp(9)
        a(f"L_wo_redo:\ns_mov_b32 s{sOFF}, s{sOFFMAX}")
        for n in range(16):
            if n and n % 4 == 0: a(f"s_add_u32 s{sOFF}, s{sOFF}, 4096")
            a(f"buffer_load_dwordx4 {v(OF+4*n,4)}, {v(vL16)}, {srd(S_WS)}, s{sOFF} offen offset:{(n%4)*1024} sc1"); self.vm.issue(("o", n))
        wtr(WF, vWK, 0); wtr(WF + 4, vWS_, 0)
        for n in range(16):
            p = n & 1
            if n + 1 < 16:
                wtr(WF + 8 * (1 - p), vWK, n + 1); wtr(WF + 8 * (1 - p) + 4, vWS_, n + 1)
            self.wait(vm=("o", n), lg=("w", n))
            self.mfma(SEND, WF + 8 * p + 4, OF + 4 * n, SEND if n else None)
            self.mfma(KEEP, WF + 8 * p, OF + 4 * n, KEEP if n else XRES)
        self.nan_check(SEND, "L_wo_redo", 16)
        for q in range(4):
            a(f"ds_write_b128 {v(vA)}, {v(SEND+4*q,4)} offset:{1024*q}")
        a("s_waitcnt lgkmcnt(0)")
        self.barrier()
        self.stamp(12)
        for q in range(4):
            a(f"ds_read_b128 {v(RECV+4*q,4)}, {v(vNM)} offset:{1024*q}")
        for f in range(2):
            for q in range(2 * f, 2 * f + 2):
                a(f"s_waitcnt lgkmcnt({3-q})")
                a(f"v_pk_add_f32 {v(XRES+4*q,2)}, {v(KEEP+4*q,2)}, {v(RECV+4*q,2)}\nv_pk_add_f32 {v(XRES+4*q+2,2)}, {v(KEEP+4*q+2,2)}, {v(RECV+4*q+2,2)}")
            for i in range(4 * f, 4 * f + 4):
                a(f"v_cvt_pk_bf16_f32 {v(PK+i)}, {v(XRES+2*i)}, {v(XRES+2*i+1)}")
            a(f"v_permlane32_swap_b32 {v(PK+4*f)}, {v(PK+4*f+2)}\nv_permlane32_swap_b32 {v(PK+4*f+1)}, {v(PK+4*f+3)}")
            a(f"buffer_store_dwordx4 {v(PK+4*f,4)}, {v(vXO)}, {srd(S_XOUT)}, s{(sSO0,sSO1)[f]} offen sc1")
        a(f"""s_cmp_eq_u32 s{sL}, 3
        s_cbranch_scc1 L_fin""")
        a(f"v_pk_add_f32 {v(RECV,2)}, {v(XRES,2)}, {v(XRES+2,2)}\nv_pk_mul_f32 {v(RECV+2,2)}, {v(XRES,2)}, {v(XRES,2)}")
        for r in range(2, 16, 2):
            if r >= 4: a(f"v_pk_add_f32 {v(RECV,2)}, {v(RECV,2)}, {v(XRES+r,2)}")
            a(f"v_pk_fma_f32 {v(RECV+2,2)}, {v(XRES+r,2)}, {v(XRES+r,2)}, {v(RECV+2,2)}")
        a(f"""v_add_f32 {v(RECV+4)}, {v(RECV)}, {v(RECV+1)}
        v_add_f32 {v(RECV+5)}, {v(RECV+2)}, {v(RECV+3)}
        v_add_f32 {v(RECV+6)}, {v(RECV)}, {v(RECV+1)}
        v_add_f32 {v(RECV+7)}, {v(RECV+2)}, {v(RECV+3)}
        v_permlane32_swap_b32 {v(RECV+4)}, {v(RECV+6)}
        v_permlane32_swap_b32 {v(RECV+5)}, {v(RECV+7)}
        v_pk_add_f32 {v(RECV+4,2)}, {v(RECV+4,2)}, {v(RECV+6,2)}""")
        self.exec_lo()
        a(f"buffer_store_dwordx2 {v(RECV+4,2)}, {v(vCS1)}, {srd(S_WS)}, s{sG} offen sc1")
        self.exec_all()
        self.barrier()
        self.stamp(10)
        self.drained(sGT, 2)
        a("s_branch L_next\nL_wo_skip:")
        self.barrier()
        a(f"""s_cmp_eq_u32 s{sL}, 3
        s_cbranch_scc1 L_fin""")
        self.barrier()
        a(f"""L_next:
        s_add_u32 s{sL}, s{sL}, 1
        s_add_u32 s{sLB}, s{sLB}, 0x1000000
        s_add_u32 s{sFB}, s{sFB}, {LBLK}
        s_bitcmp1_b32 s{sL}, 0
        s_cbranch_scc1 L_layerB
        s_branch L_layerA""")

    def helper(self):
        a = self.a
        VKV, VQ, VWO, VCS = 16, 17, 18, 19
        ONES, FR, ACC = 24, 28, 64
        NANR, VONE = 128, 132
        NFL = self.opt.get("nfl", 8)
        a(f"""s_sub_u32 s{sHH}, s{sWAVE}, 4
        v_lshrrev_b32 v22, 3, {v(vLANE)}
        v_and_b32 v23, 7, {v(vLANE)}
        v_bfe_u32 v28, {v(vLANE)}, 4, 1
        v_lshlrev_b32 v28, 2, v28
        v_xor_b32 v23, v23, v28
        v_mul_u32_u24 v29, 896, v22
        v_lshl_add_u32 v{VWO}, v23, 4, v29
        v_mul_u32_u24 v29, 2688, v22
        v_lshrrev_b32 v28, 2, v23
        v_mul_u32_u24 v28, 896, v28
        v_and_b32 v23, 3, v23
        v_lshl_add_u32 v29, v23, 4, v29
        v_add_u32 v{VKV}, v29, v28
        v_lshrrev_b32 v22, 2, {v(vLANE)}
        v_mul_u32_u24 v22, 2688, v22
        v_lshl_add_u32 v{VQ}, v23, 4, v22
        s_mul_i32 s{sE}, s{sH}, 56
        s_and_b32 s{sE}, s{sE}, 0xfff0
        s_mul_i32 s{sB_}, s{sHH}, {8*2688}
        s_add_u32 s{sB_}, s{sB_}, s{sE}
        s_add_u32 s{sXC}, s{sB_}, 896
        s_add_u32 s{sLIM}, s{sXC}, {448*2688}
        s_mul_i32 s{sROT}, s{sCG}, {64*2688}
        s_add_u32 s{sB_}, s{sXC}, s{sROT}
        s_lshl_b32 s{sA}, s{sHH}, 10""")
        def raw_kv():
            a(f"""s_mov_b32 m0, s{sA}
            s_add_u32 s{sA}, s{sA}, 4096
            buffer_load_dwordx4 v{VKV}, {srd(S_WQ)}, s{sB_} offen lds
            s_add_u32 s{sB_}, s{sB_}, {32*2688}
            s_cmp_eq_u32 s{sB_}, s{sLIM}
            s_cselect_b32 s{sB_}, s{sXC}, s{sB_}""")
        a(f"""v_mov_b32 v28, 0
        v_mov_b32 v29, 0
        v_mov_b32 v30, 0
        v_mov_b32 v31, 0
        s_cmp_lg_u32 s{sHH}, 3
        s_cbranch_scc1 L_h_noz
        s_cmp_ge_u32 s2, {NZERO}
        s_cbranch_scc1 L_h_noz
        v_mul_u32_u24 v22, {LN}, {v(vLANE)}
        s_mul_i32 s{sC_}, s2, {64*LN}
        buffer_store_dwordx4 v[28:31], v22, {srd(S_WS)}, s{sC_} offen sc1
        buffer_store_dwordx4 v[28:31], v22, {srd(S_WS)}, s{sC_} offen offset:16 sc1
        buffer_store_dwordx4 v[28:31], v22, {srd(S_WS)}, s{sC_} offen offset:32 sc1
        buffer_store_dwordx4 v[28:31], v22, {srd(S_WS)}, s{sC_} offen offset:48 sc1
        L_h_noz:""")
        for i in range(NFL): raw_kv()
        if self.opt.get("tlb", 0):
            a(f"""s_cmp_lg_u32 s{sHH}, 2
            s_cbranch_scc1 L_h_notlb
            v_min_u32 v22, 39, {v(vLANE)}
            v_lshlrev_b32 v22, 21, v22
            v_add_u32 v22, 0x1fff00, v22
            buffer_load_dword v60, v22, {srd(S_WS)}, 0 offen sc1
            L_h_notlb:""")
        a(f"""v_and_b32 v22, 31, {v(vLANE)}
        v_lshlrev_b32 v{VCS}, 2, v22
        v_mov_b32 v24, 0x3f803f80
        v_mov_b32 v25, 0x3f803f80
        v_mov_b32 v26, 0x3f803f80
        v_mov_b32 v27, 0x3f803f80
        v_mov_b32 v{NANR}, -1
        v_mov_b32 v{NANR+1}, -1
        v_mov_b32 v{NANR+2}, -1
        v_mov_b32 v{NANR+3}, -1
        v_mov_b32 v{VONE}, 1
        v_min_u32 v22, 47, {v(vLANE)}
        v_lshlrev_b32 v22, 4, v22
        v_add_u32 v22, {CSA}, v22
        ds_write_b128 v22, v[28:31]
        v_and_b32 v22, 15, {v(vLANE)}
        v_lshlrev_b32 v22, 2, v22
        v_add_u32 v22, {GO}, v22
        ds_write_b32 v22, v28
        s_lshl_b32 s{sC_}, s{sHH}, 11
        v_add_u32 v20, s{sC_}, {v(vTK)}
        v_add_u32 v21, s{sC_}, {v(vTV)}
        s_mul_i32 s{sD}, s{sHH}, {16*2688}
        s_add_u32 s{sD}, s{sD}, s{sE}
        s_add_u32 s{sLIM2}, s{sD}, {448*2688}
        s_add_u32 s{sF}, s{sD}, s{sROT}
        s_lshl_b32 s{sG}, s{sHH}, 10
        s_add_u32 s{sG}, s{sG}, {R1Q}
        s_waitcnt lgkmcnt(0)""")
        def raw_q():
            a(f"""s_mov_b32 m0, s{sG}
            s_add_u32 s{sG}, s{sG}, 4096
            buffer_load_dwordx4 v{VQ}, {srd(S_WQ)}, s{sF} offen lds
            s_add_u32 s{sF}, s{sF}, {64*2688}
            s_cmp_eq_u32 s{sF}, s{sLIM2}
            s_cselect_b32 s{sF}, s{sD}, s{sF}""")
        a("s_setprio 1")
        seq = ["kv"] * 14 + ["q"] * 7
        nxt = NFL
        for c in range(7):
            if c == 0: self.stamp(1)
            a(f"s_waitcnt vmcnt({nxt-2*c-2})")
            if c == 0:
                self.stamp(2)
                a(f"""s_cmp_lg_u32 s{sHH}, 3
                s_cbranch_scc1 L_h_nosig
                s_cmp_ge_u32 s2, {NZERO}
                s_cbranch_scc1 L_h_nosig
                s_mov_b64 exec, 1
                buffer_atomic_add v{VONE}, off, {srd(S_DBG)}, 0 sc1
                s_mov_b64 exec, -1
                L_h_nosig:""")
            if c == 3: self.stamp(11)
            if c == 6: self.stamp(12)
            self.barrier()
            for _ in range(2):
                if nxt < 21:
                    (raw_kv if seq[nxt] == "kv" else raw_q)(); nxt += 1
            a(f"""ds_read_b64_tr_b16 v[{FR}:{FR+1}], v20 offset:{c*8192}
            ds_read_b64_tr_b16 v[{FR+2}:{FR+3}], v20 offset:{c*8192+512}
            ds_read_b64_tr_b16 v[{FR+4}:{FR+5}], v21 offset:{c*8192}
            ds_read_b64_tr_b16 v[{FR+6}:{FR+7}], v21 offset:{c*8192+512}
            s_waitcnt lgkmcnt(0)""")
            self.mfma(ACC + 16, ONES, FR, ACC + 16 if c else None)
            self.mfma(ACC + 32, ONES, FR + 4, ACC + 32 if c else None)
        while nxt < 21:
            raw_q(); nxt += 1
        def cs_add(base, tiles):
            self.exec_lo()
            a(f"v_add_u32 v22, {base}, v{VCS}")
            for t in tiles:
                a(f"ds_add_f32 v22, v{ACC+16*t} offset:{128*t}")
            self.exec_all()
            a("s_waitcnt lgkmcnt(0)")
        cs_add(CSA, (1, 2))
        a("s_setprio 0")
        self.stamp(3)
        self.barrier()
        def dma_wq(typ, lo, hi, thr=False, two=False):
            if lo >= hi: return
            L = a.label("Lhq")
            a(f"""s_add_u32 s{sB_}, s{sH}, {16*typ}
            s_mul_i32 s{sB_}, s{sB_}, 86016
            s_add_u32 s{sB_}, s{sB_}, {hx(WPK)}
            s_and_b32 s{sA}, s{sHH}, {1 if two else 3}
            s_lshl_b32 s{sA}, s{sA}, 10
            s_add_u32 s{sA}, s{sA}, {lo}
            {L}:
            s_mov_b32 m0, s{sA}
            s_add_u32 s{sC_}, s{sA}, s{sB_}
            buffer_load_dwordx4 {v(vL16)}, {srd(S_WS)}, s{sC_} offen sc1 lds
            {"s_waitcnt vmcnt(%d)" % self.thr if thr else ""}
            s_add_u32 s{sA}, s{sA}, {2048 if two else 4096}
            s_cmp_lt_u32 s{sA}, {hi}
            s_cbranch_scc1 {L}""")
        def dma_wo(p, thr=False, two=False):
            L = a.label("Lho")
            a(f"""s_mov_b32 s{S_WO}, s{PTR+2*p}
            s_mov_b32 s{S_WO+1}, s{PTR+2*p+1}
            s_and_b32 s{sC_}, s{sHH}, {1 if two else 3}
            s_lshl_b32 s{sA}, s{sC_}, 10
            s_add_u32 s{sA}, s{sA}, {R2}
            s_mul_i32 s{sB_}, s{sC_}, {8*896}
            s_lshl_b32 s{sC_}, s{sCG}, 7
            s_add_u32 s{sB_}, s{sB_}, s{sC_}
            {L}:
            s_mov_b32 m0, s{sA}
            s_add_u32 s{sA}, s{sA}, {2048 if two else 4096}
            buffer_load_dwordx4 v{VWO}, {srd(S_WO)}, s{sB_} offen lds
            {"s_waitcnt vmcnt(%d)" % self.thr if thr else ""}
            s_add_u32 s{sB_}, s{sB_}, {(16 if two else 32)*896}
            s_cmp_lt_u32 s{sA}, {R2+57*1024}
            s_cbranch_scc1 {L}""")
        def wo3(lo, cnt):
            a(f"""s_add_u32 s{sD}, s{sHH}, {lo-1}
            s_lshl_b32 s{sC_}, s{sCG}, 7""")
            for i in range(cnt):
                a(f"""s_min_u32 s{sA}, s{sD}, 56
                s_mul_i32 s{sB_}, s{sA}, {8*896}
                s_add_u32 s{sB_}, s{sB_}, s{sC_}
                s_lshl_b32 s{sA}, s{sA}, 10
                s_add_u32 m0, s{sA}, {R2}
                s_add_u32 s{sD}, s{sD}, 3
                buffer_load_dwordx4 v{VWO}, {srd(S_WO)}, s{sB_} offen lds""")
        def wq3(typ, cnt):
            a(f"""s_add_u32 s{sB_}, s{sH}, {16*typ}
            s_mul_i32 s{sB_}, s{sB_}, 86016
            s_add_u32 s{sB_}, s{sB_}, {hx(WPK)}
            s_sub_u32 s{sA}, s{sHH}, 1
            s_lshl_b32 s{sA}, s{sA}, 10""")
            for i in range(cnt):
                a(f"""s_mov_b32 m0, s{sA}
                s_add_u32 s{sC_}, s{sA}, s{sB_}
                s_add_u32 s{sA}, s{sA}, 3072
                buffer_load_dwordx4 {v(vL16)}, {srd(S_WS)}, s{sC_} offen sc1 lds""")
        def colsum_B():
            a(f"""s_and_b32 s{sD}, s{sHH}, 1
            s_mul_i32 s{sC_}, s{sD}, 28672
            v_add_u32 v20, s{sC_}, {v(vTK)}
            v_add_u32 v21, s{sC_}, {v(vTV)}
            s_mul_i32 s{sC_}, s{sD}, 14336
            v_add_u32 v23, s{sC_}, {v(vTQ)}""")
            Lq = a.label("Lhq")
            a(f"""s_add_u32 s{sB_}, s{sH}, 16
            s_mul_i32 s{sB_}, s{sB_}, 86016
            s_add_u32 s{sB_}, s{sB_}, {hx(WPK)}
            s_add_u32 s{sA}, s{sC_}, {R1Q}
            s_add_u32 s{sD}, s{sA}, 14336
            {Lq}:
            s_mov_b32 m0, s{sA}
            s_add_u32 s{sC_}, s{sA}, s{sB_}
            buffer_load_dwordx4 {v(vL16)}, {srd(S_WS)}, s{sC_} offen sc1 lds
            s_add_u32 s{sA}, s{sA}, 1024
            s_cmp_lt_u32 s{sA}, s{sD}
            s_cbranch_scc1 {Lq}""")
            for tiles in ((1, 2), (0,)):
                nt = len(tiles)
                if nt == 1: a("s_waitcnt vmcnt(0)")
                def rd(s_):
                    for k_, t in enumerate(tiles):
                        b, st, d = ((23, 1024, 256), (20, 2048, 512), (21, 2048, 512))[t]
                        r = FR + 4 * ((nt * s_ + k_) % 6)
                        a(f"ds_read_b64_tr_b16 v[{r}:{r+1}], v{b} offset:{s_*st}\nds_read_b64_tr_b16 v[{r+2}:{r+3}], v{b} offset:{s_*st+d}")
                rd(0); rd(1)
                for s_ in range(14):
                    if s_ + 2 < 14: rd(s_ + 2)
                    a(f"s_waitcnt lgkmcnt({2*nt*min(2, 13-s_)})")
                    for k_, t in enumerate(tiles):
                        self.mfma(ACC + 16 * t, ONES, FR + 4 * ((nt * s_ + k_) % 6), ACC + 16 * t if s_ else None)
            cs_add(CSA + 384, (0, 1, 2))
        def role(h0=None, h1=None, h23=None, h123=None):
            if h123:
                l1, done = a.label("Lr1"), a.label("Lrd")
                a(f"s_cmp_lg_u32 s{sHH}, 0\ns_cbranch_scc1 {l1}")
                if h0: h0(done)
                a(f"s_branch {done}\n{l1}:")
                h123(done)
                a(f"{done}:")
                return
            l1, l2, done = a.label("Lr1"), a.label("Lr2"), a.label("Lrd")
            a(f"s_cmp_ge_u32 s{sHH}, 2\ns_cbranch_scc1 {l2 if h23 else done}")
            a(f"s_cmp_eq_u32 s{sHH}, 1\ns_cbranch_scc1 {l1 if h1 else done}")
            if h0: h0(done)
            a(f"s_branch {done}")
            if h1:
                a(f"{l1}:"); h1(done); a(f"s_branch {done}")
            if h23:
                a(f"{l2}:"); h23(done)
            a(f"{done}:")
        def hint(L, k):
            def f(done):
                if k == 2: a(f"s_cmp_eq_u32 s{sISWO}, 0\ns_cbranch_scc1 {done}")
                self.ctr_add((sGH, sGR, sGT)[k], L * LBLK + k * SEAM, VONE, fb=False)
            return f
        def poll(L, k):
            def f(done):
                skip = a.label("Lps")
                if k == 1: a(f"s_cmp_eq_u32 s{sISWO}, 0\ns_cbranch_scc1 {skip}")
                a(f"s_add_u32 s{sA}, s{(sGH, sGT, sGR)[k]}, {hx(L*LBLK + k*SEAM)}")
                self.stamp(9 + 2 * k, L)
                bm = (k == 0 and (L & 1))
                if bm:
                    Lp, Dp = a.label("Lpw"), a.label("Lpd")
                    a(f"""v_lshrrev_b32 v21, 4, {v(vLANE)}
                    v_lshlrev_b32 v21, 7, v21
                    v_and_b32 v20, 15, {v(vLANE)}
                    v_lshl_add_u32 v21, v20, 2, v21
                    s_mov_b32 s{sSPIN}, 40000
                    {Lp}:
                    v_mov_b32 v23, 0
                    buffer_atomic_add v23, v21, {srd(S_WS)}, s{sA} offen sc0 sc1
                    s_waitcnt vmcnt(0)
                    v_cmp_eq_u32 vcc, 0, v23
                    s_cbranch_vccz {Dp}
                    s_sub_u32 s{sSPIN}, s{sSPIN}, 1
                    s_cmp_eq_u32 s{sSPIN}, 0
                    s_cbranch_scc0 {Lp}
                    s_endpgm
                    {Dp}:""")
                    for sh in (1, 2, 4, 8):
                        a(f"v_max_u32_dpp v23, v23, v23 row_ror:{sh} row_mask:0xf bank_mask:0xf")
                    a(f"""v_readlane_b32 s{sA}, v23, 16
                    v_readlane_b32 s{sB_}, v23, 32
                    v_readlane_b32 s{sC_}, v23, 48
                    s_max_u32 s{sA}, s{sA}, s{sB_}
                    s_max_u32 s{sA}, s{sA}, s{sC_}
                    v_max_u32 v23, s{sA}, v23""")
                else:
                    self.poll_ctr(f"s{sA}", (32, 16, 14)[k], 22)
                self.stamp(10 + 2 * k, L)
                if k or bm:
                    a(f"""v_mov_b32 v20, {GO+12*L+4*k}
                    s_mov_b64 exec, 1
                    ds_write_b32 v20, v{23 if bm else 22}
                    s_mov_b64 exec, -1
                    s_waitcnt lgkmcnt(0)""")
                a(f"{skip}:")
            return f
        seqf = lambda *fs: (lambda done: [f(done) for f in fs])
        W = lambda f: (lambda done: f())
        N1 = self.opt.get("n1", 48) * 1024
        pf = lambda L, parts="ox", thr=True: self.prefill(L, NANR, parts=parts, thr=thr)

        a(f"""s_lshr_b32 s{sA}, s{sHH}, 1
        s_cmp_eq_u32 s{sA}, 0
        s_cselect_b32 s{S_WQ}, s{PTR+2}, s{PTR+8}
        s_cselect_b32 s{S_WQ+1}, s{PTR+3}, s{PTR+9}
        s_lshl_b32 s{sA}, s{sA}, 4
        s_add_u32 s{sA}, s{sA}, s{sH}
        s_mul_i32 s{sF}, s{sA}, 86016
        s_add_u32 s{sF}, s{sF}, {hx(WPK)}
        s_mul_i32 s{sB_}, s{sRB}, {28*2688}
        s_add_u32 s{sB_}, s{sB_}, s{sE}
        s_bitcmp1_b32 s{sHH}, 0
        s_cbranch_scc1 L_h_packq
        s_add_u32 s{sB_}, s{sB_}, 896
        s_mul_i32 s{sC_}, s{sRB}, {28*128}
        s_add_u32 s{sF}, s{sF}, s{sC_}""")
        for i in range(4):
            a(f"buffer_load_dwordx4 v[{112+4*i}:{115+4*i}], v{VKV}, {srd(S_WQ)}, s{sB_} offen\ns_add_u32 s{sB_}, s{sB_}, {8*2688}")
        a(f"""s_waitcnt vmcnt(4)
        s_branch L_h_packed
        L_h_packq:
        s_mul_i32 s{sC_}, s{sRB}, {28*64}
        s_add_u32 s{sF}, s{sF}, s{sC_}
        s_add_u32 s{sF}, s{sF}, {R1Q}
        buffer_load_dwordx4 v[112:115], v{VQ}, {srd(S_WQ)}, s{sB_} offen
        s_add_u32 s{sB_}, s{sB_}, {16*2688}
        buffer_load_dwordx4 v[116:119], v{VQ}, {srd(S_WQ)}, s{sB_} offen
        s_waitcnt vmcnt(2)
        L_h_packed:
        s_lshl_b32 s{sC_}, s{sHH}, 10
        v_add_u32 v20, s{sC_}, {v(vTQ)}""")
        for i in range(7):
            a(f"ds_read_b64_tr_b16 v[{FR+4*i}:{FR+4*i+1}], v20 offset:{i*4096}\nds_read_b64_tr_b16 v[{FR+4*i+2}:{FR+4*i+3}], v20 offset:{i*4096+256}")
        for i in range(7):
            a(f"s_waitcnt lgkmcnt({12-2*i})")
            self.mfma(ACC, ONES, FR + 4 * i, ACC if i else None)
        role(h0=W(lambda: self.poll_ctr("0", NZERO, 22, srd_b=S_DBG, ld=True)),
             h123=W(lambda: wo3(0, 7)))
        cs_add(CSA, (0,))
        self.stamp(4)

        self.barrier()
        def pack_store(nyoung):
            zo, zd, sq, sd = a.label("Lzo"), a.label("Lzd"), a.label("Lsq"), a.label("Lsd")
            a(f"""s_and_b32 s{sC_}, s{sH}, 1
            s_mul_i32 s{sC_}, s{sC_}, 3
            s_xor_b32 s{sC_}, s{sC_}, 3
            v_and_b32 v22, 3, {v(vLANE)}
            v_cmp_ne_u32 vcc, s{sC_}, v22
            s_waitcnt vmcnt({nyoung})
            s_bitcmp1_b32 s{sH}, 0
            s_cbranch_scc1 {zo}""")
            for i in range(4):
                a(f"v_cndmask_b32 v{114+4*i}, 0, v{114+4*i}, vcc\nv_cndmask_b32 v{115+4*i}, 0, v{115+4*i}, vcc")
            a(f"s_branch {zd}\n{zo}:")
            for i in range(4):
                a(f"v_cndmask_b32 v{112+4*i}, 0, v{112+4*i}, vcc\nv_cndmask_b32 v{113+4*i}, 0, v{113+4*i}, vcc")
            a(f"""{zd}:
            buffer_store_dwordx4 v[112:115], {v(vL16)}, {srd(S_WS)}, s{sF} offen sc1
            s_bitcmp1_b32 s{sHH}, 0
            s_cbranch_scc1 {sq}
            buffer_store_dwordx4 v[116:119], {v(vL16)}, {srd(S_WS)}, s{sF} offen offset:1024 sc1
            buffer_store_dwordx4 v[120:123], {v(vL16)}, {srd(S_WS)}, s{sF} offen offset:2048 sc1
            s_mov_b32 exec_hi, 0
            buffer_store_dwordx4 v[124:127], {v(vL16)}, {srd(S_WS)}, s{sF} offen offset:3072 sc1
            s_branch {sd}
            {sq}:
            s_mov_b32 exec_hi, 0xffff
            buffer_store_dwordx4 v[116:119], {v(vL16)}, {srd(S_WS)}, s{sF} offen offset:1024 sc1
            {sd}:
            s_mov_b64 exec, -1""")
        def l0_a(done):
            pack_store(7)
            wo3(21, 7)
            a(f"s_cmp_eq_u32 s{sHH}, 1\ns_cbranch_scc1 {done}\ns_waitcnt vmcnt(7)")
            self.ctr_add(sGH, 11 * SEAM, VONE, fb=False)
        role(h0=poll(0, 0), h123=l0_a)
        self.stamp(5)
        self.barrier()
        def l0_b0(done):
            a(f"s_add_u32 s{sD}, s{sGH}, {hx(11*SEAM)}")
            self.poll_ctr(f"s{sD}", 32, 22)
            pack_store(0)
        role(h0=l0_b0, h123=W(lambda: wo3(42, 5)))
        self.barrier()
        role(h123=W(lambda: (wq3(1, 7), a("s_waitcnt vmcnt(7)"))))
        self.barrier()
        role(h0=poll(0, 1), h1=hint(0, 1), h23=W(lambda: dma_wq(1, 21504, R1Q, two=True)))
        self.stamp(7)
        pf(0, "x", False)
        pf(1, "o", False)
        a("s_waitcnt vmcnt(6)")
        self.stamp(8)
        self.barrier()
        self.barrier()
        role(h0=poll(0, 2), h1=hint(0, 2), h23=W(colsum_B))
        a("s_waitcnt vmcnt(0)")
        self.barrier()
        role(h0=poll(1, 0))
        self.barrier()
        dma_wo(5, True)
        dma_wq(0, 0, OX, True)
        pf(1, "x"); pf(2); pf(3)
        a("s_waitcnt vmcnt(0)")
        self.barrier()
        self.barrier()
        role(h0=poll(1, 1), h1=hint(1, 1), h23=W(lambda: dma_wq(0, OX, 86016, two=True)))
        a("s_waitcnt vmcnt(0)")
        self.barrier()
        self.barrier()
        role(h0=poll(1, 2), h1=hint(1, 2), h23=W(lambda: dma_wo(2, two=True)))
        self.barrier()
        role(h0=poll(2, 0), h23=W(lambda: dma_wq(1, 0, N1, two=True)))
        self.barrier()
        a("s_waitcnt vmcnt(0)")
        self.barrier()
        self.barrier()
        role(h0=poll(2, 1), h1=hint(2, 1), h23=W(lambda: dma_wq(1, N1, 86016, two=True)))
        a("s_waitcnt vmcnt(0)")
        self.barrier()
        self.barrier()
        role(h0=seqf(poll(2, 2), poll(3, 0)), h1=hint(2, 2))
        self.barrier()
        dma_wo(5, True)
        a("s_waitcnt vmcnt(0)")
        self.barrier()
        self.barrier()
        role(h0=poll(3, 1), h1=hint(3, 1))
        a("s_branch L_fin")

    def build(self):
        a = self.a
        self.tail = []
        self.prologue()
        self.helper()
        self.layer_A()
        self.layer_B()
        self.wo_phase()
        self.slow_path()
        self.emit_tail()
        a("L_fin:")
        self.stamp(15)
        self.stamp_flush()
        a("L_end:\ns_endpgm\nL_code_end:")
        body = a.resolve()
        hdr = open("interleave_layers__linear_attn_block__softmax_full_mha__prompt.s.ref").read().split("; Override")[0]
        return hdr + f"""; @launch grid=(256,1,1) block=(512,1,1) lds={LDS_TOTAL}
.amdgcn_target "amdgcn-amd-amdhsa--gfx950"
.text
.globl {NAME}
.p2align 8
.type {NAME},@function
{NAME}:
{body}
.section .rodata,"a"
.p2align 6
.amdhsa_kernel {NAME}
  .amdhsa_next_free_vgpr 256
  .amdhsa_next_free_sgpr 102
  .amdhsa_accum_offset 256
  .amdhsa_group_segment_fixed_size 0
  .amdhsa_kernarg_size 72
  .amdhsa_user_sgpr_count 2
  .amdhsa_user_sgpr_kernarg_segment_ptr 1
  .amdhsa_system_sgpr_workgroup_id_x 1
.end_amdhsa_kernel
"""

if __name__ == "__main__":
    import argparse
    ap = argparse.ArgumentParser()
    ap.add_argument("-o", default="k.s")
    ap.add_argument("--prof", default=None)
    ap.add_argument("--opt", default="")
    args = ap.parse_args()
    opt = {kv.split("=")[0]: int(kv.split("=")[1]) for kv in args.opt.split(",") if kv}
    g = Gen(prof=args.prof, opt=opt)
    s = g.build()
    open(args.o, "w").write(s)
    print("wrote", args.o, "lines", s.count("\n"), "nops inserted", g.a.nops)
```

```python
import sys, struct, math
sys.path.insert(0, "dev")
from asmb import Asm

NAME = "interleave_layers__linear_attn_block__softmax_full_mha__prompt_kernel"

def f2u(x): return struct.unpack("<I", struct.pack("<f", x))[0]
def hx(x): return "0x%08x" % (x & 0xffffffff)

R1 = 0
R1Q = 57344
OX = 86016 - 49152
R2 = 86016
SCR = 144384
CSA = SCR + 16384
STW = CSA + 768
GO = STW + 1024
LDS_TOTAL = 163840
LN = 128
CST = 4 * LN
SEAM = 32 * CST
DRN = 16 * CST
LBLK = 3 * SEAM
NZERO = 24
WPK = 0x400000
OFF_X, OFF_O, OFF_KV, OFF_ST = 0x000000, 0x200000, 0x400000, 0x800000
PROF_OFF = 0x8000000

sGH, sGR, sGT, sPF, sIM = 3, 4, 5, 6, 7
S_X, S_WQ, S_WO, S_OUT, S_DBG, S_WS, S_XOUT, S_CODE = 8, 12, 16, 20, 24, 28, 32, 36
sWAVE, sRB, sH, sTP, sCG, sISWO, sL, sLB = 40, 41, 42, 43, 44, 45, 46, 47
sT, sTW, sC, sFB, sSPIN = 48, 49, 50, 51, 52
sA, sB_, sC_, sD, sF, sE = 53, 54, 55, 56, 57, 58
sMPAD = 60
sK0 = 62
PTR = 64
sSO0, sSO1, sR7 = 82, 83, 84
sG, sHH, sWL = 85, 86, 87
sPC = 88
sST0 = 90
sPI, sLOOP, sOFF, sOFFMAX, sRETRY = 92, 93, 94, 95, 96
sROT, sXC, sLIM, sLIM2 = 97, 98, 99, 100
def srd(b): return f"s[{b}:{b+3}]"

vTID, vLANE, vL16, vTK, vTV, vWK, vWS_, vRM = 0, 1, 2, 3, 4, 5, 6, 7
vTQ, vPADV, vA, vNM, vCS0, vCS1, vT0, vT1 = 8, 9, 10, 11, 12, 13, 14, 15
vXO = vCS0
XRES = 16
XF = 32
ACK, ACV, ACQ = 144, 160, 176
WF = 192
SA, SB = 208, 224
CS16 = 240
def v(b, n=1): return f"v{b}" if n == 1 else f"v[{b}:{b+n-1}]"

LOG2E = 1.4426950408889634
QSCALE = LOG2E / math.sqrt(28.0)
SHIFT_UP = 40.0
L_MIN = 2.0 ** -60


class Cnt:
    def __init__(self, name, mx): self.name, self.q, self.mx = name, [], mx
    def issue(self, tag): self.q.append(tag)
    def n_after(self, tag):
        idx = max(i for i, t in enumerate(self.q) if t == tag)
        n = len(self.q) - 1 - idx
        self.q = self.q[idx + 1:]
        assert n <= self.mx, (self.name, n)
        return n
    def has(self, tag): return tag in self.q
    def clear(self): self.q = []


class Gen:
    def __init__(self, prof=None, opt={}):
        self.a = Asm(); self.prof = prof; self.opt = opt
        self.vm = Cnt("vmcnt", 63); self.lg = Cnt("lgkmcnt", 15)
        self.D = opt.get("D", 12)
        self.thr = opt.get("thr", 2)
        self.kd = opt.get("kd", 0)
        self.eo, self.ex, self.ek = opt.get("eo", 1), opt.get("ex", 2), opt.get("ek", 1)

    def mfma(self, d, A, B, C):
        c = "0" if C is None else v(C, 16)
        self.a(f"v_mfma_f32_32x32x16_bf16 {v(d,16)}, {v(A,4)}, {v(B,4)}, {c}")
    def wait(self, vm=None, lg=None):
        parts = []
        if vm is not None and self.vm.has(vm): parts.append(f"vmcnt({self.vm.n_after(vm)})")
        if lg is not None and self.lg.has(lg): parts.append(f"lgkmcnt({self.lg.n_after(lg)})")
        if parts: self.a("s_waitcnt " + " ".join(parts))
    def wait_all(self, vm=True, lg=True):
        p = []
        if vm: p.append("vmcnt(0)"); self.vm.clear()
        if lg: p.append("lgkmcnt(0)"); self.lg.clear()
        self.a("s_waitcnt " + " ".join(p))
    def exec_all(self): self.a("s_mov_b64 exec, -1")
    def exec_hi(self): self.a("s_mov_b32 exec_lo, 0\ns_mov_b32 exec_hi, -1")
    def exec_lo(self): self.a("s_mov_b32 exec_lo, -1\ns_mov_b32 exec_hi, 0")
    def barrier(self): self.a("s_barrier")
    def stamp(self, idx, L=None):
        if not self.prof: return
        op = "s_memrealtime" if self.prof == "rt" else "s_memtime"
        self.a(f"{op} s[{sST0}:{sST0+1}]")
        if L is None:
            self.a(f"s_lshl_b32 s{sPI}, s{sL}, 4\ns_add_u32 s{sPI}, s{sPI}, {idx}\ns_mov_b32 m0, s{sPI}")
        else:
            self.a(f"s_mov_b32 m0, {16*L+idx}")
        self.a(f"s_waitcnt lgkmcnt(0)\nv_writelane_b32 v0, s{sST0}, m0")
    def stamp_flush(self):
        if not self.prof: return
        self.a(f"""s_lshl_b32 s{sPI}, s2, 3
        s_add_u32 s{sPI}, s{sPI}, s{sWAVE}
        s_lshl_b32 s{sPI}, s{sPI}, 8
        s_add_u32 s{sPI}, s{sPI}, {hx(PROF_OFF)}
        s_mov_b64 exec, -1
        v_lshlrev_b32 {v(vT0)}, 2, {v(vLANE)}
        buffer_store_dword v0, {v(vT0)}, {srd(S_WS)}, s{sPI} offen""")

    def poll_ctr(self, soff, want, vdst, srd_b=S_WS, ld=False, four=None):
        a = self.a
        L, D = a.label("Lpc"), a.label("Lpd")
        if four is not None: a(f"v_lshlrev_b32 {v(four)}, 7, {v(vLANE)}")
        ad = ("off", "") if four is None else (v(four), "offen")
        a(f"""s_mov_b32 s{sSPIN}, 40000
        s_mov_b64 exec, {1 if four is None else 15}
        {L}:
        v_mov_b32 {v(vdst)}, 0""")
        if ld:
            a(f"buffer_load_dword {v(vdst)}, {ad[0]}, {srd(srd_b)}, {soff} {ad[1]} sc1")
        else:
            a(f"buffer_atomic_add {v(vdst)}, {ad[0]}, {srd(srd_b)}, {soff} {ad[1]} sc0 sc1")
        a(f"""s_waitcnt vmcnt(0)
        v_cmp_gt_u32 vcc, {want}, {v(vdst)}
        s_cbranch_vccz {D}
        s_sub_u32 s{sSPIN}, s{sSPIN}, 1
        s_cmp_eq_u32 s{sSPIN}, 0
        s_cbranch_scc0 {L}
        s_endpgm
        {D}:
        s_mov_b64 exec, -1""")
    def ctr_add(self, sgrp, extra, vone, fb=True):
        a = self.a
        if fb:
            a(f"s_add_u32 s{sA}, s{sFB}, s{sgrp}")
            if extra: a(f"s_add_u32 s{sA}, s{sA}, {hx(extra)}")
        else:
            a(f"s_add_u32 s{sA}, s{sgrp}, {hx(extra)}")
        a(f"""s_mov_b64 exec, 1
        buffer_atomic_add {v(vone)}, off, {srd(S_WS)}, s{sA} sc1
        s_mov_b64 exec, -1""")
        self.vm.issue("flag")
    def drained(self, sgrp, k):
        self.a(f"s_waitcnt vmcnt(0)\nv_mov_b32 {v(vT0)}, 1")
        self.vm.clear()
        self.a(f"s_add_u32 s{sB_}, s{sgrp}, s{sWL}")
        self.ctr_add(sB_, k * SEAM + DRN, vT0)
    def drained_late(self, sgrp, extra, need_wo=False):
        a = self.a
        lab = a.label("Ldl")
        a(f"s_cmp_lg_u32 s{sRETRY}, 0\ns_cbranch_scc1 {lab}")
        if need_wo: a(f"s_cmp_eq_u32 s{sISWO}, 0\ns_cbranch_scc1 {lab}")
        a(f"v_mov_b32 {v(vT0)}, 1\ns_add_u32 s{sB_}, s{sgrp}, s{sWL}")
        self.ctr_add(sB_, extra, vT0)
        a(f"{lab}:")
    def wait_go(self, k, dst=vT0, L=None):
        a = self.a
        if self.opt.get("bgo", 1):
            self.barrier()
            return
        Lb, D = a.label("Lgo"), a.label("Lgd")
        if L is None:
            a(f"s_mul_i32 s{sA}, s{sL}, 12\ns_add_u32 s{sA}, s{sA}, {GO+4*k}\nv_mov_b32 {v(vT1)}, s{sA}")
        else:
            a(f"v_mov_b32 {v(vT1)}, {GO+12*L+4*k}")
        a(f"""s_mov_b32 s{sSPIN}, 400000
        {Lb}:
        ds_read_b32 {v(dst)}, {v(vT1)}
        s_waitcnt lgkmcnt(0)
        v_cmp_eq_u32 vcc, 0, {v(dst)}
        s_cbranch_vccz {D}
        s_sub_u32 s{sSPIN}, s{sSPIN}, 1
        s_cmp_eq_u32 s{sSPIN}, 0
        s_cbranch_scc0 {Lb}
        s_endpgm
        {D}:""")
        self.lg.clear()
    def nan_check(self, reg, redo, want):
        a = self.a
        bad, ok = a.label("Lbad"), a.label("Lok")
        a(f"""v_cmp_u_f32 vcc, {v(reg)}, {v(reg)}
        s_cbranch_vccnz {bad}
        {ok}:""")
        self.tail.append((bad, ok, redo, want))
    def emit_tail(self):
        a = self.a
        for bad, ok, redo, want in self.tail:
            a(f"""{bad}:
            s_cmp_lg_u32 s{sRETRY}, 0
            s_cbranch_scc1 {ok}
            s_mov_b32 s{sRETRY}, 1""")
            self.poll_ctr(f"s{sPF}", want, vT0, four=vT1)
            a(f"buffer_inv sc1\ns_waitcnt vmcnt(0)\ns_branch {redo}")

    def prologue(self):
        a = self.a
        a(f"""s_cmp_ge_u32 s2, 256
        s_cbranch_scc1 L_end
        s_load_dwordx16 s[{PTR}:{PTR+15}], s[0:1], 0
        s_load_dwordx2 s[{PTR+16}:{PTR+17}], s[0:1], 64
        s_getpc_b64 s[{sPC}:{sPC+1}]
        L_pcref:
        s_sub_u32 s{S_CODE}, s{sPC}, L_pcref-{NAME}
        s_subb_u32 s{S_CODE+1}, s{sPC+1}, 0
        s_mov_b32 s{S_CODE+2}, L_code_end-{NAME}
        s_mov_b32 s{S_CODE+3}, 0x20000
        s_lshl_b32 s{sC_}, s2, 10
        s_and_b32 s{sC_}, s{sC_}, 0x6000
        v_lshlrev_b32 {v(vT1)}, 4, v0
        buffer_load_dwordx4 v[252:255], {v(vT1)}, {srd(S_CODE)}, s{sC_} offen
        v_lshrrev_b32 {v(vT0)}, 6, v0
        v_and_b32 {v(vLANE)}, 63, v0
        v_readfirstlane_b32 s{sWAVE}, {v(vT0)}
        v_lshlrev_b32 {v(vL16)}, 4, {v(vLANE)}
        s_and_b32 s{sA}, s2, 7
        s_lshr_b32 s{sB_}, s2, 3
        s_lshr_b32 s{sRB}, s{sA}, 1
        s_lshl_b32 s{sRB}, s{sRB}, 2
        s_and_b32 s{sC_}, s{sB_}, 3
        s_add_u32 s{sRB}, s{sRB}, s{sC_}
        s_and_b32 s{sH}, s{sA}, 1
        s_lshl_b32 s{sH}, s{sH}, 3
        s_lshr_b32 s{sC_}, s{sB_}, 2
        s_add_u32 s{sH}, s{sH}, s{sC_}
        s_mov_b32 s{sCG}, s{sC_}
        s_cmp_lt_u32 s{sC_}, 7
        s_cselect_b32 s{sISWO}, 1, 0
        s_cselect_b32 s{sCG}, s{sCG}, 0
        s_and_b32 s{sTP}, s{sA}, 1
        s_lshl_b32 s{sD}, s{sRB}, 1
        s_add_u32 s{sTP}, s{sTP}, s{sD}
        s_mul_i32 s{sC_}, s{sB_}, 37
        s_lshr_b32 s{sC_}, s{sC_}, 8
        s_mul_i32 s{sD}, s{sC_}, 7
        s_sub_u32 s{sR7}, s{sB_}, s{sD}
        s_mov_b32 s{sL}, 0
        s_mov_b32 s{sLB}, 0x1000000
        s_mov_b32 s{sFB}, 0
        s_lshl_b32 s{sIM}, s{sH}, 4
        s_add_u32 s{sIM}, s{sIM}, s{sRB}
        s_mul_i32 s{sGH}, s{sH}, {CST}
        s_mul_i32 s{sGR}, s{sRB}, {CST}
        s_lshr_b32 s{sGT}, s{sTP}, 1
        s_mul_i32 s{sGT}, s{sGT}, {CST}
        s_mov_b32 s{sMPAD}, 0xf0000000
        s_mov_b32 s{sMPAD+1}, 0xf0000000
        """)
        a(f"""v_lshrrev_b32 v16, 5, {v(vLANE)}
        v_bfe_u32 v17, {v(vLANE)}, 4, 1
        v_bfe_u32 v18, {v(vLANE)}, 2, 2
        v_and_b32 v19, 3, {v(vLANE)}
        v_lshlrev_b32 v20, 5, v17
        v_lshl_add_u32 v20, v19, 3, v20
        v_lshl_add_u32 v21, v16, 3, v18
        s_and_b32 s{sD}, s{sH}, 1
        s_lshl_b32 s{sD}, s{sD}, 3
        v_add_u32 v24, s{sD}, v20
        v_and_b32 v24, 63, v24
        v_lshl_add_u32 {v(vTQ)}, v21, 6, v24
        v_add_u32 {v(vTQ)}, {R1Q}, {v(vTQ)}
        v_lshl_add_u32 v24, v21, 7, v24
        v_lshrrev_b32 v22, 1, v18
        v_lshl_add_u32 {v(vTK)}, v22, 6, v24
        v_xor_b32 v22, 1, v22
        v_lshl_add_u32 {v(vTV)}, v22, 6, v24
        v_lshl_add_u32 v21, v16, 2, v18
        v_lshlrev_b32 v21, 7, v21
        v_add_u32 v21, v21, v20
        v_add_u32 v21, {R2}, v21
        v_lshrrev_b32 v22, 1, v18
        v_and_b32 v23, 31, {v(vLANE)}
        v_mul_u32_u24 {v(vRM)}, 896, v23
        v_lshl_add_u32 {v(vRM)}, v16, 4, {v(vRM)}
        v_cmp_eq_u32 vcc, 28, v23
        v_mov_b32 v24, 0x3f803f80
        v_cndmask_b32 {v(vPADV)}, 0, v24, vcc
        s_lshr_b32 s{sA}, s{sWAVE}, 1
        s_and_b32 s{sA}, s{sA}, 1
        v_xor_b32 v22, s{sA}, v22
        v_lshl_add_u32 {v(vWK)}, v22, 6, v21
        v_xor_b32 v22, 1, v22
        v_lshl_add_u32 {v(vWS_)}, v22, 6, v21
        s_mul_i32 s{sB_}, s{sA}, {8*28*128}
        v_add_u32 {v(vWK)}, s{sB_}, {v(vWK)}
        v_add_u32 {v(vWS_)}, s{sB_}, {v(vWS_)}
        s_lshl_b32 s{sC}, s{sCG}, 1
        s_add_u32 s{sC}, s{sC}, s{sA}
        s_and_b32 s{sA}, s{sWAVE}, 1
        s_lshl_b32 s{sTW}, s{sTP}, 1
        s_add_u32 s{sTW}, s{sTW}, s{sA}
        s_and_b32 s{sA}, s{sWAVE}, 3
        s_lshl_b32 s{sWL}, s{sA}, 7
        s_lshl_b32 s{sT}, s{sRB}, 2
        s_add_u32 s{sT}, s{sT}, s{sA}
        s_waitcnt lgkmcnt(0)
        """)
        def mk(b, p, size):
            a(f"""s_mov_b32 s{b}, s{PTR+2*p}
            s_mov_b32 s{b+1}, s{PTR+2*p+1}
            s_mov_b32 s{b+2}, {size}
            s_mov_b32 s{b+3}, 0x20000""")
        mk(S_X, 0, 1835008); mk(S_WQ, 1, 1204224); mk(S_WO, 2, 401408)
        mk(S_OUT, 6, 1835008); mk(S_DBG, 7, 256); mk(S_WS, 8, 0x10000000); mk(S_XOUT, 8, 0x10000000)
        pfm = self.opt.get("pfm", 0)
        if pfm:
            a(f"""s_lshl_b32 s{sA}, s2, 3
            s_add_u32 s{sA}, s{sA}, s{sWAVE}
            s_lshl_b32 s{sA}, s{sA}, 10
            buffer_load_dwordx4 v[248:251], {v(vL16)}, {srd(S_WQ)}, s{sA} offen""")
            if pfm >= 2: a(f"buffer_load_dwordx4 v[244:247], {v(vL16)}, {srd(S_X)}, s{sA} offen")
        if self.prof: a("v_mov_b32 v0, 0")
        self.stamp(0)
        a(f"""s_cmp_lt_u32 s{sWAVE}, 4
        s_cbranch_scc1 L_layerA""")

    def stats_finish(self, vS, vQ):
        a = self.a
        a(f"""v_mov_b32 {v(vT0)}, {v(vS)}
        v_mov_b32 {v(vT1)}, {v(vQ)}
        v_permlane32_swap_b32 {v(vT0)}, {v(vS)}
        v_permlane32_swap_b32 {v(vT1)}, {v(vQ)}
        v_add_f32 {v(vS)}, {v(vS)}, {v(vT0)}
        v_add_f32 {v(vQ)}, {v(vQ)}, {v(vT1)}
        v_mul_f32 {v(vNM)}, {hx(f2u(-1.0/448))}, {v(vS)}
        v_mul_f32 {v(vQ)}, {hx(f2u(1.0/448))}, {v(vQ)}
        v_fma_f32 {v(vQ)}, -{v(vNM)}, {v(vNM)}, {v(vQ)}
        v_and_b32 {v(vQ)}, 0x7fffffff, {v(vQ)}
        v_add_f32 {v(vQ)}, {hx(f2u(1e-5))}, {v(vQ)}
        v_rsq_f32 {v(vA)}, {v(vQ)}
        s_lshl_b32 s{sA}, s{sWAVE}, 8
        s_add_u32 s{sA}, s{sA}, {STW}
        v_and_b32 {v(vT0)}, 31, {v(vLANE)}
        v_lshl_add_u32 {v(vT0)}, {v(vT0)}, 2, s{sA}
        v_lshrrev_b32 {v(vT1)}, 5, {v(vLANE)}
        v_lshl_add_u32 {v(vT1)}, {v(vT1)}, 4, s{sA}
        ds_write_b32 {v(vT0)}, {v(vA)}
        ds_write_b32 {v(vT0)}, {v(vNM)} offset:128""")
        self.lg.issue("stw"); self.lg.issue("stw")
    def stats_read(self, which):
        for q in range(4):
            self.a(f"ds_read_b128 {v((SA,SB)[which]+4*q,4)}, {v(vT1)} offset:{128*which+32*q}"); self.lg.issue("st")

    def tr_pair(self, dst, s, seg, tag):
        base, off, d = ((vTQ, s * 1024, 256), (vTK, s * 2048, 512), (vTV, s * 2048, 512))[seg]
        self.a(f"ds_read_b64_tr_b16 {v(dst,2)}, {v(base)} offset:{off}"); self.lg.issue(tag)
        self.a(f"ds_read_b64_tr_b16 {v(dst+2,2)}, {v(base)} offset:{off+d}"); self.lg.issue(tag)

    def xload(self, s):
        a = self.a
        if s and s % 4 == 0: a(f"s_add_u32 s{sOFF}, s{sOFF}, 4096")
        a(f"buffer_load_dwordx4 {v(XF+4*s,4)}, {v(vL16)}, {srd(S_WS)}, s{sOFF} offen offset:{(s%4)*1024} sc1")
        self.vm.issue(("x", s))

    def kv_loop(self, typ, inserts={}):
        D = self.D
        for s in range(28):
            p = s & 1
            if s + 1 < 28:
                self.tr_pair(WF + 8 * (1 - p), s + 1, 1, ("w", s + 1)); self.tr_pair(WF + 8 * (1 - p) + 4, s + 1, 2, ("w", s + 1))
            self.wait(vm=("x", s), lg=("w", s))
            wk, wv, x = WF + 8 * p, WF + 8 * p + 4, XF + 4 * s
            if typ == "A": self.mfma(ACK, x, wk, ACK if s else None)
            else: self.mfma(ACK, wk, x, ACK if s else None)
            self.mfma(ACV, x, wv, ACV if s else None)
            if s + D < 28: self.xload(s + D)
            if s in inserts: inserts[s]()

    def q_loop(self, inserts={}):
        for s in range(3): self.tr_pair(WF + 4 * s, s, 0, ("w", s))
        for s in range(28):
            if s + 3 < 28: self.tr_pair(WF + 4 * ((s + 3) & 3), s + 3, 0, ("w", s + 3))
            self.wait(lg=("w", s))
            self.mfma(ACQ, WF + 4 * (s & 3), XF + 4 * s, ACQ if s else None)
            if s in inserts: inserts[s]()

    def load_cs_lane(self, typ):
        base = CSA + (0 if typ == "A" else 384)
        self.a(f"""v_and_b32 {v(vT0)}, 31, {v(vLANE)}
        v_lshlrev_b32 {v(vT0)}, 2, {v(vT0)}
        v_add_u32 {v(vT0)}, {base}, {v(vT0)}
        ds_read_b32 {v(vCS0)}, {v(vT0)} offset:128
        ds_read_b32 {v(vCS1)}, {v(vT0)} offset:256""")
        self.lg.issue("cs"); self.lg.issue("cs")
    def load_cs_reg(self, typ, seg, dst=CS16):
        a = self.a
        base = CSA + (0 if typ == "A" else 384) + seg * 128
        a(f"""v_lshrrev_b32 {v(vT0)}, 5, {v(vLANE)}
        v_lshlrev_b32 {v(vT0)}, 4, {v(vT0)}
        v_add_u32 {v(vT0)}, {base}, {v(vT0)}""")
        for q in range(4):
            a(f"ds_read_b128 {v(dst+4*q,4)}, {v(vT0)} offset:{32*q}"); self.lg.issue("cs16")

    def fix_feat(self, acc, vcs):
        pair = vcs & ~1; sel = vcs & 1
        for r in range(0, 16, 2):
            self.a(f"v_pk_fma_f32 {v(acc+r,2)}, {v(SB+r,2)}, {v(pair,2)}, {v(acc+r,2)} op_sel:[0,{sel},0] op_sel_hi:[1,{sel},1]")
    def fix_tok(self, acc, cs=CS16):
        pair = vNM & ~1; sel = vNM & 1
        for r in range(0, 16, 2):
            self.a(f"v_pk_fma_f32 {v(acc+r,2)}, {v(cs+r,2)}, {v(pair,2)}, {v(acc+r,2)} op_sel:[0,{sel},0] op_sel_hi:[1,{sel},1]")
    def scale_lane(self, acc, vs):
        pair = vs & ~1; sel = vs & 1
        for r in range(0, 16, 2):
            self.a(f"v_pk_mul_f32 {v(acc+r,2)}, {v(acc+r,2)}, {v(pair,2)} op_sel:[0,{sel}] op_sel_hi:[1,{sel}]")
    def phi(self, acc, tmp, dst):
        a = self.a
        for r in range(0, 16, 2):
            a(f"v_pk_mul_f32 {v(tmp+r,2)}, {v(acc+r,2)}, s[{sK0}:{sK0+1}] op_sel:[0,0] op_sel_hi:[1,0]")
        for r in range(16):
            a(f"v_exp_f32_e64 {v(tmp+r)}, {v(tmp+r)} clamp")
            a(f"v_max_f32 {v(acc+r)}, s{sK0+1}, {v(acc+r)}")
        for r in range(0, 16, 2):
            a(f"v_pk_add_f32 {v(acc+r,2)}, {v(acc+r,2)}, {v(tmp+r,2)}")
        self.pack(acc, dst)
    def pack(self, src, dst):
        for i in range(8):
            self.a(f"v_cvt_pk_bf16_f32 {v(dst+i)}, {v(src+2*i)}, {v(src+2*i+1)}")
    def sumsq(self, acc, dst):
        a = self.a
        a(f"v_pk_mul_f32 {v(vCS0,2)}, {v(acc,2)}, {v(acc,2)}")
        for r in range(2, 16, 2):
            a(f"v_pk_fma_f32 {v(vCS0,2)}, {v(acc+r,2)}, {v(acc+r,2)}, {v(vCS0,2)}")
        a(f"""v_add_f32 {v(dst)}, {v(vCS0)}, {v(vCS1)}
        v_add_f32 {v(vT1)}, {v(vCS0)}, {v(vCS1)}
        v_permlane32_swap_b32 {v(dst)}, {v(vT1)}
        v_add_f32 {v(dst)}, {v(dst)}, {v(vT1)}""")

    def finalize_o(self, D, P, eps):
        a = self.a
        a(f"""v_mov_b32 {v(vT0)}, {v(D+12)}
        v_mov_b32 {v(vT1)}, {v(D+12)}
        s_lshl_b32 s{sB_}, s{sT}, 4
        s_add_u32 s{sB_}, s{sB_}, s{sH}
        v_permlane32_swap_b32 {v(vT0)}, {v(vT1)}""")
        if eps: a(f"v_add_f32 {v(vT1)}, {hx(f2u(1e-6))}, {v(vT1)}")
        a(f"""v_rcp_f32 {v(vT0)}, {v(vT1)}
        s_lshl_b32 s{sB_}, s{sB_}, 11
        s_add_u32 s{sB_}, s{sB_}, s{sLB}
        s_add_u32 s{sB_}, s{sB_}, {hx(OFF_O)}""")
        pr = vT0
        for r in range(0, 8, 2):
            a(f"v_pk_mul_f32 {v(D+r,2)}, {v(D+r,2)}, {v(pr,2)} op_sel:[0,0] op_sel_hi:[1,0]")
        for i in range(4): a(f"v_cvt_pk_bf16_f32 {v(P+i)}, {v(D+2*i)}, {v(D+2*i+1)}")
        a(f"buffer_store_dwordx4 {v(P,4)}, {v(vL16)}, {srd(S_WS)}, s{sB_} offen sc1")
        for r in range(8, 16, 2):
            a(f"v_pk_mul_f32 {v(D+r,2)}, {v(D+r,2)}, {v(pr,2)} op_sel:[0,0] op_sel_hi:[1,0]")
        a(f"v_mov_b32 {v(P+6)}, 0\nv_mov_b32 {v(P+7)}, 0")
        for i in range(4, 6): a(f"v_cvt_pk_bf16_f32 {v(P+i)}, {v(D+2*i)}, {v(D+2*i+1)}")
        self.exec_lo()
        for i in range(6, 8): a(f"v_cvt_pk_bf16_f32 {v(P+i)}, {v(D+2*i)}, {v(D+2*i+1)}")
        self.exec_all()
        a(f"buffer_store_dwordx4 {v(P+4,4)}, {v(vL16)}, {srd(S_WS)}, s{sB_} offen offset:1024 sc1")
        self.vm.issue("o"); self.vm.issue("o")
        rb = self.opt.get("rb", 0)
        if rb & 1:
            if rb & 4: a("s_waitcnt vmcnt(0)")
            a(f"""buffer_load_dwordx4 {v(232,4)}, {v(vL16)}, {srd(S_WS)}, s{sB_} offen sc1
            buffer_load_dwordx4 {v(236,4)}, {v(vL16)}, {srd(S_WS)}, s{sB_} offen offset:1024 sc1""")

    def prefill(self, L, R, parts="ox", thr=False, track=False):
        a = self.a
        LB = (L + 1) << 24
        def st(so, off):
            a(f"buffer_store_dwordx4 {v(R,4)}, {v(vL16)}, {srd(S_WS)}, s{so} offen offset:{off} sc1")
            if thr: a(f"s_waitcnt vmcnt({self.thr})")
            if track: self.vm.issue("pf")
        if "o" in parts:
            a(f"""s_lshl_b32 s{sC_}, s{sT}, 4
            s_add_u32 s{sC_}, s{sC_}, s{sH}
            s_lshl_b32 s{sC_}, s{sC_}, 11
            s_add_u32 s{sC_}, s{sC_}, {hx(LB+OFF_O)}""")
            st(sC_, 0); st(sC_, 1024)
            if L % 2 == 0:
                a(f"""s_lshl_b32 s{sC_}, s{sIM}, 11
                s_and_b32 s{sSO0}, s{sWAVE}, 1
                s_lshl_b32 s{sSO0}, s{sSO0}, 10
                s_add_u32 s{sC_}, s{sC_}, s{sSO0}
                s_add_u32 s{sC_}, s{sC_}, {hx(LB+OFF_KV)}""")
                st(sC_, 0)
            elif not self.kd:
                a(f"""s_lshl_b32 s{sC_}, s{sH}, 6
                s_add_u32 s{sC_}, s{sC_}, s{sT}
                s_lshl_b32 s{sC_}, s{sC_}, 12
                s_add_u32 s{sC_}, s{sC_}, {hx(LB+OFF_KV)}""")
                for i in range(4): st(sC_, 1024 * i)
        if "x" in parts and L < 3:
            lab = a.label("Lpf")
            a(f"""s_cmp_eq_u32 s{sISWO}, 0
            s_cbranch_scc1 {lab}
            s_mul_i32 s{sC_}, s{sTW}, 14
            s_add_u32 s{sC_}, s{sC_}, s{sC}
            s_lshl_b32 s{sSO0}, s{sC_}, 11
            s_add_u32 s{sSO0}, s{sSO0}, {hx(LB+OFF_X)}
            s_lshl_b32 s{sC_}, s{sC_}, 8
            s_add_u32 s{sC_}, s{sC_}, {hx(LB+OFF_ST)}""")
            st(sSO0, 0); st(sSO0, 1024)
            a("s_mov_b64 exec, 0xffff")
            st(sC_, 0)
            a(f"s_mov_b64 exec, -1\n{lab}:")

    def qkv_front(self, redo):
        a = self.a
        D = self.D
        a(f"""s_add_u32 s{sPF}, s{sFB}, s{sGR}
        s_add_u32 s{sPF}, s{sPF}, {hx(2*SEAM + DRN - LBLK)}
        s_mov_b32 s{sRETRY}, 0""")
        self.wait_go(-1)
        self.stamp(1)
        a(f"""{redo}:
        s_mul_i32 s{sOFF}, s{sT}, 28672
        s_add_u32 s{sOFF}, s{sOFF}, s{sLB}
        s_sub_u32 s{sOFF}, s{sOFF}, 0x1000000""")
        self.xload(0); self.xload(1)
        a(f"""v_lshrrev_b32 {v(vCS0)}, 5, {v(vLANE)}
        v_mul_u32_u24 {v(vCS0)}, {7*256}, {v(vCS0)}
        v_and_b32 {v(vCS1)}, 31, {v(vLANE)}
        v_lshl_add_u32 {v(vCS0)}, {v(vCS1)}, 3, {v(vCS0)}
        s_mul_i32 s{sB_}, s{sT}, {14*256}
        s_add_u32 s{sB_}, s{sB_}, s{sLB}
        s_add_u32 s{sB_}, s{sB_}, {hx(OFF_ST - 0x1000000)}""")
        for i in range(7):
            a(f"buffer_load_dwordx2 {v(ACQ+2*i,2)}, {v(vCS0)}, {srd(S_WS)}, s{sB_} offen offset:{256*i} sc1"); self.vm.issue("st")
        for s in range(2, D): self.xload(s)
        self.tr_pair(WF, 0, 1, ("w", 0)); self.tr_pair(WF + 4, 0, 2, ("w", 0))
        def st0():
            for i in range(1, 7):
                a(f"v_pk_add_f32 {v(ACQ,2)}, {v(ACQ,2)}, {v(ACQ+2*i,2)}")
        return {2: st0, 3: lambda: self.stats_finish(ACQ, ACQ + 1), 5: lambda: self.stats_read(0), 7: lambda: self.stats_read(1)}

    def first_qkv(self):
        a = self.a
        a(f"""s_mov_b32 s{sRETRY}, 1
        s_mov_b32 s{sPF}, 0
        s_mul_i32 s{sOFF}, s{sT}, 28672
        v_lshrrev_b32 v22, 3, {v(vLANE)}
        v_and_b32 v23, 7, {v(vLANE)}
        v_lshrrev_b32 v24, 4, {v(vLANE)}
        v_xor_b32 v23, v23, v24
        v_mul_u32_u24 v22, 896, v22
        v_lshl_add_u32 {v(SB)}, v23, 4, v22
        v_xor_b32 v23, 4, v23
        v_lshl_add_u32 {v(SB+1)}, v23, 4, v22
        s_lshl_b32 s{sE}, s{sWAVE}, 14
        s_add_u32 s{sE}, s{sE}, {R2}
        s_lshl_b32 s{sXC}, s{sR7}, 7
        s_add_u32 s{sXC}, s{sXC}, s{sOFF}
        s_add_u32 s{sLIM}, s{sOFF}, 896""")
        def xdma(c):
            for i in range(4):
                a(f"""s_add_u32 m0, s{sE}, {(c&3)*4096+i*1024}
                s_add_u32 s{sA}, s{sXC}, {i*8*896}
                buffer_load_dwordx4 {v(SB+(i&1))}, {srd(S_X)}, s{sA} offen lds""")
                self.vm.issue(("xc", c))
            a(f"""s_add_u32 s{sXC}, s{sXC}, 128
            s_cmp_eq_u32 s{sXC}, s{sLIM}
            s_cselect_b32 s{sXC}, s{sOFF}, s{sXC}""")
        NX0 = self.opt.get("nx0", 4)
        for c in range(NX0): xdma(c)
        a(f"""s_mov_b32 s{sB_}, 0x3f803f80
        v_and_b32 v22, 31, {v(vLANE)}
        v_lshrrev_b32 v23, 5, {v(vLANE)}
        v_bfe_u32 v24, {v(vLANE)}, 1, 3
        v_xor_b32 v23, v23, v24
        v_lshlrev_b32 v23, 4, v23
        v_lshl_add_u32 v22, v22, 7, v23""")
        for i in range(4):
            a(f"v_xor_b32 {v(SB+2+i)}, {32*i}, v22\nv_add_u32 {v(SB+2+i)}, s{sE}, {v(SB+2+i)}")
        for i in range(4): a(f"v_mov_b32 {v(ACQ+i)}, 0\nv_mov_b32 {v(ACQ+4+i)}, -1")
        self.stamp(12)
        def xstage(c):
            self.wait(vm=("xc", c))
            for i in range(4):
                a(f"ds_read_b128 {v(XF+16*c+4*i,4)}, {v(SB+2+i)} offset:{(c&3)*4096}"); self.lg.issue(("xr", i))
            for i in range(4):
                self.wait(lg=("xr", i))
                if i == 3 and c + NX0 < 7: xdma(c + NX0)
                for j in range(4):
                    r = XF + 16 * c + 4 * i + j
                    a(f"v_dot2_f32_bf16 {v(ACQ+(j&1)*2)}, {v(r)}, s{sB_}, {v(ACQ+(j&1)*2)}")
                    a(f"v_dot2_f32_bf16 {v(ACQ+(j&1)*2+1)}, {v(r)}, {v(r)}, {v(ACQ+(j&1)*2+1)}")
            if c == 7 - NX0:
                a(f"""s_mul_i32 s{sA}, s{sTW}, 28672
                s_lshl_b32 s{sC_}, s{sC}, 6
                s_add_u32 s{sA}, s{sA}, s{sC_}
                buffer_load_dwordx4 {v(ACQ+8,4)}, {v(vRM)}, {srd(S_X)}, s{sA} offen
                buffer_load_dwordx4 {v(ACQ+12,4)}, {v(vRM)}, {srd(S_X)}, s{sA} offen offset:32""")
                self.vm.issue("res"); self.vm.issue("res")
                self.prefill(0, ACQ + 4, parts="o", track=True)
            if c == 6:
                a(f"v_pk_add_f32 {v(ACQ,2)}, {v(ACQ,2)}, {v(ACQ+2,2)}")
                self.stats_finish(ACQ, ACQ + 1)
                self.stats_read(0); self.stats_read(1)
                self.wait_all(vm=False)
        def wstage(c):
            self.barrier()
            if c == 0: self.stamp(2)
            WB = (WF, WF + 8, CS16, CS16 + 8)
            for i in range(3):
                self.tr_pair(WB[i], 4 * c + i, 1, ("w", i)); self.tr_pair(WB[i] + 4, 4 * c + i, 2, ("w", i))
            for i in range(4):
                s = 4 * c + i
                self.wait(lg=("w", i))
                if i == 0:
                    self.tr_pair(WB[3], 4 * c + 3, 1, ("w", 3)); self.tr_pair(WB[3] + 4, 4 * c + 3, 2, ("w", 3))
                self.mfma(ACK, XF + 4 * s, WB[i], ACK if s else None)
                self.mfma(ACV, XF + 4 * s, WB[i] + 4, ACV if s else None)
            if c == 5:
                R = ACQ + 8
                self.wait(vm="res")
                for f in range(2):
                    a(f"v_permlane32_swap_b32 {v(R+4*f)}, {v(R+4*f+2)}\nv_permlane32_swap_b32 {v(R+4*f+1)}, {v(R+4*f+3)}")
                for i in range(8):
                    a(f"v_lshlrev_b32 {v(XRES+2*i)}, 16, {v(R+i)}\nv_and_b32 {v(XRES+2*i+1)}, 0xffff0000, {v(R+i)}")
        AH = self.opt.get("ah", 3)
        for c in range(AH): xstage(c)
        for c in range(7):
            if c + AH < 7: xstage(c + AH)
            wstage(c)

    def layer_A(self):
        a = self.a
        a("L_layerA:")
        a(f"""s_mov_b32 s{sK0}, {hx(f2u(LOG2E))}
        s_mov_b32 s{sK0+1}, {hx(f2u(1e-6))}
        s_cmp_eq_u32 s{sL}, 0
        s_cbranch_scc0 L_A_later""")
        self.first_qkv()
        self.stamp(11)
        self.barrier()
        self.load_cs_lane("A")
        self.wait_all()
        a("s_branch L_A_epi\nL_A_later:")
        self.vm.clear(); self.lg.clear()
        ins = self.qkv_front("L_A_redo")
        ins[9] = lambda: self.load_cs_lane("A")
        self.kv_loop("A", inserts=ins)
        self.drained_late(sGT, 2 * SEAM + DRN - LBLK, True)
        a("L_A_epi:")
        self.vm.clear(); self.lg.clear()
        self.stamp(3)
        self.fix_feat(ACK, vCS0)
        self.fix_feat(ACV, vCS1)
        for r in range(0, 16, 2):
            a(f"v_pk_fma_f32 {v(ACK+r,2)}, {v(ACK+r,2)}, {v(SA+r,2)}, s[{sK0}:{sK0+1}] op_sel:[0,0,1] op_sel_hi:[1,1,1]")
        for r in range(0, 16, 2):
            a(f"v_pk_mul_f32 {v(ACV+r,2)}, {v(ACV+r,2)}, {v(SA+r,2)}")
        self.pack(ACV, WF + 8)
        for i in range(8):
            a(f"v_cndmask_b32 {v(WF+8+i)}, {v(WF+8+i)}, {v(vPADV)}, s[{sMPAD}:{sMPAD+1}]")
        self.phi(ACK, CS16, WF)
        self.mfma(ACK, WF, WF + 8, None)
        self.mfma(ACK, WF + 4, WF + 12, ACK)
        a(f"""s_lshl_b32 s{sA}, s{sWAVE}, 12
        s_add_u32 s{sA}, s{sA}, {SCR}
        v_add_u32 {v(vCS0)}, s{sA}, {v(vL16)}
        s_lshl_b32 s{sA}, s{sWAVE}, 11
        s_add_u32 s{sA}, s{sA}, {SCR}
        v_add_u32 {v(vCS1)}, s{sA}, {v(vL16)}
        s_lshl_b32 s{sC_}, s{sIM}, 11
        s_lshl_b32 s{sA}, s{sWAVE}, 10
        s_add_u32 s{sC_}, s{sC_}, s{sA}
        s_add_u32 s{sC_}, s{sC_}, s{sLB}
        s_add_u32 s{sC_}, s{sC_}, {hx(OFF_KV)}""")
        self.nan_check(ACK, "L_A_redo", 14)
        for q in range(4):
            a(f"ds_write_b128 {v(vCS0)}, {v(ACK+4*q,4)} offset:{1024*q}")
        self.stamp(13)
        self.wait_all(vm=False)
        self.stamp(14)
        self.barrier()
        self.stamp(7)
        a(f"""s_cmp_ge_u32 s{sWAVE}, 2
        s_cbranch_scc1 L_A_q""")
        for w in range(4):
            a(f"ds_read_b128 {v(ACK+8*w,4)}, {v(vCS1)} offset:{4096*w}\nds_read_b128 {v(ACK+8*w+4,4)}, {v(vCS1)} offset:{4096*w+1024}")
        for w in range(1, 4):
            a(f"s_waitcnt lgkmcnt({6-2*w})")
            for r in range(0, 8, 2):
                a(f"v_pk_add_f32 {v(ACK+r,2)}, {v(ACK+r,2)}, {v(ACK+8*w+r,2)}")
        for i in range(4):
            a(f"v_cvt_pk_bf16_f32 {v(ACK+8+i)}, {v(ACK+2*i)}, {v(ACK+2*i+1)}")
        a(f"""v_mov_b32 {v(vT0)}, 1
        buffer_store_dwordx4 {v(ACK+8,4)}, {v(vL16)}, {srd(S_WS)}, s{sC_} offen sc1""")
        if not self.ek: self.ctr_add(sGH, 0, vT0)
        a("L_A_q:")
        self.vm.clear(); self.lg.clear()
        self.stamp(4)
        ID = ACV
        def ident(i):
            d0 = 16 * (i >> 2) + 8 * ((i & 3) >> 1) + 2 * (i & 1)
            a(f"""v_cmp_eq_u32 vcc, {d0}, {v(vCS1)}
            v_cmp_eq_u32 s[{sE}:{sE+1}], {d0+1}, {v(vCS1)}
            v_cndmask_b32 {v(ID+i)}, 0, {v(ID+8)}, vcc
            v_cndmask_b32 {v(ID+i)}, {v(ID+i)}, {v(ID+9)}, s[{sE}:{sE+1}]""")
        def ident0():
            a(f"""v_lshrrev_b32 {v(vCS0)}, 5, {v(vLANE)}
            v_and_b32 {v(vCS1)}, 31, {v(vLANE)}
            v_lshlrev_b32 {v(vCS0)}, 2, {v(vCS0)}
            v_sub_u32 {v(vCS1)}, {v(vCS1)}, {v(vCS0)}
            v_mov_b32 {v(ID+8)}, 0x3f80
            v_mov_b32 {v(ID+9)}, 0x3f800000""")
        ins = {1: ident0, 24: lambda: self.load_cs_reg("A", 0)}
        for i in range(8): ins[3 + 2 * i] = (lambda i=i: ident(i))
        self.q_loop(ins)
        self.drained(sGH, 0)
        a(f"""s_lshl_b32 s{sOFF}, s{sH}, 2
        s_add_u32 s{sOFF}, s{sOFF}, s{sWAVE}
        s_lshl_b32 s{sOFF}, s{sOFF}, 13
        s_add_u32 s{sOFF}, s{sOFF}, s{sLB}
        s_add_u32 s{sOFF}, s{sOFF}, {hx(OFF_KV)}
        s_add_u32 s{sOFFMAX}, s{sOFF}, 4096
        s_add_u32 s{sPF}, s{sFB}, s{sGH}
        s_add_u32 s{sPF}, s{sPF}, {DRN}
        s_mov_b32 s{sRETRY}, 0""")
        self.wait_all(vm=False)
        self.fix_tok(ACQ)
        pair = vA & ~1; sel = vA & 1
        for r in range(0, 16, 2):
            a(f"v_pk_fma_f32 {v(ACQ+r,2)}, {v(ACQ+r,2)}, {v(pair,2)}, s[{sK0}:{sK0+1}] op_sel:[0,{sel},1] op_sel_hi:[1,{sel},1]")
        PQ = WF
        self.stamp(5)
        self.barrier()
        self.stamp(6)
        a("L_A_mredo:")
        for i in range(8):
            so = sOFF if i < 4 else sOFFMAX
            a(f"buffer_load_dwordx4 {v(XF+4*i,4)}, {v(vL16)}, {srd(S_WS)}, s{so} offen offset:{(i&3)*1024} sc1"); self.vm.issue(("p", i))
        a(f"""s_cmp_lg_u32 s{sRETRY}, 0
        s_cbranch_scc1 L_A_nophi""")
        self.phi(ACQ, CS16, PQ)
        self.exec_hi()
        a(f"v_mov_b32 {v(PQ+6)}, 0\nv_mov_b32 {v(PQ+7)}, 0")
        self.exec_all()
        a(f"""L_A_nophi:
        s_lshl_b32 s{sA}, s{sWAVE}, 11
        s_add_u32 s{sA}, s{sA}, {SCR}
        v_add_u32 {v(vCS0)}, s{sA}, {v(vL16)}
        v_add_u32 {v(vCS1)}, {SCR}, {v(vL16)}""")
        for i in range(8):
            self.wait(vm=("p", i))
            self.mfma(ACK, ID + 4 * (i & 1), XF + 4 * i, ACK if i else None)
        self.nan_check(ACK, "L_A_mredo", 16)
        self.pack(ACK, XF + 64)
        a(f"ds_write_b128 {v(vCS0)}, {v(XF+64,4)}\nds_write_b128 {v(vCS0)}, {v(XF+68,4)} offset:1024")
        self.wait_all(vm=False)
        self.barrier()
        for i in range(8):
            a(f"ds_read_b128 {v(XF+4*i,4)}, {v(vCS1)} offset:{1024*i}")
        for i in range(8):
            a(f"s_waitcnt lgkmcnt({7-i})")
            acc = ACQ if i & 1 else ACK
            self.mfma(ACQ, XF + 4 * i, PQ + 4 * (i & 1), ACQ if i else None)
        if self.eo: self.barrier()
        self.finalize_o(ACQ, ACK, True)
        if not self.eo: self.barrier()
        a("s_branch L_wo")

    def layer_B(self):
        a = self.a
        Q = 32; O = 64
        a("L_layerB:")
        self.vm.clear(); self.lg.clear()
        ins = self.qkv_front("L_B_redo")
        ins[9] = lambda: self.load_cs_lane("B")
        ins[11] = lambda: self.load_cs_reg("B", 1)
        def padf():
            a(f"v_and_b32 {v(vCS0)}, 0xffff0000, {v(vPADV)}")
        ins[14] = padf
        self.kv_loop("B", inserts=ins)
        self.drained_late(sGT, 2 * SEAM + DRN - LBLK, True)
        a(f"""s_cmp_lg_u32 s{sL}, 1
        s_cbranch_scc1 L_B_cs
        s_cmp_lg_u32 s{sRETRY}, 0
        s_cbranch_scc1 L_B_cs""")
        self.barrier()
        self.load_cs_lane("B"); self.load_cs_reg("B", 1)
        self.wait_all(vm=False)
        padf()
        a("L_B_cs:")
        self.stamp(3)
        a(f"""s_lshl_b32 s{sC_}, s{sH}, 6
        s_add_u32 s{sC_}, s{sC_}, s{sT}
        s_lshl_b32 s{sC_}, s{sC_}, 12
        s_add_u32 s{sC_}, s{sC_}, s{sLB}
        s_add_u32 s{sC_}, s{sC_}, {hx(OFF_KV)}""")
        self.fix_tok(ACK)
        self.scale_lane(ACK, vA)
        self.nan_check(ACK, "L_B_redo", 14)
        KO = CS16
        self.pack(ACK, KO)
        self.exec_hi()
        a(f"v_mov_b32 {v(KO+6)}, 0x3f803f80\nv_mov_b32 {v(KO+7)}, 0x3f80")
        self.exec_all()
        for i in range(2):
            a(f"buffer_store_dwordx4 {v(KO+4*i,4)}, {v(vL16)}, {srd(S_WS)}, s{sC_} offen offset:{1024*i} sc1")
        self.fix_feat(ACV, vCS1)
        for r in range(0, 16, 2):
            a(f"v_pk_fma_f32 {v(ACV+r,2)}, {v(ACV+r,2)}, {v(SA+r,2)}, {v(vCS0,2)} op_sel:[0,0,0] op_sel_hi:[1,1,0]")
        self.pack(ACV, KO + 8)
        for i in range(2, 4):
            a(f"buffer_store_dwordx4 {v(KO+4*i,4)}, {v(vL16)}, {srd(S_WS)}, s{sC_} offen offset:{1024*i} sc1")
        self.sumsq(ACK, vT0)
        for sh in (1, 2, 4, 8):
            a(f"v_max_f32_dpp {v(vT0)}, {v(vT0)}, {v(vT0)} row_ror:{sh} row_mask:0xf bank_mask:0xf")
        a(f"""v_readlane_b32 s{sC_}, {v(vT0)}, 16
        s_add_u32 s{sA}, s{sFB}, s{sGH}
        s_add_u32 s{sA}, s{sA}, s{sWL}
        s_lshl_b32 s{sB_}, s{sRB}, 2
        s_add_u32 s{sA}, s{sA}, s{sB_}
        v_max3_u32 {v(vCS0)}, s{sC_}, {v(vT0)}, 1""")
        def kvhint():
            if self.kd: a("s_waitcnt vmcnt(0)")
            a(f"""s_mov_b64 exec, 1
            buffer_atomic_add {v(vCS0)}, off, {srd(S_WS)}, s{sA} sc1
            s_mov_b64 exec, -1""")
        if not self.kd: kvhint()
        self.stamp(4)
        self.load_cs_reg("B", 0, SB)
        ins = {}
        for s_ in range(8, 24):
            ins[s_ + 1] = (lambda s_=s_: [a(f"v_mov_b32 {v(XF+4*s_+j)}, 0") for j in range(4)])
        if self.kd:
            prev = ins.get(self.kd)
            ins[self.kd] = lambda: ((prev() if prev else None), kvhint())
        self.q_loop(ins)
        if not self.kd: self.drained(sGH, 0)
        self.fix_tok(ACQ, SB)
        a(f"v_mul_f32 {v(vA)}, {hx(f2u(QSCALE))}, {v(vA)}")
        self.scale_lane(ACQ, vA)
        self.pack(ACQ, WF)
        self.sumsq(ACQ, vT0)
        a(f"v_sqrt_f32 {v(vT0)}, {v(vT0)}")
        self.exec_hi()
        a(f"v_mov_b32 {v(WF+6)}, {v(vT0)}")
        self.exec_all()
        a(f"""s_lshl_b32 s{sA}, s{sWAVE}, 11
        s_add_u32 s{sA}, s{sA}, {SCR}
        v_add_u32 {v(vT0)}, s{sA}, {v(vL16)}
        ds_write_b128 {v(vT0)}, {v(WF,4)}
        ds_write_b128 {v(vT0)}, {v(WF+4,4)} offset:1024
        s_add_u32 s{sPF}, s{sFB}, s{sGH}
        s_add_u32 s{sPF}, s{sPF}, {DRN}""")
        self.attention()

    def attention(self):
        a = self.a
        Q = 32; O = 64; S = 128; P = 160
        SL = (CS16, 168, 184, 200)
        for i in range(4): a(f"v_mov_b32 {v(P+4+i)}, 0\nv_mov_b32 {v(SL[3]+12+i)}, 0")
        for i in range(4):
            a(f"""s_add_u32 s{sA}, s{sWAVE}, {i+1}
            s_and_b32 s{sA}, s{sA}, 3
            s_mul_i32 s{sB_}, s{sA}, 12288
            s_lshl_b32 s{sA}, s{sA}, 11
            s_add_u32 s{sA}, s{sA}, {SCR}
            v_add_u32 {v(S+16+i)}, s{sA}, {v(vL16)}
            v_add_u32 {v(216+i)}, s{sB_}, {v(vL16)}""")
        a(f"""s_lshl_b32 s{sOFFMAX}, s{sH}, 18
        s_lshl_b32 s{sA}, s{sWAVE}, 12
        s_add_u32 s{sOFFMAX}, s{sOFFMAX}, s{sA}
        s_add_u32 s{sOFFMAX}, s{sOFFMAX}, s{sLB}
        s_add_u32 s{sOFFMAX}, s{sOFFMAX}, {hx(OFF_KV)}
        s_lshl_b32 s{sG}, s{sRB}, 14
        s_add_u32 s{sG}, s{sG}, s{sOFFMAX}
        s_sub_u32 s{sOFF}, s{sOFFMAX}, 0x4000
        s_mul_i32 s{sA}, s{sL}, 12
        s_add_u32 s{sA}, s{sA}, {GO}
        v_mov_b32 {v(vT1)}, s{sA}""")
        def kvload(slot, j):
            a(f"buffer_load_dwordx4 {v(SL[slot]+4*j,4)}, {v(vL16)}, {srd(S_WS)}, s{sOFF} offen offset:{1024*j} sc1")
        def adv():
            a(f"s_add_u32 s{sOFF}, s{sOFF}, 0x4000\ns_cmp_eq_u32 s{sOFF}, s{sG}\ns_cselect_b32 s{sA}, 0x4000, 0\ns_add_u32 s{sOFF}, s{sOFF}, s{sA}")
        adv()
        a("s_waitcnt lgkmcnt(0)")
        self.stamp(5)
        self.barrier()
        self.stamp(6)
        a(f"ds_read_b32 {v(vT0)}, {v(vT1)}")
        for i in range(4):
            a(f"ds_read_b128 {v(Q+8*i,4)}, {v(S+16+i)}\nds_read_b128 {v(Q+8*i+4,4)}, {v(S+16+i)} offset:1024")
        for slot in (1, 2):
            for j in range(4): kvload(slot, j)
            adv()
        a(f"""s_waitcnt lgkmcnt(6)
        v_sqrt_f32 {v(vT0)}, {v(vT0)}
        v_mov_b32 {v(vT1)}, {hx(f2u(SHIFT_UP))}""")
        self.mfma(S, SL[0], Q, None)
        self.exec_hi()
        for i in range(4):
            if i: a(f"s_waitcnt lgkmcnt({6-2*i})")
            a(f"v_fma_f32 {v(Q+8*i+6)}, -{v(Q+8*i+6)}, {v(vT0)}, {v(vT1)}")
            a(f"v_cvt_pk_bf16_f32 {v(Q+8*i+6)}, {v(Q+8*i+6)}, 0")
        self.exec_all()
        self.mfma(S, SL[0] + 4, Q + 4, S)
        a(f"s_mov_b32 s{sLOOP}, 3\ns_mov_b32 s{sRETRY}, 0\ns_nop 9")
        def group(last):
            for n in range(16):
                kt, i = n >> 2, n & 3
                pk, pi = ((n - 1) & 15) >> 2, (n - 1) & 3
                nk, ni = ((n + 1) & 15) >> 2, (n + 1) & 3
                Sc, Sn = S + 16 * (n & 1), S + 16 * ((n + 1) & 1)
                ex = lambda r: a(f"v_exp_f32 {v(Sc+r)}, {v(Sc+r)}")
                cv = lambda j: a(f"v_cvt_pk_bf16_f32 {v(P+j)}, {v(Sc+2*j)}, {v(Sc+2*j+1)}")
                fin = last and n == 15
                wr = last and n >= 13
                dw = lambda q: a(f"ds_write_b128 {v(216+pi)}, {v(O+16*pi+4*q,4)} offset:{OX+4096*(2-pi)+1024*q}")
                ex(0); ex(1)
                self.mfma(O + 16 * pi, SL[pk] + 12, P + 4, O + 16 * pi)
                for r in range(2, 6): ex(r)
                if i == 3 and not fin:
                    a(f"s_waitcnt vmcnt({7 if not last else (7, 4, 0)[kt]})")
                if not fin: self.mfma(Sn, SL[nk], Q + 8 * ni, None)
                ex(6); ex(7); cv(0); cv(1); cv(2)
                if not fin: self.mfma(Sn, SL[nk] + 4, Q + 8 * ni + 4, Sn)
                cv(3)
                for r in range(8, 12): ex(r)
                self.mfma(O + 16 * i, SL[kt] + 8, P, O + 16 * i)
                if not last or kt == 0:
                    kvload((kt + 3) & 3, i)
                    if i == 3: adv()
                for r in range(12, 16):
                    ex(r)
                    if wr: dw(r - 12)
                for j in range(4, 8): cv(j)
        a("L_att:")
        group(False)
        a(f"""s_sub_u32 s{sLOOP}, s{sLOOP}, 1
        s_cmp_lg_u32 s{sLOOP}, 0
        s_cbranch_scc1 L_att""")
        group(True)
        self.mfma(O + 48, SL[3] + 12, P + 4, O + 48)
        self.stamp(7)
        a("s_waitcnt lgkmcnt(0)")
        self.barrier()
        for i in range(3):
            for q in range(4):
                a(f"ds_read_b128 {v(O+16*i+4*q,4)}, {v(219)} offset:{OX+4096*i+1024*q}")
        O = O + 48
        for i in range(3):
            a(f"s_waitcnt lgkmcnt({8-4*i})")
            for r in range(0, 16, 2):
                a(f"v_pk_add_f32 {v(O+r,2)}, {v(O+r,2)}, {v(O-48+16*i+r,2)}")
        if self.eo: self.barrier()
        a(f"v_pk_add_f32 {v(vCS0,2)}, {v(O,2)}, {v(O+2,2)}")
        for r in range(4, 16, 2):
            a(f"v_pk_add_f32 {v(vCS0,2)}, {v(vCS0,2)}, {v(O+r,2)}")
        a(f"""v_add_f32 {v(vCS0)}, {v(vCS0)}, {v(vCS1)}
        s_movk_i32 s{sB_}, 0x207
        v_cmp_class_f32_e64 s[{sK0}:{sK0+1}], {v(vCS0)}, s{sB_}
        s_mov_b32 exec_lo, 0
        v_cmp_nle_f32 vcc, {hx(f2u(L_MIN))}, {v(O+12)}
        s_mov_b32 exec_lo, -1
        s_or_b64 vcc, vcc, s[{sK0}:{sK0+1}]
        s_cbranch_vccnz L_slow
        L_att_fin:""")
        self.finalize_o(O, P, False)
        if not self.eo: self.barrier()

    def slow_path(self):
        a = self.a
        Q = 56; O = 112; S = 128; P = 160; KV = 168; M = 232
        a("L_slow:")
        if not self.kd:
            self.poll_ctr(f"s{sPF}", 16, vT0, four=vT1)
            a("buffer_inv sc1\ns_waitcnt vmcnt(0)")
        a(f"""s_mov_b32 s{sRETRY}, 1
        s_lshl_b32 s{sOFFMAX}, s{sH}, 18
        s_add_u32 s{sOFFMAX}, s{sOFFMAX}, s{sLB}
        s_add_u32 s{sOFFMAX}, s{sOFFMAX}, {hx(OFF_KV)}
        s_mov_b32 s{sOFF}, s{sOFFMAX}
        v_mov_b32 {v(M)}, 0xff800000""")
        self.exec_hi()
        a(f"v_mov_b32 {v(Q+6)}, 0\nv_mov_b32 {v(Q+7)}, 0")
        self.exec_all()
        a(f"""s_mov_b32 s{sLOOP}, 64
        L_slow1:
        buffer_load_dwordx4 {v(KV,4)}, {v(vL16)}, {srd(S_WS)}, s{sOFF} offen sc1
        buffer_load_dwordx4 {v(KV+4,4)}, {v(vL16)}, {srd(S_WS)}, s{sOFF} offen offset:1024 sc1
        s_add_u32 s{sOFF}, s{sOFF}, 4096
        s_waitcnt vmcnt(0)""")
        self.mfma(S, KV, Q, None); self.mfma(S, KV + 4, Q + 4, S)
        for r in range(0, 16, 2):
            a(f"v_max3_f32 {v(M)}, {v(S+r)}, {v(S+r+1)}, {v(M)}")
        a(f"""s_sub_u32 s{sLOOP}, s{sLOOP}, 1
        s_cmp_lg_u32 s{sLOOP}, 0
        s_cbranch_scc1 L_slow1
        v_mov_b32 {v(M+1)}, {v(M)}
        v_permlane32_swap_b32 {v(M)}, {v(M+1)}
        v_max_f32 {v(M)}, {v(M)}, {v(M+1)}
        v_sub_f32 {v(M)}, 0, {v(M)}
        v_and_b32 {v(M+1)}, 0xffff0000, {v(M)}
        v_sub_f32 {v(M)}, {v(M)}, {v(M+1)}
        v_and_b32 {v(M+2)}, 0xffff0000, {v(M)}
        v_sub_f32 {v(M)}, {v(M)}, {v(M+2)}
        v_lshrrev_b32 {v(M+1)}, 16, {v(M+1)}""")
        self.exec_hi()
        a(f"v_or_b32 {v(Q+6)}, {v(M+1)}, {v(M+2)}\nv_lshrrev_b32 {v(Q+7)}, 16, {v(M)}")
        self.exec_all()
        for i in range(16): a(f"v_mov_b32 {v(O+i)}, 0")
        a(f"""s_mov_b32 s{sOFF}, s{sOFFMAX}
        s_mov_b32 s{sLOOP}, 64
        L_slow2:""")
        for j in range(4):
            a(f"buffer_load_dwordx4 {v(KV+4*j,4)}, {v(vL16)}, {srd(S_WS)}, s{sOFF} offen offset:{1024*j} sc1")
        a(f"s_add_u32 s{sOFF}, s{sOFF}, 4096\ns_waitcnt vmcnt(0)")
        self.mfma(S, KV, Q, None); self.mfma(S, KV + 4, Q + 4, S)
        for r in range(16): a(f"v_exp_f32 {v(S+r)}, {v(S+r)}")
        self.pack(S, P)
        self.mfma(O, KV + 8, P, O); self.mfma(O, KV + 12, P + 4, O)
        a(f"""s_sub_u32 s{sLOOP}, s{sLOOP}, 1
        s_cmp_lg_u32 s{sLOOP}, 0
        s_cbranch_scc1 L_slow2
        s_branch L_att_fin""")

    def wo_phase(self):
        a = self.a
        OF = 32; SEND = 96; RECV = 112; PK = 128; KEEP = 144
        a("L_wo:")
        self.vm.clear(); self.lg.clear()
        self.stamp(8)
        a(f"""s_cmp_eq_u32 s{sISWO}, 0
        s_cbranch_scc1 L_wo_skip
        s_lshr_b32 s{sD}, s{sWAVE}, 1
        s_lshl_b32 s{sA}, s{sTW}, 1
        s_add_u32 s{sA}, s{sA}, s{sD}
        s_lshl_b32 s{sOFFMAX}, s{sA}, 14
        s_add_u32 s{sOFFMAX}, s{sOFFMAX}, s{sLB}
        s_add_u32 s{sOFFMAX}, s{sOFFMAX}, {hx(OFF_O)}
        s_add_u32 s{sPF}, s{sFB}, s{sGT}
        s_add_u32 s{sPF}, s{sPF}, {SEAM+DRN}
        s_mov_b32 s{sRETRY}, 0
        s_mul_i32 s{sSO0}, s{sTW}, 28672
        s_cmp_eq_u32 s{sL}, 3
        s_cbranch_scc1 L_wo_last
        s_lshl_b32 s{sB_}, s{sC}, 11
        s_add_u32 s{sSO0}, s{sSO0}, s{sB_}
        s_add_u32 s{sSO0}, s{sSO0}, s{sLB}
        s_add_u32 s{sSO1}, s{sSO0}, 1024
        v_mov_b32 {v(vXO)}, {v(vL16)}
        s_branch L_wo_addr
        L_wo_last:
        s_lshl_b32 s{sB_}, s{sC}, 6
        s_add_u32 s{sSO0}, s{sSO0}, s{sB_}
        s_add_u32 s{sSO1}, s{sSO0}, 32
        v_mov_b32 {v(vXO)}, {v(vRM)}
        s_mov_b32 s{S_XOUT}, s{PTR+12}
        s_mov_b32 s{S_XOUT+1}, s{PTR+13}
        s_mov_b32 s{S_XOUT+2}, 1835008
        L_wo_addr:
        s_lshl_b32 s{sA}, s{sWAVE}, 12
        s_add_u32 s{sB_}, s{sA}, {SCR}
        v_add_u32 {v(vA)}, s{sB_}, {v(vL16)}
        s_xor_b32 s{sA}, s{sA}, 8192
        s_add_u32 s{sA}, s{sA}, {SCR}
        v_add_u32 {v(vNM)}, s{sA}, {v(vL16)}
        s_mul_i32 s{sG}, s{sTW}, 14
        s_add_u32 s{sG}, s{sG}, s{sC}
        s_lshl_b32 s{sG}, s{sG}, 8
        s_add_u32 s{sG}, s{sG}, s{sLB}
        s_add_u32 s{sG}, s{sG}, {hx(OFF_ST)}
        v_lshlrev_b32 {v(vCS1)}, 3, {v(vLANE)}""")
        def wtr(dst, base, n):
            off = (28 * (n >> 1) + 16 * (n & 1)) * 128
            a(f"ds_read_b64_tr_b16 {v(dst,2)}, {v(base)} offset:{off}"); self.lg.issue(("w", n))
            a(f"ds_read_b64_tr_b16 {v(dst+2,2)}, {v(base)} offset:{off+1024}"); self.lg.issue(("w", n))
        self.wait_go(1)
        self.stamp(9)
        a(f"L_wo_redo:\ns_mov_b32 s{sOFF}, s{sOFFMAX}")
        for n in range(16):
            if n and n % 4 == 0: a(f"s_add_u32 s{sOFF}, s{sOFF}, 4096")
            a(f"buffer_load_dwordx4 {v(OF+4*n,4)}, {v(vL16)}, {srd(S_WS)}, s{sOFF} offen offset:{(n%4)*1024} sc1"); self.vm.issue(("o", n))
        wtr(WF, vWK, 0); wtr(WF + 4, vWS_, 0)
        for n in range(16):
            p = n & 1
            if n + 1 < 16:
                wtr(WF + 8 * (1 - p), vWK, n + 1); wtr(WF + 8 * (1 - p) + 4, vWS_, n + 1)
            self.wait(vm=("o", n), lg=("w", n))
            self.mfma(SEND, WF + 8 * p + 4, OF + 4 * n, SEND if n else None)
            self.mfma(KEEP, WF + 8 * p, OF + 4 * n, KEEP if n else XRES)
        self.drained_late(sGR, SEAM + DRN)
        self.nan_check(SEND, "L_wo_redo", 16)
        for q in range(4):
            a(f"ds_write_b128 {v(vA)}, {v(SEND+4*q,4)} offset:{1024*q}")
        a("s_waitcnt lgkmcnt(0)")
        self.barrier()
        self.stamp(12)
        for q in range(4):
            a(f"ds_read_b128 {v(RECV+4*q,4)}, {v(vNM)} offset:{1024*q}")
        for f in range(2):
            for q in range(2 * f, 2 * f + 2):
                a(f"s_waitcnt lgkmcnt({3-q})")
                a(f"v_pk_add_f32 {v(XRES+4*q,2)}, {v(KEEP+4*q,2)}, {v(RECV+4*q,2)}\nv_pk_add_f32 {v(XRES+4*q+2,2)}, {v(KEEP+4*q+2,2)}, {v(RECV+4*q+2,2)}")
            if f == 0 and self.ex >= 2:
                a("s_waitcnt lgkmcnt(0)")
                self.barrier()
            for i in range(4 * f, 4 * f + 4):
                a(f"v_cvt_pk_bf16_f32 {v(PK+i)}, {v(XRES+2*i)}, {v(XRES+2*i+1)}")
            a(f"v_permlane32_swap_b32 {v(PK+4*f)}, {v(PK+4*f+2)}\nv_permlane32_swap_b32 {v(PK+4*f+1)}, {v(PK+4*f+3)}")
            a(f"buffer_store_dwordx4 {v(PK+4*f,4)}, {v(vXO)}, {srd(S_XOUT)}, s{(sSO0,sSO1)[f]} offen sc1")
        a(f"""s_cmp_eq_u32 s{sL}, 3
        s_cbranch_scc1 L_fin""")
        if self.ex == 1: self.barrier()
        a(f"v_pk_add_f32 {v(RECV,2)}, {v(XRES,2)}, {v(XRES+2,2)}\nv_pk_mul_f32 {v(RECV+2,2)}, {v(XRES,2)}, {v(XRES,2)}")
        for r in range(2, 16, 2):
            if r >= 4: a(f"v_pk_add_f32 {v(RECV,2)}, {v(RECV,2)}, {v(XRES+r,2)}")
            a(f"v_pk_fma_f32 {v(RECV+2,2)}, {v(XRES+r,2)}, {v(XRES+r,2)}, {v(RECV+2,2)}")
        a(f"""v_add_f32 {v(RECV+4)}, {v(RECV)}, {v(RECV+1)}
        v_add_f32 {v(RECV+5)}, {v(RECV+2)}, {v(RECV+3)}
        v_add_f32 {v(RECV+6)}, {v(RECV)}, {v(RECV+1)}
        v_add_f32 {v(RECV+7)}, {v(RECV+2)}, {v(RECV+3)}
        v_permlane32_swap_b32 {v(RECV+4)}, {v(RECV+6)}
        v_permlane32_swap_b32 {v(RECV+5)}, {v(RECV+7)}
        v_pk_add_f32 {v(RECV+4,2)}, {v(RECV+4,2)}, {v(RECV+6,2)}""")
        self.exec_lo()
        a(f"buffer_store_dwordx2 {v(RECV+4,2)}, {v(vCS1)}, {srd(S_WS)}, s{sG} offen sc1")
        self.exec_all()
        rb = self.opt.get("rb", 0)
        if rb & 2:
            if rb & 4: a("s_waitcnt vmcnt(0)")
            a(f"""buffer_load_dwordx4 {v(ACK,4)}, {v(vL16)}, {srd(S_WS)}, s{sSO0} offen sc1
            buffer_load_dwordx4 {v(ACK+4,4)}, {v(vL16)}, {srd(S_WS)}, s{sSO1} offen sc1""")
        if self.ex == 0: self.barrier()
        self.stamp(10)
        a("s_branch L_next\nL_wo_skip:")
        self.drained(sGR, 1)
        if self.opt.get("bgo", 1): self.barrier()
        self.barrier()
        a(f"""s_cmp_eq_u32 s{sL}, 3
        s_cbranch_scc1 L_fin""")
        self.barrier()
        a(f"""L_next:
        s_add_u32 s{sL}, s{sL}, 1
        s_add_u32 s{sLB}, s{sLB}, 0x1000000
        s_add_u32 s{sFB}, s{sFB}, {LBLK}
        s_bitcmp1_b32 s{sL}, 0
        s_cbranch_scc1 L_layerB
        s_branch L_layerA""")

    def helper(self):
        a = self.a
        VKV, VQ, VWO, VCS = 16, 17, 18, 19
        ONES, FR, ACC = 24, 28, 64
        NANR, VONE = 128, 132
        NFL = self.opt.get("nfl", 8)
        a(f"""s_sub_u32 s{sHH}, s{sWAVE}, 4
        v_lshrrev_b32 v22, 3, {v(vLANE)}
        v_and_b32 v23, 7, {v(vLANE)}
        v_bfe_u32 v28, {v(vLANE)}, 4, 1
        v_lshlrev_b32 v28, 2, v28
        v_xor_b32 v23, v23, v28
        v_mul_u32_u24 v29, 896, v22
        v_lshl_add_u32 v{VWO}, v23, 4, v29
        v_mul_u32_u24 v29, 2688, v22
        v_lshrrev_b32 v28, 2, v23
        v_mul_u32_u24 v28, 896, v28
        v_and_b32 v23, 3, v23
        v_lshl_add_u32 v29, v23, 4, v29
        v_add_u32 v{VKV}, v29, v28
        v_lshrrev_b32 v22, 2, {v(vLANE)}
        v_mul_u32_u24 v22, 2688, v22
        v_lshl_add_u32 v{VQ}, v23, 4, v22
        s_mul_i32 s{sE}, s{sH}, 56
        s_and_b32 s{sE}, s{sE}, 0xfff0
        s_mul_i32 s{sB_}, s{sHH}, {8*2688}
        s_add_u32 s{sB_}, s{sB_}, s{sE}
        s_add_u32 s{sXC}, s{sB_}, 896
        s_add_u32 s{sLIM}, s{sXC}, {448*2688}
        s_mul_i32 s{sROT}, s{sR7}, {64*2688}
        s_add_u32 s{sB_}, s{sXC}, s{sROT}
        s_lshl_b32 s{sA}, s{sHH}, 10""")
        def raw_kv():
            a(f"""s_mov_b32 m0, s{sA}
            s_add_u32 s{sA}, s{sA}, 4096
            buffer_load_dwordx4 v{VKV}, {srd(S_WQ)}, s{sB_} offen lds
            s_add_u32 s{sB_}, s{sB_}, {32*2688}
            s_cmp_eq_u32 s{sB_}, s{sLIM}
            s_cselect_b32 s{sB_}, s{sXC}, s{sB_}""")
        a(f"""v_mov_b32 v28, 0
        v_mov_b32 v29, 0
        v_mov_b32 v30, 0
        v_mov_b32 v31, 0
        s_cmp_lg_u32 s{sHH}, 3
        s_cbranch_scc1 L_h_noz
        s_cmp_ge_u32 s2, {NZERO}
        s_cbranch_scc1 L_h_noz
        v_mul_u32_u24 v22, {LN}, {v(vLANE)}
        s_mul_i32 s{sC_}, s2, {64*LN}
        buffer_store_dwordx4 v[28:31], v22, {srd(S_WS)}, s{sC_} offen sc1
        buffer_store_dwordx4 v[28:31], v22, {srd(S_WS)}, s{sC_} offen offset:16 sc1
        buffer_store_dwordx4 v[28:31], v22, {srd(S_WS)}, s{sC_} offen offset:32 sc1
        buffer_store_dwordx4 v[28:31], v22, {srd(S_WS)}, s{sC_} offen offset:48 sc1
        L_h_noz:""")
        for i in range(NFL): raw_kv()
        if self.opt.get("tlb", 0):
            a(f"""s_cmp_lg_u32 s{sHH}, 2
            s_cbranch_scc1 L_h_notlb
            v_min_u32 v22, 39, {v(vLANE)}
            v_lshlrev_b32 v22, 21, v22
            v_add_u32 v22, 0x1fff00, v22
            buffer_load_dword v60, v22, {srd(S_WS)}, 0 offen sc1
            L_h_notlb:""")
        a(f"""v_and_b32 v22, 31, {v(vLANE)}
        v_lshlrev_b32 v{VCS}, 2, v22
        v_mov_b32 v24, 0x3f803f80
        v_mov_b32 v25, 0x3f803f80
        v_mov_b32 v26, 0x3f803f80
        v_mov_b32 v27, 0x3f803f80
        v_mov_b32 v{NANR}, -1
        v_mov_b32 v{NANR+1}, -1
        v_mov_b32 v{NANR+2}, -1
        v_mov_b32 v{NANR+3}, -1
        v_mov_b32 v{VONE}, 1
        v_min_u32 v22, 47, {v(vLANE)}
        v_lshlrev_b32 v22, 4, v22
        v_add_u32 v22, {CSA}, v22
        ds_write_b128 v22, v[28:31]
        v_and_b32 v22, 15, {v(vLANE)}
        v_lshlrev_b32 v22, 2, v22
        v_add_u32 v22, {GO}, v22
        ds_write_b32 v22, v28
        s_lshl_b32 s{sC_}, s{sHH}, 11
        v_add_u32 v20, s{sC_}, {v(vTK)}
        v_add_u32 v21, s{sC_}, {v(vTV)}
        s_mul_i32 s{sD}, s{sHH}, {16*2688}
        s_add_u32 s{sD}, s{sD}, s{sE}
        s_add_u32 s{sLIM2}, s{sD}, {448*2688}
        s_add_u32 s{sF}, s{sD}, s{sROT}
        s_lshl_b32 s{sG}, s{sHH}, 10
        s_add_u32 s{sG}, s{sG}, {R1Q}
        s_waitcnt lgkmcnt(0)""")
        def raw_q():
            a(f"""s_mov_b32 m0, s{sG}
            s_add_u32 s{sG}, s{sG}, 4096
            buffer_load_dwordx4 v{VQ}, {srd(S_WQ)}, s{sF} offen lds
            s_add_u32 s{sF}, s{sF}, {64*2688}
            s_cmp_eq_u32 s{sF}, s{sLIM2}
            s_cselect_b32 s{sF}, s{sD}, s{sF}""")
        a("s_setprio 1")
        seq = ["kv"] * 14 + ["q"] * 7
        nxt = NFL
        for c in range(7):
            if c == 0: self.stamp(1)
            a(f"s_waitcnt vmcnt({nxt-2*c-2})")
            if c == 0:
                self.stamp(2)
                a(f"""s_cmp_lg_u32 s{sHH}, 3
                s_cbranch_scc1 L_h_nosig
                s_cmp_ge_u32 s2, {NZERO}
                s_cbranch_scc1 L_h_nosig
                s_mov_b64 exec, 1
                buffer_atomic_add v{VONE}, off, {srd(S_DBG)}, 0 sc1
                s_mov_b64 exec, -1
                L_h_nosig:""")
            if c == 3: self.stamp(11)
            if c == 6: self.stamp(12)
            self.barrier()
            for _ in range(2):
                if nxt < 21:
                    (raw_kv if seq[nxt] == "kv" else raw_q)(); nxt += 1
            a(f"""ds_read_b64_tr_b16 v[{FR}:{FR+1}], v20 offset:{c*8192}
            ds_read_b64_tr_b16 v[{FR+2}:{FR+3}], v20 offset:{c*8192+512}
            ds_read_b64_tr_b16 v[{FR+4}:{FR+5}], v21 offset:{c*8192}
            ds_read_b64_tr_b16 v[{FR+6}:{FR+7}], v21 offset:{c*8192+512}
            s_waitcnt lgkmcnt(0)""")
            self.mfma(ACC + 16, ONES, FR, ACC + 16 if c else None)
            self.mfma(ACC + 32, ONES, FR + 4, ACC + 32 if c else None)
        while nxt < 21:
            raw_q(); nxt += 1
        def cs_add(base, tiles):
            self.exec_lo()
            a(f"v_add_u32 v22, {base}, v{VCS}")
            for t in tiles:
                a(f"ds_add_f32 v22, v{ACC+16*t} offset:{128*t}")
            self.exec_all()
            a("s_waitcnt lgkmcnt(0)")
        cs_add(CSA, (1, 2))
        a("s_setprio 0")
        self.stamp(3)
        self.barrier()
        def dma_wq(typ, lo, hi, thr=False, two=False):
            if lo >= hi: return
            L = a.label("Lhq")
            a(f"""s_add_u32 s{sB_}, s{sH}, {16*typ}
            s_mul_i32 s{sB_}, s{sB_}, 86016
            s_add_u32 s{sB_}, s{sB_}, {hx(WPK)}
            s_and_b32 s{sA}, s{sHH}, {1 if two else 3}
            s_lshl_b32 s{sA}, s{sA}, 10
            s_add_u32 s{sA}, s{sA}, {lo}
            {L}:
            s_mov_b32 m0, s{sA}
            s_add_u32 s{sC_}, s{sA}, s{sB_}
            buffer_load_dwordx4 {v(vL16)}, {srd(S_WS)}, s{sC_} offen sc1 lds
            {"s_waitcnt vmcnt(%d)" % self.thr if thr else ""}
            s_add_u32 s{sA}, s{sA}, {2048 if two else 4096}
            s_cmp_lt_u32 s{sA}, {hi}
            s_cbranch_scc1 {L}""")
        def dma_wo(p, thr=False, two=False):
            L = a.label("Lho")
            a(f"""s_mov_b32 s{S_WO}, s{PTR+2*p}
            s_mov_b32 s{S_WO+1}, s{PTR+2*p+1}
            s_and_b32 s{sC_}, s{sHH}, {1 if two else 3}
            s_lshl_b32 s{sA}, s{sC_}, 10
            s_add_u32 s{sA}, s{sA}, {R2}
            s_mul_i32 s{sB_}, s{sC_}, {8*896}
            s_lshl_b32 s{sC_}, s{sCG}, 7
            s_add_u32 s{sB_}, s{sB_}, s{sC_}
            {L}:
            s_mov_b32 m0, s{sA}
            s_add_u32 s{sA}, s{sA}, {2048 if two else 4096}
            buffer_load_dwordx4 v{VWO}, {srd(S_WO)}, s{sB_} offen lds
            {"s_waitcnt vmcnt(%d)" % self.thr if thr else ""}
            s_add_u32 s{sB_}, s{sB_}, {(16 if two else 32)*896}
            s_cmp_lt_u32 s{sA}, {R2+57*1024}
            s_cbranch_scc1 {L}""")
        def wo3(lo, cnt):
            a(f"""s_add_u32 s{sD}, s{sHH}, {lo-1}
            s_lshl_b32 s{sC_}, s{sCG}, 7""")
            for i in range(cnt):
                a(f"""s_min_u32 s{sA}, s{sD}, 56
                s_mul_i32 s{sB_}, s{sA}, {8*896}
                s_add_u32 s{sB_}, s{sB_}, s{sC_}
                s_lshl_b32 s{sA}, s{sA}, 10
                s_add_u32 m0, s{sA}, {R2}
                s_add_u32 s{sD}, s{sD}, 3
                buffer_load_dwordx4 v{VWO}, {srd(S_WO)}, s{sB_} offen lds""")
        def wq3(typ, cnt):
            a(f"""s_add_u32 s{sB_}, s{sH}, {16*typ}
            s_mul_i32 s{sB_}, s{sB_}, 86016
            s_add_u32 s{sB_}, s{sB_}, {hx(WPK)}
            s_sub_u32 s{sA}, s{sHH}, 1
            s_lshl_b32 s{sA}, s{sA}, 10""")
            for i in range(cnt):
                a(f"""s_mov_b32 m0, s{sA}
                s_add_u32 s{sC_}, s{sA}, s{sB_}
                s_add_u32 s{sA}, s{sA}, 3072
                buffer_load_dwordx4 {v(vL16)}, {srd(S_WS)}, s{sC_} offen sc1 lds""")
        def colsum_B(part):
            if part == 0: a(f"""s_and_b32 s{sD}, s{sHH}, 1
            s_mul_i32 s{sC_}, s{sD}, 28672
            v_add_u32 v20, s{sC_}, {v(vTK)}
            v_add_u32 v21, s{sC_}, {v(vTV)}
            s_mul_i32 s{sC_}, s{sD}, 14336
            v_add_u32 v23, s{sC_}, {v(vTQ)}""")
            Lq = a.label("Lhq")
            if part == 0: a(f"""s_add_u32 s{sB_}, s{sH}, 16
            s_mul_i32 s{sB_}, s{sB_}, 86016
            s_add_u32 s{sB_}, s{sB_}, {hx(WPK)}
            s_add_u32 s{sA}, s{sC_}, {R1Q}
            s_add_u32 s{sD}, s{sA}, 14336
            {Lq}:
            s_mov_b32 m0, s{sA}
            s_add_u32 s{sC_}, s{sA}, s{sB_}
            buffer_load_dwordx4 {v(vL16)}, {srd(S_WS)}, s{sC_} offen sc1 lds
            s_add_u32 s{sA}, s{sA}, 1024
            s_cmp_lt_u32 s{sA}, s{sD}
            s_cbranch_scc1 {Lq}""")
            for tiles in (((1, 2), (0,))[part],):
                nt = len(tiles)
                if nt == 1: a("s_waitcnt vmcnt(0)")
                def rd(s_):
                    for k_, t in enumerate(tiles):
                        b, st, d = ((23, 1024, 256), (20, 2048, 512), (21, 2048, 512))[t]
                        r = FR + 4 * ((nt * s_ + k_) % 6)
                        a(f"ds_read_b64_tr_b16 v[{r}:{r+1}], v{b} offset:{s_*st}\nds_read_b64_tr_b16 v[{r+2}:{r+3}], v{b} offset:{s_*st+d}")
                rd(0); rd(1)
                for s_ in range(14):
                    if s_ + 2 < 14: rd(s_ + 2)
                    a(f"s_waitcnt lgkmcnt({2*nt*min(2, 13-s_)})")
                    for k_, t in enumerate(tiles):
                        self.mfma(ACC + 16 * t, ONES, FR + 4 * ((nt * s_ + k_) % 6), ACC + 16 * t if s_ else None)
            if part == 1: cs_add(CSA + 384, (0, 1, 2))
        def role(h0=None, h1=None, h23=None, h123=None):
            if h123:
                l1, done = a.label("Lr1"), a.label("Lrd")
                a(f"s_cmp_lg_u32 s{sHH}, 0\ns_cbranch_scc1 {l1}")
                if h0: h0(done)
                a(f"s_branch {done}\n{l1}:")
                h123(done)
                a(f"{done}:")
                return
            l1, l2, done = a.label("Lr1"), a.label("Lr2"), a.label("Lrd")
            a(f"s_cmp_ge_u32 s{sHH}, 2\ns_cbranch_scc1 {l2 if h23 else done}")
            a(f"s_cmp_eq_u32 s{sHH}, 1\ns_cbranch_scc1 {l1 if h1 else done}")
            if h0: h0(done)
            a(f"s_branch {done}")
            if h1:
                a(f"{l1}:"); h1(done); a(f"s_branch {done}")
            if h23:
                a(f"{l2}:"); h23(done)
            a(f"{done}:")
        def hint(L, k):
            def f(done):
                want = (0, 16, 14)[k]
                if k == 2: a(f"s_cmp_eq_u32 s{sISWO}, 0\ns_cbranch_scc1 {done}")
                if not self.opt.get("rh", 0):
                    self.ctr_add(sGR if k else sGH, L * LBLK + k * SEAM, VONE, fb=False)
                    return
                Lp, Dp = a.label("Lhp"), a.label("Lhd")
                a(f"""s_add_u32 s{sA}, s{sGR}, {hx(L*LBLK + k*SEAM)}
                s_mov_b64 exec, 1
                v_mov_b32 v22, 1
                buffer_atomic_add v22, off, {srd(S_WS)}, s{sA} sc0 sc1
                v_mov_b32 v20, {GO+12*L+4*k}
                s_waitcnt vmcnt(0)
                v_cmp_gt_u32 vcc, {want-1}, v22
                s_cbranch_vccz {Dp}""")
                if self.opt.get("rh", 0) == 2:
                    self.poll_ctr(f"s{sA}", want, 22)
                    a("s_mov_b64 exec, 1")
                else:
                    a(f"s_mov_b64 exec, -1\ns_branch {done}")
                a(f"""{Dp}:
                ds_write_b32 v20, v{VONE}
                s_mov_b64 exec, -1
                s_waitcnt lgkmcnt(0)""")
            return f
        def poll(L, k):
            def f(done):
                skip = a.label("Lps")
                if k == 1: a(f"s_cmp_eq_u32 s{sISWO}, 0\ns_cbranch_scc1 {skip}")
                a(f"s_add_u32 s{sA}, s{(sGH, sGT, sGR)[k]}, {hx(L*LBLK + k*SEAM)}")
                self.stamp(9 + 2 * k, L)
                bm = (k == 0 and (L & 1))
                if bm:
                    Lp, Dp = a.label("Lpw"), a.label("Lpd")
                    a(f"""v_lshrrev_b32 v21, 4, {v(vLANE)}
                    v_lshlrev_b32 v21, 7, v21
                    v_and_b32 v20, 15, {v(vLANE)}
                    v_lshl_add_u32 v21, v20, 2, v21
                    s_mov_b32 s{sSPIN}, 40000
                    {Lp}:
                    v_mov_b32 v23, 0
                    buffer_atomic_add v23, v21, {srd(S_WS)}, s{sA} offen sc0 sc1
                    s_waitcnt vmcnt(0)
                    v_cmp_eq_u32 vcc, 0, v23
                    s_cbranch_vccz {Dp}
                    s_sub_u32 s{sSPIN}, s{sSPIN}, 1
                    s_cmp_eq_u32 s{sSPIN}, 0
                    s_cbranch_scc0 {Lp}
                    s_endpgm
                    {Dp}:""")
                    for sh in (1, 2, 4, 8):
                        a(f"v_max_u32_dpp v23, v23, v23 row_ror:{sh} row_mask:0xf bank_mask:0xf")
                    a(f"""v_readlane_b32 s{sA}, v23, 16
                    v_readlane_b32 s{sB_}, v23, 32
                    v_readlane_b32 s{sC_}, v23, 48
                    s_max_u32 s{sA}, s{sA}, s{sB_}
                    s_max_u32 s{sA}, s{sA}, s{sC_}
                    v_max_u32 v23, s{sA}, v23""")
                else:
                    self.poll_ctr(f"s{sA}", (16 if self.ek else 32, 16, 14)[k], 22)
                self.stamp(10 + 2 * k, L)
                if k or bm:
                    a(f"""v_mov_b32 v20, {GO+12*L+4*k}
                    s_mov_b64 exec, 1
                    ds_write_b32 v20, v{23 if bm else 22}
                    s_mov_b64 exec, -1
                    s_waitcnt lgkmcnt(0)""")
                a(f"{skip}:")
            return f
        seqf = lambda *fs: (lambda done: [f(done) for f in fs])
        W = lambda f: (lambda done: f())
        N1 = self.opt.get("n1", 48) * 1024
        pf = lambda L, parts="ox", thr=True: self.prefill(L, NANR, parts=parts, thr=thr)

        a(f"""s_lshr_b32 s{sA}, s{sHH}, 1
        s_cmp_eq_u32 s{sA}, 0
        s_cselect_b32 s{S_WQ}, s{PTR+2}, s{PTR+8}
        s_cselect_b32 s{S_WQ+1}, s{PTR+3}, s{PTR+9}
        s_lshl_b32 s{sA}, s{sA}, 4
        s_add_u32 s{sA}, s{sA}, s{sH}
        s_mul_i32 s{sF}, s{sA}, 86016
        s_add_u32 s{sF}, s{sF}, {hx(WPK)}
        s_mul_i32 s{sB_}, s{sRB}, {28*2688}
        s_add_u32 s{sB_}, s{sB_}, s{sE}
        s_bitcmp1_b32 s{sHH}, 0
        s_cbranch_scc1 L_h_packq
        s_add_u32 s{sB_}, s{sB_}, 896
        s_mul_i32 s{sC_}, s{sRB}, {28*128}
        s_add_u32 s{sF}, s{sF}, s{sC_}""")
        for i in range(4):
            a(f"buffer_load_dwordx4 v[{112+4*i}:{115+4*i}], v{VKV}, {srd(S_WQ)}, s{sB_} offen\ns_add_u32 s{sB_}, s{sB_}, {8*2688}")
        a(f"""s_waitcnt vmcnt(4)
        s_branch L_h_packed
        L_h_packq:
        s_mul_i32 s{sC_}, s{sRB}, {28*64}
        s_add_u32 s{sF}, s{sF}, s{sC_}
        s_add_u32 s{sF}, s{sF}, {R1Q}
        buffer_load_dwordx4 v[112:115], v{VQ}, {srd(S_WQ)}, s{sB_} offen
        s_add_u32 s{sB_}, s{sB_}, {16*2688}
        buffer_load_dwordx4 v[116:119], v{VQ}, {srd(S_WQ)}, s{sB_} offen
        s_waitcnt vmcnt(2)
        L_h_packed:
        s_lshl_b32 s{sC_}, s{sHH}, 10
        v_add_u32 v20, s{sC_}, {v(vTQ)}""")
        for i in range(7):
            a(f"ds_read_b64_tr_b16 v[{FR+4*i}:{FR+4*i+1}], v20 offset:{i*4096}\nds_read_b64_tr_b16 v[{FR+4*i+2}:{FR+4*i+3}], v20 offset:{i*4096+256}")
        for i in range(7):
            a(f"s_waitcnt lgkmcnt({12-2*i})")
            self.mfma(ACC, ONES, FR + 4 * i, ACC if i else None)
        role(h0=W(lambda: self.poll_ctr("0", NZERO, 22, srd_b=S_DBG, ld=True)),
             h123=W(lambda: wo3(0, 7)))
        cs_add(CSA, (0,))
        self.stamp(4)

        self.barrier()
        def pack_store(nyoung):
            zo, zd, sq, sd = a.label("Lzo"), a.label("Lzd"), a.label("Lsq"), a.label("Lsd")
            a(f"""s_and_b32 s{sC_}, s{sH}, 1
            s_mul_i32 s{sC_}, s{sC_}, 3
            s_xor_b32 s{sC_}, s{sC_}, 3
            v_and_b32 v22, 3, {v(vLANE)}
            v_cmp_ne_u32 vcc, s{sC_}, v22
            s_waitcnt vmcnt({nyoung})
            s_bitcmp1_b32 s{sH}, 0
            s_cbranch_scc1 {zo}""")
            for i in range(4):
                a(f"v_cndmask_b32 v{114+4*i}, 0, v{114+4*i}, vcc\nv_cndmask_b32 v{115+4*i}, 0, v{115+4*i}, vcc")
            a(f"s_branch {zd}\n{zo}:")
            for i in range(4):
                a(f"v_cndmask_b32 v{112+4*i}, 0, v{112+4*i}, vcc\nv_cndmask_b32 v{113+4*i}, 0, v{113+4*i}, vcc")
            a(f"""{zd}:
            buffer_store_dwordx4 v[112:115], {v(vL16)}, {srd(S_WS)}, s{sF} offen sc1
            s_bitcmp1_b32 s{sHH}, 0
            s_cbranch_scc1 {sq}
            buffer_store_dwordx4 v[116:119], {v(vL16)}, {srd(S_WS)}, s{sF} offen offset:1024 sc1
            buffer_store_dwordx4 v[120:123], {v(vL16)}, {srd(S_WS)}, s{sF} offen offset:2048 sc1
            s_mov_b32 exec_hi, 0
            buffer_store_dwordx4 v[124:127], {v(vL16)}, {srd(S_WS)}, s{sF} offen offset:3072 sc1
            s_branch {sd}
            {sq}:
            s_mov_b32 exec_hi, 0xffff
            buffer_store_dwordx4 v[116:119], {v(vL16)}, {srd(S_WS)}, s{sF} offen offset:1024 sc1
            {sd}:
            s_mov_b64 exec, -1""")
        def l0_a(done):
            if self.ek:
                sk = a.label("Lsk")
                a(f"s_cmp_lg_u32 s{sHH}, 1\ns_cbranch_scc1 {sk}")
                hint(0, 0)(done)
                a(f"{sk}:")
            pack_store(7)
            wo3(21, 7)
            a(f"s_cmp_eq_u32 s{sHH}, 1\ns_cbranch_scc1 {done}\ns_waitcnt vmcnt(7)")
            self.ctr_add(sGH, 11 * SEAM, VONE, fb=False)
        role(h0=poll(0, 0), h123=l0_a)
        self.stamp(5)
        self.barrier()
        def l0_b0(done):
            a(f"s_add_u32 s{sD}, s{sGH}, {hx(11*SEAM)}")
            self.poll_ctr(f"s{sD}", 32, 22)
            pack_store(0)
        role(h0=l0_b0, h123=W(lambda: wo3(42, 5)))
        self.barrier()
        if self.eo == 2: role(h0=hint(0, 1))
        role(h123=W(lambda: (wq3(1, 7), a("s_waitcnt vmcnt(7)"))))
        self.barrier()
        role(h0=poll(0, 1), h1=(None if self.eo == 2 else hint(0, 1)), h23=W(lambda: dma_wq(1, 21504, R1Q, two=True)))
        if self.opt.get("bgo", 1): self.barrier()
        self.stamp(7)
        pf(0, "x", False)
        pf(1, "o", False)
        a(f"s_waitcnt vmcnt({2 if self.kd else 6})")
        self.stamp(8)
        self.barrier()
        if self.ex == 3: role(h1=hint(0, 2))
        self.barrier()
        if self.opt.get("bgo", 1):
            role(h0=poll(0, 2), h1=(None if self.ex == 3 else hint(0, 2)), h23=W(lambda: colsum_B(0)))
            self.barrier()
            role(h23=W(lambda: colsum_B(1)))
        else:
            role(h0=poll(0, 2), h1=(None if self.ex == 3 else hint(0, 2)), h23=W(lambda: (colsum_B(0), colsum_B(1))))
        a("s_waitcnt vmcnt(0)")
        self.barrier()
        role(h0=poll(1, 0))
        self.barrier()
        dma_wo(5, True)
        dma_wq(0, 0, OX, True)
        pf(1, "x"); pf(2); pf(3)
        a("s_waitcnt vmcnt(0)")
        self.barrier()
        if self.eo == 2: role(h0=hint(1, 1))
        self.barrier()
        role(h0=poll(1, 1), h1=(None if self.eo == 2 else hint(1, 1)), h23=W(lambda: dma_wq(0, OX, 86016, two=True)))
        if self.opt.get("bgo", 1): self.barrier()
        a("s_waitcnt vmcnt(0)")
        self.barrier()
        if self.ex == 3: role(h1=hint(1, 2))
        self.barrier()
        role(h0=poll(1, 2), h1=(None if self.ex == 3 else hint(1, 2)), h23=W(lambda: dma_wo(2, two=True)))
        if self.opt.get("bgo", 1): self.barrier()
        self.barrier()
        role(h0=poll(2, 0), h1=(hint(2, 0) if self.ek else None), h23=W(lambda: dma_wq(1, 0, N1, two=True)))
        self.barrier()
        a("s_waitcnt vmcnt(0)")
        self.barrier()
        if self.eo == 2: role(h0=hint(2, 1))
        self.barrier()
        role(h0=poll(2, 1), h1=(None if self.eo == 2 else hint(2, 1)), h23=W(lambda: dma_wq(1, N1, 86016, two=True)))
        if self.opt.get("bgo", 1): self.barrier()
        a("s_waitcnt vmcnt(0)")
        self.barrier()
        if self.ex == 3: role(h1=hint(2, 2))
        self.barrier()
        role(h0=poll(2, 2), h1=(None if self.ex == 3 else hint(2, 2)))
        if self.opt.get("bgo", 1): self.barrier()
        role(h0=poll(3, 0))
        self.barrier()
        dma_wo(5, True)
        a("s_waitcnt vmcnt(0)")
        self.barrier()
        if self.eo == 2: role(h0=hint(3, 1))
        self.barrier()
        role(h0=poll(3, 1), h1=(None if self.eo == 2 else hint(3, 1)))
        if self.opt.get("bgo", 1): self.barrier()
        a("s_branch L_fin")

    def build(self):
        a = self.a
        self.tail = []
        self.prologue()
        self.helper()
        self.layer_A()
        self.layer_B()
        self.wo_phase()
        self.slow_path()
        self.emit_tail()
        a("L_fin:")
        self.stamp(15)
        self.stamp_flush()
        a("L_end:\ns_endpgm\nL_code_end:")
        body = a.resolve()
        hdr = open("interleave_layers__linear_attn_block__softmax_full_mha__prompt.s.ref").read().split("; Override")[0]
        return hdr + f"""; @launch grid=(256,1,1) block=(512,1,1) lds={LDS_TOTAL}
.amdgcn_target "amdgcn-amd-amdhsa--gfx950"
.text
.globl {NAME}
.p2align 8
.type {NAME},@function
{NAME}:
{body}
.section .rodata,"a"
.p2align 6
.amdhsa_kernel {NAME}
  .amdhsa_next_free_vgpr 256
  .amdhsa_next_free_sgpr 102
  .amdhsa_accum_offset 256
  .amdhsa_group_segment_fixed_size 0
  .amdhsa_kernarg_size 72
  .amdhsa_user_sgpr_count 2
  .amdhsa_user_sgpr_kernarg_segment_ptr 1
  .amdhsa_system_sgpr_workgroup_id_x 1
.end_amdhsa_kernel
"""

if __name__ == "__main__":
    import argparse
    ap = argparse.ArgumentParser()
    ap.add_argument("-o", default="k.s")
    ap.add_argument("--prof", default=None)
    ap.add_argument("--opt", default="")
    args = ap.parse_args()
    opt = {kv.split("=")[0]: int(kv.split("=")[1]) for kv in args.opt.split(",") if kv}
    g = Gen(prof=args.prof, opt=opt)
    s = g.build()
    open(args.o, "w").write(s)
    print("wrote", args.o, "lines", s.count("\n"), "nops inserted", g.a.nops)
```

```python
import sys, struct, math
sys.path.insert(0, "dev")
from asmb import Asm

NAME = "interleave_layers__linear_attn_block__softmax_full_mha__prompt_kernel"

def f2u(x): return struct.unpack("<I", struct.pack("<f", x))[0]
def hx(x): return "0x%08x" % (x & 0xffffffff)

R1 = 0
R1Q = 57344
OX = 86016 - 49152
R2 = 86016
SCR = 144384
CSA = SCR + 16384
STW = CSA + 768
GO = STW + 1024
LDS_TOTAL = 163840
LN = 128
CST = 4 * LN
SEAM = 32 * CST
DRN = 16 * CST
LBLK = 3 * SEAM
NZERO = 24
WPK = 0x400000
OFF_X, OFF_O, OFF_KV, OFF_ST = 0x000000, 0x200000, 0x400000, 0x800000
PROF_OFF = 0x8000000

sGH, sGR, sGT, sPF, sIM = 3, 4, 5, 6, 7
S_X, S_WQ, S_WO, S_OUT, S_DBG, S_WS, S_XOUT, S_CODE = 8, 12, 16, 20, 24, 28, 32, 36
sWAVE, sRB, sH, sTP, sCG, sISWO, sL, sLB = 40, 41, 42, 43, 44, 45, 46, 47
sT, sTW, sC, sFB, sSPIN = 48, 49, 50, 51, 52
sA, sB_, sC_, sD, sF, sE = 53, 54, 55, 56, 57, 58
sMPAD = 60
sK0 = 62
PTR = 64
sSO0, sSO1, sR7 = 82, 83, 84
sG, sHH, sWL = 85, 86, 87
sPC = 88
sST0 = 90
sPI, sLOOP, sOFF, sOFFMAX, sRETRY = 92, 93, 94, 95, 96
sROT, sXC, sLIM, sLIM2 = 97, 98, 99, 100
def srd(b): return f"s[{b}:{b+3}]"

vTID, vLANE, vL16, vTK, vTV, vWK, vWS_, vRM = 0, 1, 2, 3, 4, 5, 6, 7
vTQ, vPADV, vA, vNM, vCS0, vCS1, vT0, vT1 = 8, 9, 10, 11, 12, 13, 14, 15
vXO = vCS0
XRES = 16
XF = 32
ACK, ACV, ACQ = 144, 160, 176
WF = 192
SA, SB = 208, 224
CS16 = 240
def v(b, n=1): return f"v{b}" if n == 1 else f"v[{b}:{b+n-1}]"

LOG2E = 1.4426950408889634
QSCALE = LOG2E / math.sqrt(28.0)
SHIFT_UP = 40.0
L_MIN = 2.0 ** -60


class Cnt:
    def __init__(self, name, mx): self.name, self.q, self.mx = name, [], mx
    def issue(self, tag): self.q.append(tag)
    def n_after(self, tag):
        idx = max(i for i, t in enumerate(self.q) if t == tag)
        n = len(self.q) - 1 - idx
        self.q = self.q[idx + 1:]
        assert n <= self.mx, (self.name, n)
        return n
    def has(self, tag): return tag in self.q
    def clear(self): self.q = []


class Gen:
    def __init__(self, prof=None, opt={}):
        self.a = Asm(); self.prof = prof; self.opt = opt
        self.vm = Cnt("vmcnt", 63); self.lg = Cnt("lgkmcnt", 15)
        self.D = opt.get("D", 12)
        self.thr = opt.get("thr", 2)
        self.kd = opt.get("kd", 0)
        self.eo, self.ex, self.ek = opt.get("eo", 1), opt.get("ex", 2), opt.get("ek", 1)

    def mfma(self, d, A, B, C):
        c = "0" if C is None else v(C, 16)
        self.a(f"v_mfma_f32_32x32x16_bf16 {v(d,16)}, {v(A,4)}, {v(B,4)}, {c}")
    def wait(self, vm=None, lg=None):
        parts = []
        if vm is not None and self.vm.has(vm): parts.append(f"vmcnt({self.vm.n_after(vm)})")
        if lg is not None and self.lg.has(lg): parts.append(f"lgkmcnt({self.lg.n_after(lg)})")
        if parts: self.a("s_waitcnt " + " ".join(parts))
    def wait_all(self, vm=True, lg=True):
        p = []
        if vm: p.append("vmcnt(0)"); self.vm.clear()
        if lg: p.append("lgkmcnt(0)"); self.lg.clear()
        self.a("s_waitcnt " + " ".join(p))
    def exec_all(self): self.a("s_mov_b64 exec, -1")
    def exec_hi(self): self.a("s_mov_b32 exec_lo, 0\ns_mov_b32 exec_hi, -1")
    def exec_lo(self): self.a("s_mov_b32 exec_lo, -1\ns_mov_b32 exec_hi, 0")
    def barrier(self): self.a("s_barrier")
    def stamp(self, idx, L=None):
        if not self.prof: return
        op = "s_memrealtime" if self.prof == "rt" else "s_memtime"
        self.a(f"{op} s[{sST0}:{sST0+1}]")
        if L is None:
            self.a(f"s_lshl_b32 s{sPI}, s{sL}, 4\ns_add_u32 s{sPI}, s{sPI}, {idx}\ns_mov_b32 m0, s{sPI}")
        else:
            self.a(f"s_mov_b32 m0, {16*L+idx}")
        self.a(f"s_waitcnt lgkmcnt(0)\nv_writelane_b32 v0, s{sST0}, m0")
    def stamp_flush(self):
        if not self.prof: return
        self.a(f"""s_lshl_b32 s{sPI}, s2, 3
        s_add_u32 s{sPI}, s{sPI}, s{sWAVE}
        s_lshl_b32 s{sPI}, s{sPI}, 8
        s_add_u32 s{sPI}, s{sPI}, {hx(PROF_OFF)}
        s_mov_b64 exec, -1
        v_lshlrev_b32 {v(vT0)}, 2, {v(vLANE)}
        buffer_store_dword v0, {v(vT0)}, {srd(S_WS)}, s{sPI} offen""")

    def poll_ctr(self, soff, want, vdst, srd_b=S_WS, ld=False, four=None):
        a = self.a
        L, D = a.label("Lpc"), a.label("Lpd")
        if four is not None: a(f"v_lshlrev_b32 {v(four)}, 7, {v(vLANE)}")
        ad = ("off", "") if four is None else (v(four), "offen")
        a(f"""s_mov_b32 s{sSPIN}, 40000
        s_mov_b64 exec, {1 if four is None else 15}
        {L}:
        v_mov_b32 {v(vdst)}, 0""")
        if ld:
            a(f"buffer_load_dword {v(vdst)}, {ad[0]}, {srd(srd_b)}, {soff} {ad[1]} sc1")
        else:
            a(f"buffer_atomic_add {v(vdst)}, {ad[0]}, {srd(srd_b)}, {soff} {ad[1]} sc0 sc1")
        a(f"""s_waitcnt vmcnt(0)
        v_cmp_gt_u32 vcc, {want}, {v(vdst)}
        s_cbranch_vccz {D}
        s_sub_u32 s{sSPIN}, s{sSPIN}, 1
        s_cmp_eq_u32 s{sSPIN}, 0
        s_cbranch_scc0 {L}
        s_endpgm
        {D}:
        s_mov_b64 exec, -1""")
    def ctr_add(self, sgrp, extra, vone, fb=True):
        a = self.a
        if fb:
            a(f"s_add_u32 s{sA}, s{sFB}, s{sgrp}")
            if extra: a(f"s_add_u32 s{sA}, s{sA}, {hx(extra)}")
        else:
            a(f"s_add_u32 s{sA}, s{sgrp}, {hx(extra)}")
        a(f"""s_mov_b64 exec, 1
        buffer_atomic_add {v(vone)}, off, {srd(S_WS)}, s{sA} sc1
        s_mov_b64 exec, -1""")
        self.vm.issue("flag")
    def drained(self, sgrp, k):
        self.a(f"s_waitcnt vmcnt(0)\nv_mov_b32 {v(vT0)}, 1")
        self.vm.clear()
        self.a(f"s_add_u32 s{sB_}, s{sgrp}, s{sWL}")
        self.ctr_add(sB_, k * SEAM + DRN, vT0)
    def drained_late(self, sgrp, extra, need_wo=False):
        a = self.a
        lab = a.label("Ldl")
        a(f"s_cmp_lg_u32 s{sRETRY}, 0\ns_cbranch_scc1 {lab}")
        if need_wo: a(f"s_cmp_eq_u32 s{sISWO}, 0\ns_cbranch_scc1 {lab}")
        a(f"v_mov_b32 {v(vT0)}, 1\ns_add_u32 s{sB_}, s{sgrp}, s{sWL}")
        self.ctr_add(sB_, extra, vT0)
        a(f"{lab}:")
    def wait_go(self, k, dst=vT0, L=None):
        a = self.a
        if self.opt.get("bgo", 1):
            self.barrier()
            return
        Lb, D = a.label("Lgo"), a.label("Lgd")
        if L is None:
            a(f"s_mul_i32 s{sA}, s{sL}, 12\ns_add_u32 s{sA}, s{sA}, {GO+4*k}\nv_mov_b32 {v(vT1)}, s{sA}")
        else:
            a(f"v_mov_b32 {v(vT1)}, {GO+12*L+4*k}")
        a(f"""s_mov_b32 s{sSPIN}, 400000
        {Lb}:
        ds_read_b32 {v(dst)}, {v(vT1)}
        s_waitcnt lgkmcnt(0)
        v_cmp_eq_u32 vcc, 0, {v(dst)}
        s_cbranch_vccz {D}
        s_sub_u32 s{sSPIN}, s{sSPIN}, 1
        s_cmp_eq_u32 s{sSPIN}, 0
        s_cbranch_scc0 {Lb}
        s_endpgm
        {D}:""")
        self.lg.clear()
    def nan_check(self, reg, redo, want):
        a = self.a
        bad, ok = a.label("Lbad"), a.label("Lok")
        a(f"""v_cmp_u_f32 vcc, {v(reg)}, {v(reg)}
        s_cbranch_vccnz {bad}
        {ok}:""")
        self.tail.append((bad, ok, redo, want))
    def emit_tail(self):
        a = self.a
        for bad, ok, redo, want in self.tail:
            a(f"""{bad}:
            s_cmp_lg_u32 s{sRETRY}, 0
            s_cbranch_scc1 {ok}
            s_mov_b32 s{sRETRY}, 1""")
            self.poll_ctr(f"s{sPF}", want, vT0, four=vT1)
            a(f"buffer_inv sc1\ns_waitcnt vmcnt(0)\ns_branch {redo}")

    def prologue(self):
        a = self.a
        a(f"""s_cmp_ge_u32 s2, 256
        s_cbranch_scc1 L_end
        s_load_dwordx16 s[{PTR}:{PTR+15}], s[0:1], 0
        s_load_dwordx2 s[{PTR+16}:{PTR+17}], s[0:1], 64
        s_getpc_b64 s[{sPC}:{sPC+1}]
        L_pcref:
        s_sub_u32 s{S_CODE}, s{sPC}, L_pcref-{NAME}
        s_subb_u32 s{S_CODE+1}, s{sPC+1}, 0
        s_mov_b32 s{S_CODE+2}, L_code_end-{NAME}
        s_mov_b32 s{S_CODE+3}, 0x20000
        s_lshl_b32 s{sC_}, s2, 10
        s_and_b32 s{sC_}, s{sC_}, 0x6000
        v_lshlrev_b32 {v(vT1)}, 4, v0
        buffer_load_dwordx4 v[252:255], {v(vT1)}, {srd(S_CODE)}, s{sC_} offen
        v_lshrrev_b32 {v(vT0)}, 6, v0
        v_and_b32 {v(vLANE)}, 63, v0
        v_readfirstlane_b32 s{sWAVE}, {v(vT0)}
        v_lshlrev_b32 {v(vL16)}, 4, {v(vLANE)}
        s_and_b32 s{sA}, s2, 7
        s_lshr_b32 s{sB_}, s2, 3
        s_lshr_b32 s{sRB}, s{sA}, 1
        s_lshl_b32 s{sRB}, s{sRB}, 2
        s_and_b32 s{sC_}, s{sB_}, 3
        s_add_u32 s{sRB}, s{sRB}, s{sC_}
        s_and_b32 s{sH}, s{sA}, 1
        s_lshl_b32 s{sH}, s{sH}, 3
        s_lshr_b32 s{sC_}, s{sB_}, 2
        s_add_u32 s{sH}, s{sH}, s{sC_}
        s_mov_b32 s{sCG}, s{sC_}
        s_cmp_lt_u32 s{sC_}, 7
        s_cselect_b32 s{sISWO}, 1, 0
        s_cselect_b32 s{sCG}, s{sCG}, 0
        s_and_b32 s{sTP}, s{sA}, 1
        s_lshl_b32 s{sD}, s{sRB}, 1
        s_add_u32 s{sTP}, s{sTP}, s{sD}
        s_mul_i32 s{sC_}, s{sB_}, 37
        s_lshr_b32 s{sC_}, s{sC_}, 8
        s_mul_i32 s{sD}, s{sC_}, 7
        s_sub_u32 s{sR7}, s{sB_}, s{sD}
        s_mov_b32 s{sL}, 0
        s_mov_b32 s{sLB}, 0x1000000
        s_mov_b32 s{sFB}, 0
        s_lshl_b32 s{sIM}, s{sH}, 4
        s_add_u32 s{sIM}, s{sIM}, s{sRB}
        s_mul_i32 s{sGH}, s{sH}, {CST}
        s_mul_i32 s{sGR}, s{sRB}, {CST}
        s_lshr_b32 s{sGT}, s{sTP}, 1
        s_mul_i32 s{sGT}, s{sGT}, {CST}
        s_mov_b32 s{sMPAD}, 0xf0000000
        s_mov_b32 s{sMPAD+1}, 0xf0000000
        """)
        a(f"""v_lshrrev_b32 v16, 5, {v(vLANE)}
        v_bfe_u32 v17, {v(vLANE)}, 4, 1
        v_bfe_u32 v18, {v(vLANE)}, 2, 2
        v_and_b32 v19, 3, {v(vLANE)}
        v_lshlrev_b32 v20, 5, v17
        v_lshl_add_u32 v20, v19, 3, v20
        v_lshl_add_u32 v21, v16, 3, v18
        s_and_b32 s{sD}, s{sH}, 1
        s_lshl_b32 s{sD}, s{sD}, 3
        v_add_u32 v24, s{sD}, v20
        v_and_b32 v24, 63, v24
        v_lshl_add_u32 {v(vTQ)}, v21, 6, v24
        v_add_u32 {v(vTQ)}, {R1Q}, {v(vTQ)}
        v_lshl_add_u32 v24, v21, 7, v24
        v_lshrrev_b32 v22, 1, v18
        v_lshl_add_u32 {v(vTK)}, v22, 6, v24
        v_xor_b32 v22, 1, v22
        v_lshl_add_u32 {v(vTV)}, v22, 6, v24
        v_lshl_add_u32 v21, v16, 2, v18
        v_lshlrev_b32 v21, 7, v21
        v_add_u32 v21, v21, v20
        v_add_u32 v21, {R2}, v21
        v_lshrrev_b32 v22, 1, v18
        v_and_b32 v23, 31, {v(vLANE)}
        v_mul_u32_u24 {v(vRM)}, 896, v23
        v_lshl_add_u32 {v(vRM)}, v16, 4, {v(vRM)}
        v_cmp_eq_u32 vcc, 28, v23
        v_mov_b32 v24, 0x3f803f80
        v_cndmask_b32 {v(vPADV)}, 0, v24, vcc
        s_lshr_b32 s{sA}, s{sWAVE}, 1
        s_and_b32 s{sA}, s{sA}, 1
        v_xor_b32 v22, s{sA}, v22
        v_lshl_add_u32 {v(vWK)}, v22, 6, v21
        v_xor_b32 v22, 1, v22
        v_lshl_add_u32 {v(vWS_)}, v22, 6, v21
        s_mul_i32 s{sB_}, s{sA}, {8*28*128}
        v_add_u32 {v(vWK)}, s{sB_}, {v(vWK)}
        v_add_u32 {v(vWS_)}, s{sB_}, {v(vWS_)}
        s_lshl_b32 s{sC}, s{sCG}, 1
        s_add_u32 s{sC}, s{sC}, s{sA}
        s_and_b32 s{sA}, s{sWAVE}, 1
        s_lshl_b32 s{sTW}, s{sTP}, 1
        s_add_u32 s{sTW}, s{sTW}, s{sA}
        s_and_b32 s{sA}, s{sWAVE}, 3
        s_lshl_b32 s{sWL}, s{sA}, 7
        s_lshl_b32 s{sT}, s{sRB}, 2
        s_add_u32 s{sT}, s{sT}, s{sA}
        s_waitcnt lgkmcnt(0)
        """)
        def mk(b, p, size):
            a(f"""s_mov_b32 s{b}, s{PTR+2*p}
            s_mov_b32 s{b+1}, s{PTR+2*p+1}
            s_mov_b32 s{b+2}, {size}
            s_mov_b32 s{b+3}, 0x20000""")
        mk(S_X, 0, 1835008); mk(S_WQ, 1, 1204224); mk(S_WO, 2, 401408)
        mk(S_OUT, 6, 1835008); mk(S_DBG, 7, 256); mk(S_WS, 8, 0x10000000); mk(S_XOUT, 8, 0x10000000)
        pfm = self.opt.get("pfm", 0)
        if pfm:
            a(f"""s_lshl_b32 s{sA}, s2, 3
            s_add_u32 s{sA}, s{sA}, s{sWAVE}
            s_lshl_b32 s{sA}, s{sA}, 10
            buffer_load_dwordx4 v[248:251], {v(vL16)}, {srd(S_WQ)}, s{sA} offen""")
            if pfm >= 2: a(f"buffer_load_dwordx4 v[244:247], {v(vL16)}, {srd(S_X)}, s{sA} offen")
        if self.opt.get("diag", 0):
            a(f"""s_memrealtime s[{sST0}:{sST0+1}]
            s_waitcnt lgkmcnt(0)
            s_mov_b32 s101, s{sST0}""")
        if self.prof: a("v_mov_b32 v0, 0")
        self.stamp(0)
        a(f"""s_cmp_lt_u32 s{sWAVE}, 4
        s_cbranch_scc1 L_layerA""")

    def stats_finish(self, vS, vQ):
        a = self.a
        a(f"""v_mov_b32 {v(vT0)}, {v(vS)}
        v_mov_b32 {v(vT1)}, {v(vQ)}
        v_permlane32_swap_b32 {v(vT0)}, {v(vS)}
        v_permlane32_swap_b32 {v(vT1)}, {v(vQ)}
        v_add_f32 {v(vS)}, {v(vS)}, {v(vT0)}
        v_add_f32 {v(vQ)}, {v(vQ)}, {v(vT1)}
        v_mul_f32 {v(vNM)}, {hx(f2u(-1.0/448))}, {v(vS)}
        v_mul_f32 {v(vQ)}, {hx(f2u(1.0/448))}, {v(vQ)}
        v_fma_f32 {v(vQ)}, -{v(vNM)}, {v(vNM)}, {v(vQ)}
        v_and_b32 {v(vQ)}, 0x7fffffff, {v(vQ)}
        v_add_f32 {v(vQ)}, {hx(f2u(1e-5))}, {v(vQ)}
        v_rsq_f32 {v(vA)}, {v(vQ)}
        s_lshl_b32 s{sA}, s{sWAVE}, 8
        s_add_u32 s{sA}, s{sA}, {STW}
        v_and_b32 {v(vT0)}, 31, {v(vLANE)}
        v_lshl_add_u32 {v(vT0)}, {v(vT0)}, 2, s{sA}
        v_lshrrev_b32 {v(vT1)}, 5, {v(vLANE)}
        v_lshl_add_u32 {v(vT1)}, {v(vT1)}, 4, s{sA}
        ds_write_b32 {v(vT0)}, {v(vA)}
        ds_write_b32 {v(vT0)}, {v(vNM)} offset:128""")
        self.lg.issue("stw"); self.lg.issue("stw")
    def stats_read(self, which):
        for q in range(4):
            self.a(f"ds_read_b128 {v((SA,SB)[which]+4*q,4)}, {v(vT1)} offset:{128*which+32*q}"); self.lg.issue("st")

    def tr_pair(self, dst, s, seg, tag):
        base, off, d = ((vTQ, s * 1024, 256), (vTK, s * 2048, 512), (vTV, s * 2048, 512))[seg]
        self.a(f"ds_read_b64_tr_b16 {v(dst,2)}, {v(base)} offset:{off}"); self.lg.issue(tag)
        self.a(f"ds_read_b64_tr_b16 {v(dst+2,2)}, {v(base)} offset:{off+d}"); self.lg.issue(tag)

    def xload(self, s):
        a = self.a
        if s and s % 4 == 0: a(f"s_add_u32 s{sOFF}, s{sOFF}, 4096")
        a(f"buffer_load_dwordx4 {v(XF+4*s,4)}, {v(vL16)}, {srd(S_WS)}, s{sOFF} offen offset:{(s%4)*1024} sc1")
        self.vm.issue(("x", s))

    def kv_loop(self, typ, inserts={}):
        D = self.D
        for s in range(28):
            p = s & 1
            if s + 1 < 28:
                self.tr_pair(WF + 8 * (1 - p), s + 1, 1, ("w", s + 1)); self.tr_pair(WF + 8 * (1 - p) + 4, s + 1, 2, ("w", s + 1))
            self.wait(vm=("x", s), lg=("w", s))
            wk, wv, x = WF + 8 * p, WF + 8 * p + 4, XF + 4 * s
            if typ == "A": self.mfma(ACK, x, wk, ACK if s else None)
            else: self.mfma(ACK, wk, x, ACK if s else None)
            self.mfma(ACV, x, wv, ACV if s else None)
            if s + D < 28: self.xload(s + D)
            if s in inserts: inserts[s]()

    def q_loop(self, inserts={}):
        for s in range(3): self.tr_pair(WF + 4 * s, s, 0, ("w", s))
        for s in range(28):
            if s + 3 < 28: self.tr_pair(WF + 4 * ((s + 3) & 3), s + 3, 0, ("w", s + 3))
            self.wait(lg=("w", s))
            self.mfma(ACQ, WF + 4 * (s & 3), XF + 4 * s, ACQ if s else None)
            if s in inserts: inserts[s]()

    def load_cs_lane(self, typ):
        base = CSA + (0 if typ == "A" else 384)
        self.a(f"""v_and_b32 {v(vT0)}, 31, {v(vLANE)}
        v_lshlrev_b32 {v(vT0)}, 2, {v(vT0)}
        v_add_u32 {v(vT0)}, {base}, {v(vT0)}
        ds_read_b32 {v(vCS0)}, {v(vT0)} offset:128
        ds_read_b32 {v(vCS1)}, {v(vT0)} offset:256""")
        self.lg.issue("cs"); self.lg.issue("cs")
    def load_cs_reg(self, typ, seg, dst=CS16):
        a = self.a
        base = CSA + (0 if typ == "A" else 384) + seg * 128
        a(f"""v_lshrrev_b32 {v(vT0)}, 5, {v(vLANE)}
        v_lshlrev_b32 {v(vT0)}, 4, {v(vT0)}
        v_add_u32 {v(vT0)}, {base}, {v(vT0)}""")
        for q in range(4):
            a(f"ds_read_b128 {v(dst+4*q,4)}, {v(vT0)} offset:{32*q}"); self.lg.issue("cs16")

    def fix_feat(self, acc, vcs):
        pair = vcs & ~1; sel = vcs & 1
        for r in range(0, 16, 2):
            self.a(f"v_pk_fma_f32 {v(acc+r,2)}, {v(SB+r,2)}, {v(pair,2)}, {v(acc+r,2)} op_sel:[0,{sel},0] op_sel_hi:[1,{sel},1]")
    def fix_tok(self, acc, cs=CS16):
        pair = vNM & ~1; sel = vNM & 1
        for r in range(0, 16, 2):
            self.a(f"v_pk_fma_f32 {v(acc+r,2)}, {v(cs+r,2)}, {v(pair,2)}, {v(acc+r,2)} op_sel:[0,{sel},0] op_sel_hi:[1,{sel},1]")
    def scale_lane(self, acc, vs):
        pair = vs & ~1; sel = vs & 1
        for r in range(0, 16, 2):
            self.a(f"v_pk_mul_f32 {v(acc+r,2)}, {v(acc+r,2)}, {v(pair,2)} op_sel:[0,{sel}] op_sel_hi:[1,{sel}]")
    def phi(self, acc, tmp, dst):
        a = self.a
        for r in range(0, 16, 2):
            a(f"v_pk_mul_f32 {v(tmp+r,2)}, {v(acc+r,2)}, s[{sK0}:{sK0+1}] op_sel:[0,0] op_sel_hi:[1,0]")
        for r in range(16):
            a(f"v_exp_f32_e64 {v(tmp+r)}, {v(tmp+r)} clamp")
            a(f"v_max_f32 {v(acc+r)}, s{sK0+1}, {v(acc+r)}")
        for r in range(0, 16, 2):
            a(f"v_pk_add_f32 {v(acc+r,2)}, {v(acc+r,2)}, {v(tmp+r,2)}")
        self.pack(acc, dst)
    def pack(self, src, dst):
        for i in range(8):
            self.a(f"v_cvt_pk_bf16_f32 {v(dst+i)}, {v(src+2*i)}, {v(src+2*i+1)}")
    def sumsq(self, acc, dst):
        a = self.a
        a(f"v_pk_mul_f32 {v(vCS0,2)}, {v(acc,2)}, {v(acc,2)}")
        for r in range(2, 16, 2):
            a(f"v_pk_fma_f32 {v(vCS0,2)}, {v(acc+r,2)}, {v(acc+r,2)}, {v(vCS0,2)}")
        a(f"""v_add_f32 {v(dst)}, {v(vCS0)}, {v(vCS1)}
        v_add_f32 {v(vT1)}, {v(vCS0)}, {v(vCS1)}
        v_permlane32_swap_b32 {v(dst)}, {v(vT1)}
        v_add_f32 {v(dst)}, {v(dst)}, {v(vT1)}""")

    def finalize_o(self, D, P, eps):
        a = self.a
        a(f"""v_mov_b32 {v(vT0)}, {v(D+12)}
        v_mov_b32 {v(vT1)}, {v(D+12)}
        s_lshl_b32 s{sB_}, s{sT}, 4
        s_add_u32 s{sB_}, s{sB_}, s{sH}
        v_permlane32_swap_b32 {v(vT0)}, {v(vT1)}""")
        if eps: a(f"v_add_f32 {v(vT1)}, {hx(f2u(1e-6))}, {v(vT1)}")
        a(f"""v_rcp_f32 {v(vT0)}, {v(vT1)}
        s_lshl_b32 s{sB_}, s{sB_}, 11
        s_add_u32 s{sB_}, s{sB_}, s{sLB}
        s_add_u32 s{sB_}, s{sB_}, {hx(OFF_O)}""")
        pr = vT0
        for r in range(0, 8, 2):
            a(f"v_pk_mul_f32 {v(D+r,2)}, {v(D+r,2)}, {v(pr,2)} op_sel:[0,0] op_sel_hi:[1,0]")
        for i in range(4): a(f"v_cvt_pk_bf16_f32 {v(P+i)}, {v(D+2*i)}, {v(D+2*i+1)}")
        a(f"buffer_store_dwordx4 {v(P,4)}, {v(vL16)}, {srd(S_WS)}, s{sB_} offen sc1")
        for r in range(8, 16, 2):
            a(f"v_pk_mul_f32 {v(D+r,2)}, {v(D+r,2)}, {v(pr,2)} op_sel:[0,0] op_sel_hi:[1,0]")
        a(f"v_mov_b32 {v(P+6)}, 0\nv_mov_b32 {v(P+7)}, 0")
        for i in range(4, 6): a(f"v_cvt_pk_bf16_f32 {v(P+i)}, {v(D+2*i)}, {v(D+2*i+1)}")
        self.exec_lo()
        for i in range(6, 8): a(f"v_cvt_pk_bf16_f32 {v(P+i)}, {v(D+2*i)}, {v(D+2*i+1)}")
        self.exec_all()
        a(f"buffer_store_dwordx4 {v(P+4,4)}, {v(vL16)}, {srd(S_WS)}, s{sB_} offen offset:1024 sc1")
        self.vm.issue("o"); self.vm.issue("o")
        rb = self.opt.get("rb", 0)
        if rb & 1:
            if rb & 4: a("s_waitcnt vmcnt(0)")
            a(f"""buffer_load_dwordx4 {v(232,4)}, {v(vL16)}, {srd(S_WS)}, s{sB_} offen sc1
            buffer_load_dwordx4 {v(236,4)}, {v(vL16)}, {srd(S_WS)}, s{sB_} offen offset:1024 sc1""")

    def prefill(self, L, R, parts="ox", thr=False, track=False):
        a = self.a
        LB = (L + 1) << 24
        def st(so, off):
            a(f"buffer_store_dwordx4 {v(R,4)}, {v(vL16)}, {srd(S_WS)}, s{so} offen offset:{off} sc1")
            if thr: a(f"s_waitcnt vmcnt({self.thr})")
            if track: self.vm.issue("pf")
        if "o" in parts:
            a(f"""s_lshl_b32 s{sC_}, s{sT}, 4
            s_add_u32 s{sC_}, s{sC_}, s{sH}
            s_lshl_b32 s{sC_}, s{sC_}, 11
            s_add_u32 s{sC_}, s{sC_}, {hx(LB+OFF_O)}""")
            st(sC_, 0); st(sC_, 1024)
            if L % 2 == 0:
                a(f"""s_lshl_b32 s{sC_}, s{sIM}, 11
                s_and_b32 s{sSO0}, s{sWAVE}, 1
                s_lshl_b32 s{sSO0}, s{sSO0}, 10
                s_add_u32 s{sC_}, s{sC_}, s{sSO0}
                s_add_u32 s{sC_}, s{sC_}, {hx(LB+OFF_KV)}""")
                st(sC_, 0)
            elif not self.kd:
                a(f"""s_lshl_b32 s{sC_}, s{sH}, 6
                s_add_u32 s{sC_}, s{sC_}, s{sT}
                s_lshl_b32 s{sC_}, s{sC_}, 12
                s_add_u32 s{sC_}, s{sC_}, {hx(LB+OFF_KV)}""")
                for i in range(4): st(sC_, 1024 * i)
        if "x" in parts and L < 3:
            lab = a.label("Lpf")
            a(f"""s_cmp_eq_u32 s{sISWO}, 0
            s_cbranch_scc1 {lab}
            s_mul_i32 s{sC_}, s{sTW}, 14
            s_add_u32 s{sC_}, s{sC_}, s{sC}
            s_lshl_b32 s{sSO0}, s{sC_}, 11
            s_add_u32 s{sSO0}, s{sSO0}, {hx(LB+OFF_X)}
            s_lshl_b32 s{sC_}, s{sC_}, 8
            s_add_u32 s{sC_}, s{sC_}, {hx(LB+OFF_ST)}""")
            st(sSO0, 0); st(sSO0, 1024)
            a("s_mov_b64 exec, 0xffff")
            st(sC_, 0)
            a(f"s_mov_b64 exec, -1\n{lab}:")

    def qkv_front(self, redo):
        a = self.a
        D = self.D
        a(f"""s_add_u32 s{sPF}, s{sFB}, s{sGR}
        s_add_u32 s{sPF}, s{sPF}, {hx(2*SEAM + DRN - LBLK)}
        s_mov_b32 s{sRETRY}, 0""")
        self.wait_go(-1)
        self.stamp(1)
        a(f"""{redo}:
        s_mul_i32 s{sOFF}, s{sT}, 28672
        s_add_u32 s{sOFF}, s{sOFF}, s{sLB}
        s_sub_u32 s{sOFF}, s{sOFF}, 0x1000000""")
        self.xload(0); self.xload(1)
        a(f"""v_lshrrev_b32 {v(vCS0)}, 5, {v(vLANE)}
        v_mul_u32_u24 {v(vCS0)}, {7*256}, {v(vCS0)}
        v_and_b32 {v(vCS1)}, 31, {v(vLANE)}
        v_lshl_add_u32 {v(vCS0)}, {v(vCS1)}, 3, {v(vCS0)}
        s_mul_i32 s{sB_}, s{sT}, {14*256}
        s_add_u32 s{sB_}, s{sB_}, s{sLB}
        s_add_u32 s{sB_}, s{sB_}, {hx(OFF_ST - 0x1000000)}""")
        for i in range(7):
            a(f"buffer_load_dwordx2 {v(ACQ+2*i,2)}, {v(vCS0)}, {srd(S_WS)}, s{sB_} offen offset:{256*i} sc1"); self.vm.issue("st")
        for s in range(2, D): self.xload(s)
        self.tr_pair(WF, 0, 1, ("w", 0)); self.tr_pair(WF + 4, 0, 2, ("w", 0))
        def st0():
            for i in range(1, 7):
                a(f"v_pk_add_f32 {v(ACQ,2)}, {v(ACQ,2)}, {v(ACQ+2*i,2)}")
        return {2: st0, 3: lambda: self.stats_finish(ACQ, ACQ + 1), 5: lambda: self.stats_read(0), 7: lambda: self.stats_read(1)}

    def first_qkv(self):
        a = self.a
        a(f"""s_mov_b32 s{sRETRY}, 1
        s_mov_b32 s{sPF}, 0
        s_mul_i32 s{sOFF}, s{sT}, 28672
        v_lshrrev_b32 v22, 3, {v(vLANE)}
        v_and_b32 v23, 7, {v(vLANE)}
        v_lshrrev_b32 v24, 4, {v(vLANE)}
        v_xor_b32 v23, v23, v24
        v_mul_u32_u24 v22, 896, v22
        v_lshl_add_u32 {v(SB)}, v23, 4, v22
        v_xor_b32 v23, 4, v23
        v_lshl_add_u32 {v(SB+1)}, v23, 4, v22
        s_lshl_b32 s{sE}, s{sWAVE}, 14
        s_add_u32 s{sE}, s{sE}, {R2}
        s_lshl_b32 s{sXC}, s{sR7}, 7
        s_add_u32 s{sXC}, s{sXC}, s{sOFF}
        s_add_u32 s{sLIM}, s{sOFF}, 896""")
        def xdma(c):
            for i in range(4):
                a(f"""s_add_u32 m0, s{sE}, {(c&3)*4096+i*1024}
                s_add_u32 s{sA}, s{sXC}, {i*8*896}
                buffer_load_dwordx4 {v(SB+(i&1))}, {srd(S_X)}, s{sA} offen lds""")
                self.vm.issue(("xc", c))
            a(f"""s_add_u32 s{sXC}, s{sXC}, 128
            s_cmp_eq_u32 s{sXC}, s{sLIM}
            s_cselect_b32 s{sXC}, s{sOFF}, s{sXC}""")
        NX0 = self.opt.get("nx0", 4)
        for c in range(NX0): xdma(c)
        a(f"""s_mov_b32 s{sB_}, 0x3f803f80
        v_and_b32 v22, 31, {v(vLANE)}
        v_lshrrev_b32 v23, 5, {v(vLANE)}
        v_bfe_u32 v24, {v(vLANE)}, 1, 3
        v_xor_b32 v23, v23, v24
        v_lshlrev_b32 v23, 4, v23
        v_lshl_add_u32 v22, v22, 7, v23""")
        for i in range(4):
            a(f"v_xor_b32 {v(SB+2+i)}, {32*i}, v22\nv_add_u32 {v(SB+2+i)}, s{sE}, {v(SB+2+i)}")
        for i in range(4): a(f"v_mov_b32 {v(ACQ+i)}, 0\nv_mov_b32 {v(ACQ+4+i)}, -1")
        self.stamp(12)
        def xstage(c):
            self.wait(vm=("xc", c))
            for i in range(4):
                a(f"ds_read_b128 {v(XF+16*c+4*i,4)}, {v(SB+2+i)} offset:{(c&3)*4096}"); self.lg.issue(("xr", i))
            for i in range(4):
                self.wait(lg=("xr", i))
                if i == 3 and c + NX0 < 7: xdma(c + NX0)
                for j in range(4):
                    r = XF + 16 * c + 4 * i + j
                    a(f"v_dot2_f32_bf16 {v(ACQ+(j&1)*2)}, {v(r)}, s{sB_}, {v(ACQ+(j&1)*2)}")
                    a(f"v_dot2_f32_bf16 {v(ACQ+(j&1)*2+1)}, {v(r)}, {v(r)}, {v(ACQ+(j&1)*2+1)}")
            if c == 7 - NX0:
                a(f"""s_mul_i32 s{sA}, s{sTW}, 28672
                s_lshl_b32 s{sC_}, s{sC}, 6
                s_add_u32 s{sA}, s{sA}, s{sC_}
                buffer_load_dwordx4 {v(ACQ+8,4)}, {v(vRM)}, {srd(S_X)}, s{sA} offen
                buffer_load_dwordx4 {v(ACQ+12,4)}, {v(vRM)}, {srd(S_X)}, s{sA} offen offset:32""")
                self.vm.issue("res"); self.vm.issue("res")
                self.prefill(0, ACQ + 4, parts="o", track=True)
            if c == 6:
                a(f"v_pk_add_f32 {v(ACQ,2)}, {v(ACQ,2)}, {v(ACQ+2,2)}")
                self.stats_finish(ACQ, ACQ + 1)
                self.stats_read(0); self.stats_read(1)
                self.wait_all(vm=False)
        def wstage(c):
            self.barrier()
            if c == 0: self.stamp(2)
            WB = (WF, WF + 8, CS16, CS16 + 8)
            for i in range(3):
                self.tr_pair(WB[i], 4 * c + i, 1, ("w", i)); self.tr_pair(WB[i] + 4, 4 * c + i, 2, ("w", i))
            for i in range(4):
                s = 4 * c + i
                self.wait(lg=("w", i))
                if i == 0:
                    self.tr_pair(WB[3], 4 * c + 3, 1, ("w", 3)); self.tr_pair(WB[3] + 4, 4 * c + 3, 2, ("w", 3))
                self.mfma(ACK, XF + 4 * s, WB[i], ACK if s else None)
                self.mfma(ACV, XF + 4 * s, WB[i] + 4, ACV if s else None)
            if c == 5:
                R = ACQ + 8
                self.wait(vm="res")
                for f in range(2):
                    a(f"v_permlane32_swap_b32 {v(R+4*f)}, {v(R+4*f+2)}\nv_permlane32_swap_b32 {v(R+4*f+1)}, {v(R+4*f+3)}")
                for i in range(8):
                    a(f"v_lshlrev_b32 {v(XRES+2*i)}, 16, {v(R+i)}\nv_and_b32 {v(XRES+2*i+1)}, 0xffff0000, {v(R+i)}")
        AH = self.opt.get("ah", 3)
        for c in range(AH): xstage(c)
        for c in range(7):
            if c + AH < 7: xstage(c + AH)
            wstage(c)

    def layer_A(self):
        a = self.a
        a("L_layerA:")
        a(f"""s_mov_b32 s{sK0}, {hx(f2u(LOG2E))}
        s_mov_b32 s{sK0+1}, {hx(f2u(1e-6))}
        s_cmp_eq_u32 s{sL}, 0
        s_cbranch_scc0 L_A_later""")
        self.first_qkv()
        self.stamp(11)
        self.barrier()
        self.load_cs_lane("A")
        self.wait_all()
        a("s_branch L_A_epi\nL_A_later:")
        self.vm.clear(); self.lg.clear()
        ins = self.qkv_front("L_A_redo")
        ins[9] = lambda: self.load_cs_lane("A")
        self.kv_loop("A", inserts=ins)
        self.drained_late(sGT, 2 * SEAM + DRN - LBLK, True)
        a("L_A_epi:")
        self.vm.clear(); self.lg.clear()
        self.stamp(3)
        self.fix_feat(ACK, vCS0)
        self.fix_feat(ACV, vCS1)
        for r in range(0, 16, 2):
            a(f"v_pk_fma_f32 {v(ACK+r,2)}, {v(ACK+r,2)}, {v(SA+r,2)}, s[{sK0}:{sK0+1}] op_sel:[0,0,1] op_sel_hi:[1,1,1]")
        for r in range(0, 16, 2):
            a(f"v_pk_mul_f32 {v(ACV+r,2)}, {v(ACV+r,2)}, {v(SA+r,2)}")
        self.pack(ACV, WF + 8)
        for i in range(8):
            a(f"v_cndmask_b32 {v(WF+8+i)}, {v(WF+8+i)}, {v(vPADV)}, s[{sMPAD}:{sMPAD+1}]")
        self.phi(ACK, CS16, WF)
        self.mfma(ACK, WF, WF + 8, None)
        self.mfma(ACK, WF + 4, WF + 12, ACK)
        a(f"""s_lshl_b32 s{sA}, s{sWAVE}, 12
        s_add_u32 s{sA}, s{sA}, {SCR}
        v_add_u32 {v(vCS0)}, s{sA}, {v(vL16)}
        s_lshl_b32 s{sA}, s{sWAVE}, 11
        s_add_u32 s{sA}, s{sA}, {SCR}
        v_add_u32 {v(vCS1)}, s{sA}, {v(vL16)}
        s_lshl_b32 s{sC_}, s{sIM}, 11
        s_lshl_b32 s{sA}, s{sWAVE}, 10
        s_add_u32 s{sC_}, s{sC_}, s{sA}
        s_add_u32 s{sC_}, s{sC_}, s{sLB}
        s_add_u32 s{sC_}, s{sC_}, {hx(OFF_KV)}""")
        self.nan_check(ACK, "L_A_redo", 14)
        for q in range(4):
            a(f"ds_write_b128 {v(vCS0)}, {v(ACK+4*q,4)} offset:{1024*q}")
        self.stamp(13)
        self.wait_all(vm=False)
        self.stamp(14)
        self.barrier()
        self.stamp(7)
        a(f"""s_cmp_ge_u32 s{sWAVE}, 2
        s_cbranch_scc1 L_A_q""")
        for w in range(4):
            a(f"ds_read_b128 {v(ACK+8*w,4)}, {v(vCS1)} offset:{4096*w}\nds_read_b128 {v(ACK+8*w+4,4)}, {v(vCS1)} offset:{4096*w+1024}")
        for w in range(1, 4):
            a(f"s_waitcnt lgkmcnt({6-2*w})")
            for r in range(0, 8, 2):
                a(f"v_pk_add_f32 {v(ACK+r,2)}, {v(ACK+r,2)}, {v(ACK+8*w+r,2)}")
        for i in range(4):
            a(f"v_cvt_pk_bf16_f32 {v(ACK+8+i)}, {v(ACK+2*i)}, {v(ACK+2*i+1)}")
        a(f"""v_mov_b32 {v(vT0)}, 1
        buffer_store_dwordx4 {v(ACK+8,4)}, {v(vL16)}, {srd(S_WS)}, s{sC_} offen sc1""")
        if not self.ek: self.ctr_add(sGH, 0, vT0)
        a("L_A_q:")
        self.vm.clear(); self.lg.clear()
        self.stamp(4)
        ID = ACV
        def ident(i):
            d0 = 16 * (i >> 2) + 8 * ((i & 3) >> 1) + 2 * (i & 1)
            a(f"""v_cmp_eq_u32 vcc, {d0}, {v(vCS1)}
            v_cmp_eq_u32 s[{sE}:{sE+1}], {d0+1}, {v(vCS1)}
            v_cndmask_b32 {v(ID+i)}, 0, {v(ID+8)}, vcc
            v_cndmask_b32 {v(ID+i)}, {v(ID+i)}, {v(ID+9)}, s[{sE}:{sE+1}]""")
        def ident0():
            a(f"""v_lshrrev_b32 {v(vCS0)}, 5, {v(vLANE)}
            v_and_b32 {v(vCS1)}, 31, {v(vLANE)}
            v_lshlrev_b32 {v(vCS0)}, 2, {v(vCS0)}
            v_sub_u32 {v(vCS1)}, {v(vCS1)}, {v(vCS0)}
            v_mov_b32 {v(ID+8)}, 0x3f80
            v_mov_b32 {v(ID+9)}, 0x3f800000""")
        ins = {1: ident0, 24: lambda: self.load_cs_reg("A", 0)}
        for i in range(8): ins[3 + 2 * i] = (lambda i=i: ident(i))
        self.q_loop(ins)
        self.drained(sGH, 0)
        a(f"""s_lshl_b32 s{sOFF}, s{sH}, 2
        s_add_u32 s{sOFF}, s{sOFF}, s{sWAVE}
        s_lshl_b32 s{sOFF}, s{sOFF}, 13
        s_add_u32 s{sOFF}, s{sOFF}, s{sLB}
        s_add_u32 s{sOFF}, s{sOFF}, {hx(OFF_KV)}
        s_add_u32 s{sOFFMAX}, s{sOFF}, 4096
        s_add_u32 s{sPF}, s{sFB}, s{sGH}
        s_add_u32 s{sPF}, s{sPF}, {DRN}
        s_mov_b32 s{sRETRY}, 0""")
        self.wait_all(vm=False)
        self.fix_tok(ACQ)
        pair = vA & ~1; sel = vA & 1
        for r in range(0, 16, 2):
            a(f"v_pk_fma_f32 {v(ACQ+r,2)}, {v(ACQ+r,2)}, {v(pair,2)}, s[{sK0}:{sK0+1}] op_sel:[0,{sel},1] op_sel_hi:[1,{sel},1]")
        PQ = WF
        self.stamp(5)
        self.barrier()
        self.stamp(6)
        a("L_A_mredo:")
        for i in range(8):
            so = sOFF if i < 4 else sOFFMAX
            a(f"buffer_load_dwordx4 {v(XF+4*i,4)}, {v(vL16)}, {srd(S_WS)}, s{so} offen offset:{(i&3)*1024} sc1"); self.vm.issue(("p", i))
        a(f"""s_cmp_lg_u32 s{sRETRY}, 0
        s_cbranch_scc1 L_A_nophi""")
        self.phi(ACQ, CS16, PQ)
        self.exec_hi()
        a(f"v_mov_b32 {v(PQ+6)}, 0\nv_mov_b32 {v(PQ+7)}, 0")
        self.exec_all()
        a(f"""L_A_nophi:
        s_lshl_b32 s{sA}, s{sWAVE}, 11
        s_add_u32 s{sA}, s{sA}, {SCR}
        v_add_u32 {v(vCS0)}, s{sA}, {v(vL16)}
        v_add_u32 {v(vCS1)}, {SCR}, {v(vL16)}""")
        for i in range(8):
            self.wait(vm=("p", i))
            self.mfma(ACK, ID + 4 * (i & 1), XF + 4 * i, ACK if i else None)
        self.nan_check(ACK, "L_A_mredo", 16)
        self.pack(ACK, XF + 64)
        a(f"ds_write_b128 {v(vCS0)}, {v(XF+64,4)}\nds_write_b128 {v(vCS0)}, {v(XF+68,4)} offset:1024")
        self.wait_all(vm=False)
        self.barrier()
        for i in range(8):
            a(f"ds_read_b128 {v(XF+4*i,4)}, {v(vCS1)} offset:{1024*i}")
        for i in range(8):
            a(f"s_waitcnt lgkmcnt({7-i})")
            acc = ACQ if i & 1 else ACK
            self.mfma(ACQ, XF + 4 * i, PQ + 4 * (i & 1), ACQ if i else None)
        if self.eo: self.barrier()
        self.finalize_o(ACQ, ACK, True)
        if not self.eo: self.barrier()
        a("s_branch L_wo")

    def layer_B(self):
        a = self.a
        Q = 32; O = 64
        a("L_layerB:")
        self.vm.clear(); self.lg.clear()
        ins = self.qkv_front("L_B_redo")
        ins[9] = lambda: self.load_cs_lane("B")
        ins[11] = lambda: self.load_cs_reg("B", 1)
        def padf():
            a(f"v_and_b32 {v(vCS0)}, 0xffff0000, {v(vPADV)}")
        ins[14] = padf
        self.kv_loop("B", inserts=ins)
        self.drained_late(sGT, 2 * SEAM + DRN - LBLK, True)
        a(f"""s_cmp_lg_u32 s{sL}, 1
        s_cbranch_scc1 L_B_cs
        s_cmp_lg_u32 s{sRETRY}, 0
        s_cbranch_scc1 L_B_cs""")
        self.barrier()
        self.load_cs_lane("B"); self.load_cs_reg("B", 1)
        self.wait_all(vm=False)
        padf()
        a("L_B_cs:")
        self.stamp(3)
        a(f"""s_lshl_b32 s{sC_}, s{sH}, 6
        s_add_u32 s{sC_}, s{sC_}, s{sT}
        s_lshl_b32 s{sC_}, s{sC_}, 12
        s_add_u32 s{sC_}, s{sC_}, s{sLB}
        s_add_u32 s{sC_}, s{sC_}, {hx(OFF_KV)}""")
        self.fix_tok(ACK)
        self.scale_lane(ACK, vA)
        self.nan_check(ACK, "L_B_redo", 14)
        KO = CS16
        self.pack(ACK, KO)
        self.exec_hi()
        a(f"v_mov_b32 {v(KO+6)}, 0x3f803f80\nv_mov_b32 {v(KO+7)}, 0x3f80")
        self.exec_all()
        for i in range(2):
            a(f"buffer_store_dwordx4 {v(KO+4*i,4)}, {v(vL16)}, {srd(S_WS)}, s{sC_} offen offset:{1024*i} sc1")
        self.fix_feat(ACV, vCS1)
        for r in range(0, 16, 2):
            a(f"v_pk_fma_f32 {v(ACV+r,2)}, {v(ACV+r,2)}, {v(SA+r,2)}, {v(vCS0,2)} op_sel:[0,0,0] op_sel_hi:[1,1,0]")
        self.pack(ACV, KO + 8)
        for i in range(2, 4):
            a(f"buffer_store_dwordx4 {v(KO+4*i,4)}, {v(vL16)}, {srd(S_WS)}, s{sC_} offen offset:{1024*i} sc1")
        self.sumsq(ACK, vT0)
        for sh in (1, 2, 4, 8):
            a(f"v_max_f32_dpp {v(vT0)}, {v(vT0)}, {v(vT0)} row_ror:{sh} row_mask:0xf bank_mask:0xf")
        a(f"""v_readlane_b32 s{sC_}, {v(vT0)}, 16
        s_add_u32 s{sA}, s{sFB}, s{sGH}
        s_add_u32 s{sA}, s{sA}, s{sWL}
        s_lshl_b32 s{sB_}, s{sRB}, 2
        s_add_u32 s{sA}, s{sA}, s{sB_}
        v_max3_u32 {v(vCS0)}, s{sC_}, {v(vT0)}, 1""")
        def kvhint():
            if self.kd: a("s_waitcnt vmcnt(0)")
            a(f"""s_mov_b64 exec, 1
            buffer_atomic_add {v(vCS0)}, off, {srd(S_WS)}, s{sA} sc1
            s_mov_b64 exec, -1""")
        if not self.kd: kvhint()
        self.stamp(4)
        self.load_cs_reg("B", 0, SB)
        ins = {}
        for s_ in range(8, 24):
            ins[s_ + 1] = (lambda s_=s_: [a(f"v_mov_b32 {v(XF+4*s_+j)}, 0") for j in range(4)])
        if self.kd:
            prev = ins.get(self.kd)
            ins[self.kd] = lambda: ((prev() if prev else None), kvhint())
        self.q_loop(ins)
        if not self.kd: self.drained(sGH, 0)
        self.fix_tok(ACQ, SB)
        a(f"v_mul_f32 {v(vA)}, {hx(f2u(QSCALE))}, {v(vA)}")
        self.scale_lane(ACQ, vA)
        self.pack(ACQ, WF)
        self.sumsq(ACQ, vT0)
        a(f"v_sqrt_f32 {v(vT0)}, {v(vT0)}")
        self.exec_hi()
        a(f"v_mov_b32 {v(WF+6)}, {v(vT0)}")
        self.exec_all()
        a(f"""s_lshl_b32 s{sA}, s{sWAVE}, 11
        s_add_u32 s{sA}, s{sA}, {SCR}
        v_add_u32 {v(vT0)}, s{sA}, {v(vL16)}
        ds_write_b128 {v(vT0)}, {v(WF,4)}
        ds_write_b128 {v(vT0)}, {v(WF+4,4)} offset:1024
        s_add_u32 s{sPF}, s{sFB}, s{sGH}
        s_add_u32 s{sPF}, s{sPF}, {DRN}""")
        self.attention()

    def attention(self):
        a = self.a
        Q = 32; O = 64; S = 128; P = 160
        SL = (CS16, 168, 184, 200)
        for i in range(4): a(f"v_mov_b32 {v(P+4+i)}, 0\nv_mov_b32 {v(SL[3]+12+i)}, 0")
        for i in range(4):
            a(f"""s_add_u32 s{sA}, s{sWAVE}, {i+1}
            s_and_b32 s{sA}, s{sA}, 3
            s_mul_i32 s{sB_}, s{sA}, 12288
            s_lshl_b32 s{sA}, s{sA}, 11
            s_add_u32 s{sA}, s{sA}, {SCR}
            v_add_u32 {v(S+16+i)}, s{sA}, {v(vL16)}
            v_add_u32 {v(216+i)}, s{sB_}, {v(vL16)}""")
        a(f"""s_lshl_b32 s{sOFFMAX}, s{sH}, 18
        s_lshl_b32 s{sA}, s{sWAVE}, 12
        s_add_u32 s{sOFFMAX}, s{sOFFMAX}, s{sA}
        s_add_u32 s{sOFFMAX}, s{sOFFMAX}, s{sLB}
        s_add_u32 s{sOFFMAX}, s{sOFFMAX}, {hx(OFF_KV)}
        s_lshl_b32 s{sG}, s{sRB}, 14
        s_add_u32 s{sG}, s{sG}, s{sOFFMAX}
        s_sub_u32 s{sOFF}, s{sOFFMAX}, 0x4000
        s_mul_i32 s{sA}, s{sL}, 12
        s_add_u32 s{sA}, s{sA}, {GO}
        v_mov_b32 {v(vT1)}, s{sA}""")
        def kvload(slot, j):
            a(f"buffer_load_dwordx4 {v(SL[slot]+4*j,4)}, {v(vL16)}, {srd(S_WS)}, s{sOFF} offen offset:{1024*j} sc1")
        def adv():
            a(f"s_add_u32 s{sOFF}, s{sOFF}, 0x4000\ns_cmp_eq_u32 s{sOFF}, s{sG}\ns_cselect_b32 s{sA}, 0x4000, 0\ns_add_u32 s{sOFF}, s{sOFF}, s{sA}")
        adv()
        a("s_waitcnt lgkmcnt(0)")
        self.stamp(5)
        self.barrier()
        self.stamp(6)
        a(f"ds_read_b32 {v(vT0)}, {v(vT1)}")
        for i in range(4):
            a(f"ds_read_b128 {v(Q+8*i,4)}, {v(S+16+i)}\nds_read_b128 {v(Q+8*i+4,4)}, {v(S+16+i)} offset:1024")
        for slot in (1, 2):
            for j in range(4): kvload(slot, j)
            adv()
        a(f"""s_waitcnt lgkmcnt(6)
        v_sqrt_f32 {v(vT0)}, {v(vT0)}
        v_mov_b32 {v(vT1)}, {hx(f2u(SHIFT_UP))}""")
        self.mfma(S, SL[0], Q, None)
        self.exec_hi()
        for i in range(4):
            if i: a(f"s_waitcnt lgkmcnt({6-2*i})")
            a(f"v_fma_f32 {v(Q+8*i+6)}, -{v(Q+8*i+6)}, {v(vT0)}, {v(vT1)}")
            a(f"v_cvt_pk_bf16_f32 {v(Q+8*i+6)}, {v(Q+8*i+6)}, 0")
        self.exec_all()
        self.mfma(S, SL[0] + 4, Q + 4, S)
        a(f"s_mov_b32 s{sLOOP}, 3\ns_mov_b32 s{sRETRY}, 0\ns_nop 9")
        def group(last):
            for n in range(16):
                kt, i = n >> 2, n & 3
                pk, pi = ((n - 1) & 15) >> 2, (n - 1) & 3
                nk, ni = ((n + 1) & 15) >> 2, (n + 1) & 3
                Sc, Sn = S + 16 * (n & 1), S + 16 * ((n + 1) & 1)
                ex = lambda r: a(f"v_exp_f32 {v(Sc+r)}, {v(Sc+r)}")
                cv = lambda j: a(f"v_cvt_pk_bf16_f32 {v(P+j)}, {v(Sc+2*j)}, {v(Sc+2*j+1)}")
                fin = last and n == 15
                wr = last and n >= 13
                dw = lambda q: a(f"ds_write_b128 {v(216+pi)}, {v(O+16*pi+4*q,4)} offset:{OX+4096*(2-pi)+1024*q}")
                ex(0); ex(1)
                self.mfma(O + 16 * pi, SL[pk] + 12, P + 4, O + 16 * pi)
                for r in range(2, 6): ex(r)
                if i == 3 and not fin:
                    a(f"s_waitcnt vmcnt({7 if not last else (7, 4, 0)[kt]})")
                if not fin: self.mfma(Sn, SL[nk], Q + 8 * ni, None)
                ex(6); ex(7); cv(0); cv(1); cv(2)
                if not fin: self.mfma(Sn, SL[nk] + 4, Q + 8 * ni + 4, Sn)
                cv(3)
                for r in range(8, 12): ex(r)
                self.mfma(O + 16 * i, SL[kt] + 8, P, O + 16 * i)
                if not last or kt == 0:
                    kvload((kt + 3) & 3, i)
                    if i == 3: adv()
                for r in range(12, 16):
                    ex(r)
                    if wr: dw(r - 12)
                for j in range(4, 8): cv(j)
        a("L_att:")
        group(False)
        a(f"""s_sub_u32 s{sLOOP}, s{sLOOP}, 1
        s_cmp_lg_u32 s{sLOOP}, 0
        s_cbranch_scc1 L_att""")
        group(True)
        self.mfma(O + 48, SL[3] + 12, P + 4, O + 48)
        self.stamp(7)
        a("s_waitcnt lgkmcnt(0)")
        self.barrier()
        for i in range(3):
            for q in range(4):
                a(f"ds_read_b128 {v(O+16*i+4*q,4)}, {v(219)} offset:{OX+4096*i+1024*q}")
        O = O + 48
        for i in range(3):
            a(f"s_waitcnt lgkmcnt({8-4*i})")
            for r in range(0, 16, 2):
                a(f"v_pk_add_f32 {v(O+r,2)}, {v(O+r,2)}, {v(O-48+16*i+r,2)}")
        if self.eo: self.barrier()
        a(f"v_pk_add_f32 {v(vCS0,2)}, {v(O,2)}, {v(O+2,2)}")
        for r in range(4, 16, 2):
            a(f"v_pk_add_f32 {v(vCS0,2)}, {v(vCS0,2)}, {v(O+r,2)}")
        a(f"""v_add_f32 {v(vCS0)}, {v(vCS0)}, {v(vCS1)}
        s_movk_i32 s{sB_}, 0x207
        v_cmp_class_f32_e64 s[{sK0}:{sK0+1}], {v(vCS0)}, s{sB_}
        s_mov_b32 exec_lo, 0
        v_cmp_nle_f32 vcc, {hx(f2u(L_MIN))}, {v(O+12)}
        s_mov_b32 exec_lo, -1
        s_or_b64 vcc, vcc, s[{sK0}:{sK0+1}]
        s_cbranch_vccnz L_slow
        L_att_fin:""")
        self.finalize_o(O, P, False)
        if not self.eo: self.barrier()

    def slow_path(self):
        a = self.a
        Q = 56; O = 112; S = 128; P = 160; KV = 168; M = 232
        a("L_slow:")
        if not self.kd:
            self.poll_ctr(f"s{sPF}", 16, vT0, four=vT1)
            a("buffer_inv sc1\ns_waitcnt vmcnt(0)")
        a(f"""s_mov_b32 s{sRETRY}, 1
        s_lshl_b32 s{sOFFMAX}, s{sH}, 18
        s_add_u32 s{sOFFMAX}, s{sOFFMAX}, s{sLB}
        s_add_u32 s{sOFFMAX}, s{sOFFMAX}, {hx(OFF_KV)}
        s_mov_b32 s{sOFF}, s{sOFFMAX}
        v_mov_b32 {v(M)}, 0xff800000""")
        self.exec_hi()
        a(f"v_mov_b32 {v(Q+6)}, 0\nv_mov_b32 {v(Q+7)}, 0")
        self.exec_all()
        a(f"""s_mov_b32 s{sLOOP}, 64
        L_slow1:
        buffer_load_dwordx4 {v(KV,4)}, {v(vL16)}, {srd(S_WS)}, s{sOFF} offen sc1
        buffer_load_dwordx4 {v(KV+4,4)}, {v(vL16)}, {srd(S_WS)}, s{sOFF} offen offset:1024 sc1
        s_add_u32 s{sOFF}, s{sOFF}, 4096
        s_waitcnt vmcnt(0)""")
        self.mfma(S, KV, Q, None); self.mfma(S, KV + 4, Q + 4, S)
        for r in range(0, 16, 2):
            a(f"v_max3_f32 {v(M)}, {v(S+r)}, {v(S+r+1)}, {v(M)}")
        a(f"""s_sub_u32 s{sLOOP}, s{sLOOP}, 1
        s_cmp_lg_u32 s{sLOOP}, 0
        s_cbranch_scc1 L_slow1
        v_mov_b32 {v(M+1)}, {v(M)}
        v_permlane32_swap_b32 {v(M)}, {v(M+1)}
        v_max_f32 {v(M)}, {v(M)}, {v(M+1)}
        v_sub_f32 {v(M)}, 0, {v(M)}
        v_and_b32 {v(M+1)}, 0xffff0000, {v(M)}
        v_sub_f32 {v(M)}, {v(M)}, {v(M+1)}
        v_and_b32 {v(M+2)}, 0xffff0000, {v(M)}
        v_sub_f32 {v(M)}, {v(M)}, {v(M+2)}
        v_lshrrev_b32 {v(M+1)}, 16, {v(M+1)}""")
        self.exec_hi()
        a(f"v_or_b32 {v(Q+6)}, {v(M+1)}, {v(M+2)}\nv_lshrrev_b32 {v(Q+7)}, 16, {v(M)}")
        self.exec_all()
        for i in range(16): a(f"v_mov_b32 {v(O+i)}, 0")
        a(f"""s_mov_b32 s{sOFF}, s{sOFFMAX}
        s_mov_b32 s{sLOOP}, 64
        L_slow2:""")
        for j in range(4):
            a(f"buffer_load_dwordx4 {v(KV+4*j,4)}, {v(vL16)}, {srd(S_WS)}, s{sOFF} offen offset:{1024*j} sc1")
        a(f"s_add_u32 s{sOFF}, s{sOFF}, 4096\ns_waitcnt vmcnt(0)")
        self.mfma(S, KV, Q, None); self.mfma(S, KV + 4, Q + 4, S)
        for r in range(16): a(f"v_exp_f32 {v(S+r)}, {v(S+r)}")
        self.pack(S, P)
        self.mfma(O, KV + 8, P, O); self.mfma(O, KV + 12, P + 4, O)
        a(f"""s_sub_u32 s{sLOOP}, s{sLOOP}, 1
        s_cmp_lg_u32 s{sLOOP}, 0
        s_cbranch_scc1 L_slow2
        s_branch L_att_fin""")

    def wo_phase(self):
        a = self.a
        OF = 32; SEND = 96; RECV = 112; PK = 128; KEEP = 144
        a("L_wo:")
        self.vm.clear(); self.lg.clear()
        self.stamp(8)
        a(f"""s_cmp_eq_u32 s{sISWO}, 0
        s_cbranch_scc1 L_wo_skip
        s_lshr_b32 s{sD}, s{sWAVE}, 1
        s_lshl_b32 s{sA}, s{sTW}, 1
        s_add_u32 s{sA}, s{sA}, s{sD}
        s_lshl_b32 s{sOFFMAX}, s{sA}, 14
        s_add_u32 s{sOFFMAX}, s{sOFFMAX}, s{sLB}
        s_add_u32 s{sOFFMAX}, s{sOFFMAX}, {hx(OFF_O)}
        s_add_u32 s{sPF}, s{sFB}, s{sGT}
        s_add_u32 s{sPF}, s{sPF}, {SEAM+DRN}
        s_mov_b32 s{sRETRY}, 0
        s_mul_i32 s{sSO0}, s{sTW}, 28672
        s_cmp_eq_u32 s{sL}, 3
        s_cbranch_scc1 L_wo_last
        s_lshl_b32 s{sB_}, s{sC}, 11
        s_add_u32 s{sSO0}, s{sSO0}, s{sB_}
        s_add_u32 s{sSO0}, s{sSO0}, s{sLB}
        s_add_u32 s{sSO1}, s{sSO0}, 1024
        v_mov_b32 {v(vXO)}, {v(vL16)}
        s_branch L_wo_addr
        L_wo_last:
        s_lshl_b32 s{sB_}, s{sC}, 6
        s_add_u32 s{sSO0}, s{sSO0}, s{sB_}
        s_add_u32 s{sSO1}, s{sSO0}, 32
        v_mov_b32 {v(vXO)}, {v(vRM)}
        s_mov_b32 s{S_XOUT}, s{PTR+12}
        s_mov_b32 s{S_XOUT+1}, s{PTR+13}
        s_mov_b32 s{S_XOUT+2}, 1835008
        L_wo_addr:
        s_lshl_b32 s{sA}, s{sWAVE}, 12
        s_add_u32 s{sB_}, s{sA}, {SCR}
        v_add_u32 {v(vA)}, s{sB_}, {v(vL16)}
        s_xor_b32 s{sA}, s{sA}, 8192
        s_add_u32 s{sA}, s{sA}, {SCR}
        v_add_u32 {v(vNM)}, s{sA}, {v(vL16)}
        s_mul_i32 s{sG}, s{sTW}, 14
        s_add_u32 s{sG}, s{sG}, s{sC}
        s_lshl_b32 s{sG}, s{sG}, 8
        s_add_u32 s{sG}, s{sG}, s{sLB}
        s_add_u32 s{sG}, s{sG}, {hx(OFF_ST)}
        v_lshlrev_b32 {v(vCS1)}, 3, {v(vLANE)}""")
        def wtr(dst, base, n):
            off = (28 * (n >> 1) + 16 * (n & 1)) * 128
            a(f"ds_read_b64_tr_b16 {v(dst,2)}, {v(base)} offset:{off}"); self.lg.issue(("w", n))
            a(f"ds_read_b64_tr_b16 {v(dst+2,2)}, {v(base)} offset:{off+1024}"); self.lg.issue(("w", n))
        self.wait_go(1)
        self.stamp(9)
        a(f"L_wo_redo:\ns_mov_b32 s{sOFF}, s{sOFFMAX}")
        for n in range(16):
            if n and n % 4 == 0: a(f"s_add_u32 s{sOFF}, s{sOFF}, 4096")
            a(f"buffer_load_dwordx4 {v(OF+4*n,4)}, {v(vL16)}, {srd(S_WS)}, s{sOFF} offen offset:{(n%4)*1024} sc1"); self.vm.issue(("o", n))
        wtr(WF, vWK, 0); wtr(WF + 4, vWS_, 0)
        for n in range(16):
            p = n & 1
            if n + 1 < 16:
                wtr(WF + 8 * (1 - p), vWK, n + 1); wtr(WF + 8 * (1 - p) + 4, vWS_, n + 1)
            self.wait(vm=("o", n), lg=("w", n))
            self.mfma(SEND, WF + 8 * p + 4, OF + 4 * n, SEND if n else None)
            self.mfma(KEEP, WF + 8 * p, OF + 4 * n, KEEP if n else XRES)
        self.drained_late(sGR, SEAM + DRN)
        self.nan_check(SEND, "L_wo_redo", 16)
        for q in range(4):
            a(f"ds_write_b128 {v(vA)}, {v(SEND+4*q,4)} offset:{1024*q}")
        a("s_waitcnt lgkmcnt(0)")
        self.barrier()
        self.stamp(12)
        for q in range(4):
            a(f"ds_read_b128 {v(RECV+4*q,4)}, {v(vNM)} offset:{1024*q}")
        for f in range(2):
            for q in range(2 * f, 2 * f + 2):
                a(f"s_waitcnt lgkmcnt({3-q})")
                a(f"v_pk_add_f32 {v(XRES+4*q,2)}, {v(KEEP+4*q,2)}, {v(RECV+4*q,2)}\nv_pk_add_f32 {v(XRES+4*q+2,2)}, {v(KEEP+4*q+2,2)}, {v(RECV+4*q+2,2)}")
            if f == 0 and self.ex >= 2:
                a("s_waitcnt lgkmcnt(0)")
                self.barrier()
            for i in range(4 * f, 4 * f + 4):
                a(f"v_cvt_pk_bf16_f32 {v(PK+i)}, {v(XRES+2*i)}, {v(XRES+2*i+1)}")
            a(f"v_permlane32_swap_b32 {v(PK+4*f)}, {v(PK+4*f+2)}\nv_permlane32_swap_b32 {v(PK+4*f+1)}, {v(PK+4*f+3)}")
            a(f"buffer_store_dwordx4 {v(PK+4*f,4)}, {v(vXO)}, {srd(S_XOUT)}, s{(sSO0,sSO1)[f]} offen sc1")
        a(f"""s_cmp_eq_u32 s{sL}, 3
        s_cbranch_scc1 L_fin""")
        if self.ex == 1: self.barrier()
        a(f"v_pk_add_f32 {v(RECV,2)}, {v(XRES,2)}, {v(XRES+2,2)}\nv_pk_mul_f32 {v(RECV+2,2)}, {v(XRES,2)}, {v(XRES,2)}")
        for r in range(2, 16, 2):
            if r >= 4: a(f"v_pk_add_f32 {v(RECV,2)}, {v(RECV,2)}, {v(XRES+r,2)}")
            a(f"v_pk_fma_f32 {v(RECV+2,2)}, {v(XRES+r,2)}, {v(XRES+r,2)}, {v(RECV+2,2)}")
        a(f"""v_add_f32 {v(RECV+4)}, {v(RECV)}, {v(RECV+1)}
        v_add_f32 {v(RECV+5)}, {v(RECV+2)}, {v(RECV+3)}
        v_add_f32 {v(RECV+6)}, {v(RECV)}, {v(RECV+1)}
        v_add_f32 {v(RECV+7)}, {v(RECV+2)}, {v(RECV+3)}
        v_permlane32_swap_b32 {v(RECV+4)}, {v(RECV+6)}
        v_permlane32_swap_b32 {v(RECV+5)}, {v(RECV+7)}
        v_pk_add_f32 {v(RECV+4,2)}, {v(RECV+4,2)}, {v(RECV+6,2)}""")
        self.exec_lo()
        a(f"buffer_store_dwordx2 {v(RECV+4,2)}, {v(vCS1)}, {srd(S_WS)}, s{sG} offen sc1")
        self.exec_all()
        rb = self.opt.get("rb", 0)
        if rb & 2:
            if rb & 4: a("s_waitcnt vmcnt(0)")
            a(f"""buffer_load_dwordx4 {v(ACK,4)}, {v(vL16)}, {srd(S_WS)}, s{sSO0} offen sc1
            buffer_load_dwordx4 {v(ACK+4,4)}, {v(vL16)}, {srd(S_WS)}, s{sSO1} offen sc1""")
        if self.ex == 0: self.barrier()
        self.stamp(10)
        a("s_branch L_next\nL_wo_skip:")
        self.drained(sGR, 1)
        if self.opt.get("bgo", 1): self.barrier()
        self.barrier()
        a(f"""s_cmp_eq_u32 s{sL}, 3
        s_cbranch_scc1 L_fin""")
        self.barrier()
        a(f"""L_next:
        s_add_u32 s{sL}, s{sL}, 1
        s_add_u32 s{sLB}, s{sLB}, 0x1000000
        s_add_u32 s{sFB}, s{sFB}, {LBLK}
        s_bitcmp1_b32 s{sL}, 0
        s_cbranch_scc1 L_layerB
        s_branch L_layerA""")

    def helper(self):
        a = self.a
        VKV, VQ, VWO, VCS = 16, 17, 18, 19
        ONES, FR, ACC = 24, 28, 64
        NANR, VONE = 128, 132
        NFL = self.opt.get("nfl", 8)
        a(f"""s_sub_u32 s{sHH}, s{sWAVE}, 4
        v_lshrrev_b32 v22, 3, {v(vLANE)}
        v_and_b32 v23, 7, {v(vLANE)}
        v_bfe_u32 v28, {v(vLANE)}, 4, 1
        v_lshlrev_b32 v28, 2, v28
        v_xor_b32 v23, v23, v28
        v_mul_u32_u24 v29, 896, v22
        v_lshl_add_u32 v{VWO}, v23, 4, v29
        v_mul_u32_u24 v29, 2688, v22
        v_lshrrev_b32 v28, 2, v23
        v_mul_u32_u24 v28, 896, v28
        v_and_b32 v23, 3, v23
        v_lshl_add_u32 v29, v23, 4, v29
        v_add_u32 v{VKV}, v29, v28
        v_lshrrev_b32 v22, 2, {v(vLANE)}
        v_mul_u32_u24 v22, 2688, v22
        v_lshl_add_u32 v{VQ}, v23, 4, v22
        s_mul_i32 s{sE}, s{sH}, 56
        s_and_b32 s{sE}, s{sE}, 0xfff0
        s_mul_i32 s{sB_}, s{sHH}, {8*2688}
        s_add_u32 s{sB_}, s{sB_}, s{sE}
        s_add_u32 s{sXC}, s{sB_}, 896
        s_add_u32 s{sLIM}, s{sXC}, {448*2688}
        s_mul_i32 s{sROT}, s{sR7}, {64*2688}
        s_add_u32 s{sB_}, s{sXC}, s{sROT}
        s_lshl_b32 s{sA}, s{sHH}, 10""")
        def raw_kv():
            a(f"""s_mov_b32 m0, s{sA}
            s_add_u32 s{sA}, s{sA}, 4096
            buffer_load_dwordx4 v{VKV}, {srd(S_WQ)}, s{sB_} offen lds
            s_add_u32 s{sB_}, s{sB_}, {32*2688}
            s_cmp_eq_u32 s{sB_}, s{sLIM}
            s_cselect_b32 s{sB_}, s{sXC}, s{sB_}""")
        a(f"""v_mov_b32 v28, 0
        v_mov_b32 v29, 0
        v_mov_b32 v30, 0
        v_mov_b32 v31, 0
        s_cmp_lg_u32 s{sHH}, 3
        s_cbranch_scc1 L_h_noz
        s_cmp_ge_u32 s2, {NZERO}
        s_cbranch_scc1 L_h_noz
        v_mul_u32_u24 v22, {LN}, {v(vLANE)}
        s_mul_i32 s{sC_}, s2, {64*LN}
        buffer_store_dwordx4 v[28:31], v22, {srd(S_WS)}, s{sC_} offen sc1
        buffer_store_dwordx4 v[28:31], v22, {srd(S_WS)}, s{sC_} offen offset:16 sc1
        buffer_store_dwordx4 v[28:31], v22, {srd(S_WS)}, s{sC_} offen offset:32 sc1
        buffer_store_dwordx4 v[28:31], v22, {srd(S_WS)}, s{sC_} offen offset:48 sc1
        L_h_noz:""")
        for i in range(NFL): raw_kv()
        if self.opt.get("tlb", 0):
            a(f"""s_cmp_lg_u32 s{sHH}, 2
            s_cbranch_scc1 L_h_notlb
            v_min_u32 v22, 39, {v(vLANE)}
            v_lshlrev_b32 v22, 21, v22
            v_add_u32 v22, 0x1fff00, v22
            buffer_load_dword v60, v22, {srd(S_WS)}, 0 offen sc1
            L_h_notlb:""")
        a(f"""v_and_b32 v22, 31, {v(vLANE)}
        v_lshlrev_b32 v{VCS}, 2, v22
        v_mov_b32 v24, 0x3f803f80
        v_mov_b32 v25, 0x3f803f80
        v_mov_b32 v26, 0x3f803f80
        v_mov_b32 v27, 0x3f803f80
        v_mov_b32 v{NANR}, -1
        v_mov_b32 v{NANR+1}, -1
        v_mov_b32 v{NANR+2}, -1
        v_mov_b32 v{NANR+3}, -1
        v_mov_b32 v{VONE}, 1
        v_min_u32 v22, 47, {v(vLANE)}
        v_lshlrev_b32 v22, 4, v22
        v_add_u32 v22, {CSA}, v22
        ds_write_b128 v22, v[28:31]
        v_and_b32 v22, 15, {v(vLANE)}
        v_lshlrev_b32 v22, 2, v22
        v_add_u32 v22, {GO}, v22
        ds_write_b32 v22, v28
        s_lshl_b32 s{sC_}, s{sHH}, 11
        v_add_u32 v20, s{sC_}, {v(vTK)}
        v_add_u32 v21, s{sC_}, {v(vTV)}
        s_mul_i32 s{sD}, s{sHH}, {16*2688}
        s_add_u32 s{sD}, s{sD}, s{sE}
        s_add_u32 s{sLIM2}, s{sD}, {448*2688}
        s_add_u32 s{sF}, s{sD}, s{sROT}
        s_lshl_b32 s{sG}, s{sHH}, 10
        s_add_u32 s{sG}, s{sG}, {R1Q}
        s_waitcnt lgkmcnt(0)""")
        def raw_q():
            a(f"""s_mov_b32 m0, s{sG}
            s_add_u32 s{sG}, s{sG}, 4096
            buffer_load_dwordx4 v{VQ}, {srd(S_WQ)}, s{sF} offen lds
            s_add_u32 s{sF}, s{sF}, {64*2688}
            s_cmp_eq_u32 s{sF}, s{sLIM2}
            s_cselect_b32 s{sF}, s{sD}, s{sF}""")
        a("s_setprio 1")
        seq = ["kv"] * 14 + ["q"] * 7
        nxt = NFL
        for c in range(7):
            if c == 0: self.stamp(1)
            a(f"s_waitcnt vmcnt({nxt-2*c-2})")
            if c == 0:
                self.stamp(2)
                a(f"""s_cmp_lg_u32 s{sHH}, 3
                s_cbranch_scc1 L_h_nosig
                s_cmp_ge_u32 s2, {NZERO}
                s_cbranch_scc1 L_h_nosig
                s_mov_b64 exec, 1
                buffer_atomic_add v{VONE}, off, {srd(S_DBG)}, 0 sc1
                s_mov_b64 exec, -1
                L_h_nosig:""")
            if c == 3: self.stamp(11)
            if c == 6: self.stamp(12)
            self.barrier()
            for _ in range(2):
                if nxt < 21:
                    (raw_kv if seq[nxt] == "kv" else raw_q)(); nxt += 1
            a(f"""ds_read_b64_tr_b16 v[{FR}:{FR+1}], v20 offset:{c*8192}
            ds_read_b64_tr_b16 v[{FR+2}:{FR+3}], v20 offset:{c*8192+512}
            ds_read_b64_tr_b16 v[{FR+4}:{FR+5}], v21 offset:{c*8192}
            ds_read_b64_tr_b16 v[{FR+6}:{FR+7}], v21 offset:{c*8192+512}
            s_waitcnt lgkmcnt(0)""")
            self.mfma(ACC + 16, ONES, FR, ACC + 16 if c else None)
            self.mfma(ACC + 32, ONES, FR + 4, ACC + 32 if c else None)
        while nxt < 21:
            raw_q(); nxt += 1
        def cs_add(base, tiles):
            self.exec_lo()
            a(f"v_add_u32 v22, {base}, v{VCS}")
            for t in tiles:
                a(f"ds_add_f32 v22, v{ACC+16*t} offset:{128*t}")
            self.exec_all()
            a("s_waitcnt lgkmcnt(0)")
        cs_add(CSA, (1, 2))
        a("s_setprio 0")
        self.stamp(3)
        self.barrier()
        def dma_wq(typ, lo, hi, thr=False, two=False):
            if lo >= hi: return
            L = a.label("Lhq")
            a(f"""s_add_u32 s{sB_}, s{sH}, {16*typ}
            s_mul_i32 s{sB_}, s{sB_}, 86016
            s_add_u32 s{sB_}, s{sB_}, {hx(WPK)}
            s_and_b32 s{sA}, s{sHH}, {1 if two else 3}
            s_lshl_b32 s{sA}, s{sA}, 10
            s_add_u32 s{sA}, s{sA}, {lo}
            {L}:
            s_mov_b32 m0, s{sA}
            s_add_u32 s{sC_}, s{sA}, s{sB_}
            buffer_load_dwordx4 {v(vL16)}, {srd(S_WS)}, s{sC_} offen sc1 lds
            {"s_waitcnt vmcnt(%d)" % self.thr if thr else ""}
            s_add_u32 s{sA}, s{sA}, {2048 if two else 4096}
            s_cmp_lt_u32 s{sA}, {hi}
            s_cbranch_scc1 {L}""")
        def dma_wo(p, thr=False, two=False):
            L = a.label("Lho")
            a(f"""s_mov_b32 s{S_WO}, s{PTR+2*p}
            s_mov_b32 s{S_WO+1}, s{PTR+2*p+1}
            s_and_b32 s{sC_}, s{sHH}, {1 if two else 3}
            s_lshl_b32 s{sA}, s{sC_}, 10
            s_add_u32 s{sA}, s{sA}, {R2}
            s_mul_i32 s{sB_}, s{sC_}, {8*896}
            s_lshl_b32 s{sC_}, s{sCG}, 7
            s_add_u32 s{sB_}, s{sB_}, s{sC_}
            {L}:
            s_mov_b32 m0, s{sA}
            s_add_u32 s{sA}, s{sA}, {2048 if two else 4096}
            buffer_load_dwordx4 v{VWO}, {srd(S_WO)}, s{sB_} offen lds
            {"s_waitcnt vmcnt(%d)" % self.thr if thr else ""}
            s_add_u32 s{sB_}, s{sB_}, {(16 if two else 32)*896}
            s_cmp_lt_u32 s{sA}, {R2+57*1024}
            s_cbranch_scc1 {L}""")
        def wo3(lo, cnt):
            a(f"""s_add_u32 s{sD}, s{sHH}, {lo-1}
            s_lshl_b32 s{sC_}, s{sCG}, 7""")
            for i in range(cnt):
                a(f"""s_min_u32 s{sA}, s{sD}, 56
                s_mul_i32 s{sB_}, s{sA}, {8*896}
                s_add_u32 s{sB_}, s{sB_}, s{sC_}
                s_lshl_b32 s{sA}, s{sA}, 10
                s_add_u32 m0, s{sA}, {R2}
                s_add_u32 s{sD}, s{sD}, 3
                buffer_load_dwordx4 v{VWO}, {srd(S_WO)}, s{sB_} offen lds""")
        def wq3(typ, cnt):
            a(f"""s_add_u32 s{sB_}, s{sH}, {16*typ}
            s_mul_i32 s{sB_}, s{sB_}, 86016
            s_add_u32 s{sB_}, s{sB_}, {hx(WPK)}
            s_sub_u32 s{sA}, s{sHH}, 1
            s_lshl_b32 s{sA}, s{sA}, 10""")
            for i in range(cnt):
                a(f"""s_mov_b32 m0, s{sA}
                s_add_u32 s{sC_}, s{sA}, s{sB_}
                s_add_u32 s{sA}, s{sA}, 3072
                buffer_load_dwordx4 {v(vL16)}, {srd(S_WS)}, s{sC_} offen sc1 lds""")
        def colsum_B(part):
            if part == 0: a(f"""s_and_b32 s{sD}, s{sHH}, 1
            s_mul_i32 s{sC_}, s{sD}, 28672
            v_add_u32 v20, s{sC_}, {v(vTK)}
            v_add_u32 v21, s{sC_}, {v(vTV)}
            s_mul_i32 s{sC_}, s{sD}, 14336
            v_add_u32 v23, s{sC_}, {v(vTQ)}""")
            Lq = a.label("Lhq")
            if part == 0: a(f"""s_add_u32 s{sB_}, s{sH}, 16
            s_mul_i32 s{sB_}, s{sB_}, 86016
            s_add_u32 s{sB_}, s{sB_}, {hx(WPK)}
            s_add_u32 s{sA}, s{sC_}, {R1Q}
            s_add_u32 s{sD}, s{sA}, 14336
            {Lq}:
            s_mov_b32 m0, s{sA}
            s_add_u32 s{sC_}, s{sA}, s{sB_}
            buffer_load_dwordx4 {v(vL16)}, {srd(S_WS)}, s{sC_} offen sc1 lds
            s_add_u32 s{sA}, s{sA}, 1024
            s_cmp_lt_u32 s{sA}, s{sD}
            s_cbranch_scc1 {Lq}""")
            for tiles in (((1, 2), (0,))[part],):
                nt = len(tiles)
                if nt == 1: a("s_waitcnt vmcnt(0)")
                def rd(s_):
                    for k_, t in enumerate(tiles):
                        b, st, d = ((23, 1024, 256), (20, 2048, 512), (21, 2048, 512))[t]
                        r = FR + 4 * ((nt * s_ + k_) % 6)
                        a(f"ds_read_b64_tr_b16 v[{r}:{r+1}], v{b} offset:{s_*st}\nds_read_b64_tr_b16 v[{r+2}:{r+3}], v{b} offset:{s_*st+d}")
                rd(0); rd(1)
                for s_ in range(14):
                    if s_ + 2 < 14: rd(s_ + 2)
                    a(f"s_waitcnt lgkmcnt({2*nt*min(2, 13-s_)})")
                    for k_, t in enumerate(tiles):
                        self.mfma(ACC + 16 * t, ONES, FR + 4 * ((nt * s_ + k_) % 6), ACC + 16 * t if s_ else None)
            if part == 1: cs_add(CSA + 384, (0, 1, 2))
        def role(h0=None, h1=None, h23=None, h123=None):
            if h123:
                l1, done = a.label("Lr1"), a.label("Lrd")
                a(f"s_cmp_lg_u32 s{sHH}, 0\ns_cbranch_scc1 {l1}")
                if h0: h0(done)
                a(f"s_branch {done}\n{l1}:")
                h123(done)
                a(f"{done}:")
                return
            l1, l2, done = a.label("Lr1"), a.label("Lr2"), a.label("Lrd")
            a(f"s_cmp_ge_u32 s{sHH}, 2\ns_cbranch_scc1 {l2 if h23 else done}")
            a(f"s_cmp_eq_u32 s{sHH}, 1\ns_cbranch_scc1 {l1 if h1 else done}")
            if h0: h0(done)
            a(f"s_branch {done}")
            if h1:
                a(f"{l1}:"); h1(done); a(f"s_branch {done}")
            if h23:
                a(f"{l2}:"); h23(done)
            a(f"{done}:")
        def hint(L, k):
            def f(done):
                want = (0, 16, 14)[k]
                if k == 2: a(f"s_cmp_eq_u32 s{sISWO}, 0\ns_cbranch_scc1 {done}")
                if not self.opt.get("rh", 0):
                    self.ctr_add(sGR if k else sGH, L * LBLK + k * SEAM, VONE, fb=False)
                    return
                Lp, Dp = a.label("Lhp"), a.label("Lhd")
                a(f"""s_add_u32 s{sA}, s{sGR}, {hx(L*LBLK + k*SEAM)}
                s_mov_b64 exec, 1
                v_mov_b32 v22, 1
                buffer_atomic_add v22, off, {srd(S_WS)}, s{sA} sc0 sc1
                v_mov_b32 v20, {GO+12*L+4*k}
                s_waitcnt vmcnt(0)
                v_cmp_gt_u32 vcc, {want-1}, v22
                s_cbranch_vccz {Dp}""")
                if self.opt.get("rh", 0) == 2:
                    self.poll_ctr(f"s{sA}", want, 22)
                    a("s_mov_b64 exec, 1")
                else:
                    a(f"s_mov_b64 exec, -1\ns_branch {done}")
                a(f"""{Dp}:
                ds_write_b32 v20, v{VONE}
                s_mov_b64 exec, -1
                s_waitcnt lgkmcnt(0)""")
            return f
        def poll(L, k):
            def f(done):
                skip = a.label("Lps")
                if k == 1: a(f"s_cmp_eq_u32 s{sISWO}, 0\ns_cbranch_scc1 {skip}")
                a(f"s_add_u32 s{sA}, s{(sGH, sGT, sGR)[k]}, {hx(L*LBLK + k*SEAM)}")
                self.stamp(9 + 2 * k, L)
                bm = (k == 0 and (L & 1))
                if bm:
                    Lp, Dp = a.label("Lpw"), a.label("Lpd")
                    a(f"""v_lshrrev_b32 v21, 4, {v(vLANE)}
                    v_lshlrev_b32 v21, 7, v21
                    v_and_b32 v20, 15, {v(vLANE)}
                    v_lshl_add_u32 v21, v20, 2, v21
                    s_mov_b32 s{sSPIN}, 40000
                    {Lp}:
                    v_mov_b32 v23, 0
                    buffer_atomic_add v23, v21, {srd(S_WS)}, s{sA} offen sc0 sc1
                    s_waitcnt vmcnt(0)
                    v_cmp_eq_u32 vcc, 0, v23
                    s_cbranch_vccz {Dp}
                    s_sub_u32 s{sSPIN}, s{sSPIN}, 1
                    s_cmp_eq_u32 s{sSPIN}, 0
                    s_cbranch_scc0 {Lp}
                    s_endpgm
                    {Dp}:""")
                    for sh in (1, 2, 4, 8):
                        a(f"v_max_u32_dpp v23, v23, v23 row_ror:{sh} row_mask:0xf bank_mask:0xf")
                    a(f"""v_readlane_b32 s{sA}, v23, 16
                    v_readlane_b32 s{sB_}, v23, 32
                    v_readlane_b32 s{sC_}, v23, 48
                    s_max_u32 s{sA}, s{sA}, s{sB_}
                    s_max_u32 s{sA}, s{sA}, s{sC_}
                    v_max_u32 v23, s{sA}, v23""")
                else:
                    self.poll_ctr(f"s{sA}", (16 if self.ek else 32, 16, 14)[k], 22)
                self.stamp(10 + 2 * k, L)
                if k or bm:
                    a(f"""v_mov_b32 v20, {GO+12*L+4*k}
                    s_mov_b64 exec, 1
                    ds_write_b32 v20, v{23 if bm else 22}
                    s_mov_b64 exec, -1
                    s_waitcnt lgkmcnt(0)""")
                a(f"{skip}:")
            return f
        seqf = lambda *fs: (lambda done: [f(done) for f in fs])
        W = lambda f: (lambda done: f())
        N1 = self.opt.get("n1", 48) * 1024
        pf = lambda L, parts="ox", thr=True: self.prefill(L, NANR, parts=parts, thr=thr)

        a(f"""s_lshr_b32 s{sA}, s{sHH}, 1
        s_cmp_eq_u32 s{sA}, 0
        s_cselect_b32 s{S_WQ}, s{PTR+2}, s{PTR+8}
        s_cselect_b32 s{S_WQ+1}, s{PTR+3}, s{PTR+9}
        s_lshl_b32 s{sA}, s{sA}, 4
        s_add_u32 s{sA}, s{sA}, s{sH}
        s_mul_i32 s{sF}, s{sA}, 86016
        s_add_u32 s{sF}, s{sF}, {hx(WPK)}
        s_mul_i32 s{sB_}, s{sRB}, {28*2688}
        s_add_u32 s{sB_}, s{sB_}, s{sE}
        s_bitcmp1_b32 s{sHH}, 0
        s_cbranch_scc1 L_h_packq
        s_add_u32 s{sB_}, s{sB_}, 896
        s_mul_i32 s{sC_}, s{sRB}, {28*128}
        s_add_u32 s{sF}, s{sF}, s{sC_}""")
        for i in range(4):
            a(f"buffer_load_dwordx4 v[{112+4*i}:{115+4*i}], v{VKV}, {srd(S_WQ)}, s{sB_} offen\ns_add_u32 s{sB_}, s{sB_}, {8*2688}")
        a(f"""s_waitcnt vmcnt(4)
        s_branch L_h_packed
        L_h_packq:
        s_mul_i32 s{sC_}, s{sRB}, {28*64}
        s_add_u32 s{sF}, s{sF}, s{sC_}
        s_add_u32 s{sF}, s{sF}, {R1Q}
        buffer_load_dwordx4 v[112:115], v{VQ}, {srd(S_WQ)}, s{sB_} offen
        s_add_u32 s{sB_}, s{sB_}, {16*2688}
        buffer_load_dwordx4 v[116:119], v{VQ}, {srd(S_WQ)}, s{sB_} offen
        s_waitcnt vmcnt(2)
        L_h_packed:
        s_lshl_b32 s{sC_}, s{sHH}, 10
        v_add_u32 v20, s{sC_}, {v(vTQ)}""")
        for i in range(7):
            a(f"ds_read_b64_tr_b16 v[{FR+4*i}:{FR+4*i+1}], v20 offset:{i*4096}\nds_read_b64_tr_b16 v[{FR+4*i+2}:{FR+4*i+3}], v20 offset:{i*4096+256}")
        for i in range(7):
            a(f"s_waitcnt lgkmcnt({12-2*i})")
            self.mfma(ACC, ONES, FR + 4 * i, ACC if i else None)
        role(h0=W(lambda: self.poll_ctr("0", NZERO, 22, srd_b=S_DBG, ld=True)),
             h123=W(lambda: wo3(0, 7)))
        cs_add(CSA, (0,))
        self.stamp(4)

        self.barrier()
        def pack_store(nyoung):
            zo, zd, sq, sd = a.label("Lzo"), a.label("Lzd"), a.label("Lsq"), a.label("Lsd")
            a(f"""s_and_b32 s{sC_}, s{sH}, 1
            s_mul_i32 s{sC_}, s{sC_}, 3
            s_xor_b32 s{sC_}, s{sC_}, 3
            v_and_b32 v22, 3, {v(vLANE)}
            v_cmp_ne_u32 vcc, s{sC_}, v22
            s_waitcnt vmcnt({nyoung})
            s_bitcmp1_b32 s{sH}, 0
            s_cbranch_scc1 {zo}""")
            for i in range(4):
                a(f"v_cndmask_b32 v{114+4*i}, 0, v{114+4*i}, vcc\nv_cndmask_b32 v{115+4*i}, 0, v{115+4*i}, vcc")
            a(f"s_branch {zd}\n{zo}:")
            for i in range(4):
                a(f"v_cndmask_b32 v{112+4*i}, 0, v{112+4*i}, vcc\nv_cndmask_b32 v{113+4*i}, 0, v{113+4*i}, vcc")
            a(f"""{zd}:
            buffer_store_dwordx4 v[112:115], {v(vL16)}, {srd(S_WS)}, s{sF} offen sc1
            s_bitcmp1_b32 s{sHH}, 0
            s_cbranch_scc1 {sq}
            buffer_store_dwordx4 v[116:119], {v(vL16)}, {srd(S_WS)}, s{sF} offen offset:1024 sc1
            buffer_store_dwordx4 v[120:123], {v(vL16)}, {srd(S_WS)}, s{sF} offen offset:2048 sc1
            s_mov_b32 exec_hi, 0
            buffer_store_dwordx4 v[124:127], {v(vL16)}, {srd(S_WS)}, s{sF} offen offset:3072 sc1
            s_branch {sd}
            {sq}:
            s_mov_b32 exec_hi, 0xffff
            buffer_store_dwordx4 v[116:119], {v(vL16)}, {srd(S_WS)}, s{sF} offen offset:1024 sc1
            {sd}:
            s_mov_b64 exec, -1""")
        def l0_a(done):
            if self.ek:
                sk = a.label("Lsk")
                a(f"s_cmp_lg_u32 s{sHH}, 1\ns_cbranch_scc1 {sk}")
                hint(0, 0)(done)
                a(f"{sk}:")
            pack_store(7)
            wo3(21, 7)
            a(f"s_cmp_eq_u32 s{sHH}, 1\ns_cbranch_scc1 {done}\ns_waitcnt vmcnt(7)")
            self.ctr_add(sGH, 11 * SEAM, VONE, fb=False)
        role(h0=poll(0, 0), h123=l0_a)
        self.stamp(5)
        self.barrier()
        def l0_b0(done):
            a(f"s_add_u32 s{sD}, s{sGH}, {hx(11*SEAM)}")
            self.poll_ctr(f"s{sD}", 32, 22)
            pack_store(0)
        role(h0=l0_b0, h123=W(lambda: wo3(42, 5)))
        self.barrier()
        if self.eo == 2: role(h0=hint(0, 1))
        role(h123=W(lambda: (wq3(1, 7), a("s_waitcnt vmcnt(7)"))))
        self.barrier()
        role(h0=poll(0, 1), h1=(None if self.eo == 2 else hint(0, 1)), h23=W(lambda: dma_wq(1, 21504, R1Q, two=True)))
        if self.opt.get("bgo", 1): self.barrier()
        self.stamp(7)
        pf(0, "x", False)
        pf(1, "o", False)
        a(f"s_waitcnt vmcnt({2 if self.kd else 6})")
        self.stamp(8)
        self.barrier()
        if self.ex == 3: role(h1=hint(0, 2))
        self.barrier()
        if self.opt.get("bgo", 1):
            role(h0=poll(0, 2), h1=(None if self.ex == 3 else hint(0, 2)), h23=W(lambda: colsum_B(0)))
            self.barrier()
            role(h23=W(lambda: colsum_B(1)))
        else:
            role(h0=poll(0, 2), h1=(None if self.ex == 3 else hint(0, 2)), h23=W(lambda: (colsum_B(0), colsum_B(1))))
        a("s_waitcnt vmcnt(0)")
        self.barrier()
        role(h0=poll(1, 0))
        self.barrier()
        dma_wo(5, True)
        dma_wq(0, 0, OX, True)
        pf(1, "x"); pf(2); pf(3)
        a("s_waitcnt vmcnt(0)")
        self.barrier()
        if self.eo == 2: role(h0=hint(1, 1))
        self.barrier()
        role(h0=poll(1, 1), h1=(None if self.eo == 2 else hint(1, 1)), h23=W(lambda: dma_wq(0, OX, 86016, two=True)))
        if self.opt.get("bgo", 1): self.barrier()
        a("s_waitcnt vmcnt(0)")
        self.barrier()
        if self.ex == 3: role(h1=hint(1, 2))
        self.barrier()
        role(h0=poll(1, 2), h1=(None if self.ex == 3 else hint(1, 2)), h23=W(lambda: dma_wo(2, two=True)))
        if self.opt.get("bgo", 1): self.barrier()
        self.barrier()
        role(h0=poll(2, 0), h1=(hint(2, 0) if self.ek else None), h23=W(lambda: dma_wq(1, 0, N1, two=True)))
        self.barrier()
        a("s_waitcnt vmcnt(0)")
        self.barrier()
        if self.eo == 2: role(h0=hint(2, 1))
        self.barrier()
        role(h0=poll(2, 1), h1=(None if self.eo == 2 else hint(2, 1)), h23=W(lambda: dma_wq(1, N1, 86016, two=True)))
        if self.opt.get("bgo", 1): self.barrier()
        a("s_waitcnt vmcnt(0)")
        self.barrier()
        if self.ex == 3: role(h1=hint(2, 2))
        self.barrier()
        role(h0=poll(2, 2), h1=(None if self.ex == 3 else hint(2, 2)))
        if self.opt.get("bgo", 1): self.barrier()
        role(h0=poll(3, 0))
        self.barrier()
        dma_wo(5, True)
        a("s_waitcnt vmcnt(0)")
        self.barrier()
        if self.eo == 2: role(h0=hint(3, 1))
        self.barrier()
        role(h0=poll(3, 1), h1=(None if self.eo == 2 else hint(3, 1)))
        if self.opt.get("bgo", 1): self.barrier()
        a("s_branch L_fin")

    def build(self):
        a = self.a
        self.tail = []
        self.prologue()
        self.helper()
        self.layer_A()
        self.layer_B()
        self.wo_phase()
        self.slow_path()
        self.emit_tail()
        a("L_fin:")
        if self.opt.get("diag", 0):
            a(f"""s_cmp_lg_u32 s{sWAVE}, 0
            s_cbranch_scc1 L_end
            s_cmp_ge_u32 s2, 12
            s_cbranch_scc1 L_end
            s_memrealtime s[{sST0}:{sST0+1}]
            s_waitcnt lgkmcnt(0)
            s_sub_u32 s{sA}, s{sST0}, s101
            s_lshl_b32 s{sB_}, s2, 2
            s_add_u32 s{sB_}, s{sB_}, 8
            v_mov_b32 {v(vT0)}, s{sA}
            s_mov_b64 exec, 1
            buffer_store_dword {v(vT0)}, off, {srd(S_DBG)}, s{sB_}""")
        self.stamp(15)
        self.stamp_flush()
        a("L_end:\ns_endpgm\nL_code_end:")
        body = a.resolve()
        hdr = open("interleave_layers__linear_attn_block__softmax_full_mha__prompt.s.ref").read().split("; Override")[0]
        return hdr + f"""; @launch grid=(256,1,1) block=(512,1,1) lds={LDS_TOTAL}
.amdgcn_target "amdgcn-amd-amdhsa--gfx950"
.text
.globl {NAME}
.p2align 8
.type {NAME},@function
{NAME}:
{body}
.section .rodata,"a"
.p2align 6
.amdhsa_kernel {NAME}
  .amdhsa_next_free_vgpr 256
  .amdhsa_next_free_sgpr 102
  .amdhsa_accum_offset 256
  .amdhsa_group_segment_fixed_size 0
  .amdhsa_kernarg_size 72
  .amdhsa_user_sgpr_count 2
  .amdhsa_user_sgpr_kernarg_segment_ptr 1
  .amdhsa_system_sgpr_workgroup_id_x 1
.end_amdhsa_kernel
"""

if __name__ == "__main__":
    import argparse
    ap = argparse.ArgumentParser()
    ap.add_argument("-o", default="k.s")
    ap.add_argument("--prof", default=None)
    ap.add_argument("--opt", default="")
    args = ap.parse_args()
    opt = {kv.split("=")[0]: int(kv.split("=")[1]) for kv in args.opt.split(",") if kv}
    g = Gen(prof=args.prof, opt=opt)
    s = g.build()
    open(args.o, "w").write(s)
    print("wrote", args.o, "lines", s.count("\n"), "nops inserted", g.a.nops)
```

```python
import sys, struct, math
sys.path.insert(0, "dev")
from asmb import Asm

NAME = "interleave_layers__linear_attn_block__softmax_full_mha__prompt_kernel"

def f2u(x): return struct.unpack("<I", struct.pack("<f", x))[0]
def hx(x): return "0x%08x" % (x & 0xffffffff)

R1 = 0
R1Q = 57344
OX = 86016 - 49152
R2 = 86016
SCR = 144384
CSA = SCR + 16384
STW = CSA + 768
GO = STW + 1024
LDS_TOTAL = 163840
LN = 128
CST = 4 * LN
SEAM = 32 * CST
DRN = 16 * CST
LBLK = 3 * SEAM
NZERO = 24
WPK = 0x400000
OFF_X, OFF_O, OFF_KV, OFF_ST = 0x000000, 0x200000, 0x400000, 0x800000
PROF_OFF = 0x8000000

sGH, sGR, sGT, sPF, sIM = 3, 4, 5, 6, 7
S_X, S_WQ, S_WO, S_OUT, S_DBG, S_WS, S_XOUT, S_CODE = 8, 12, 16, 20, 24, 28, 32, 36
sWAVE, sRB, sH, sTP, sCG, sISWO, sL, sLB = 40, 41, 42, 43, 44, 45, 46, 47
sT, sTW, sC, sFB, sSPIN = 48, 49, 50, 51, 52
sA, sB_, sC_, sD, sF, sE = 53, 54, 55, 56, 57, 58
sMPAD = 60
sK0 = 62
PTR = 64
sSO0, sSO1, sR7 = 82, 83, 84
sG, sHH, sWL = 85, 86, 87
sPC = 88
sST0 = 90
sPI, sLOOP, sOFF, sOFFMAX, sRETRY = 92, 93, 94, 95, 96
sROT, sXC, sLIM, sLIM2 = 97, 98, 99, 100
def srd(b): return f"s[{b}:{b+3}]"

vTID, vLANE, vL16, vTK, vTV, vWK, vWS_, vRM = 0, 1, 2, 3, 4, 5, 6, 7
vTQ, vPADV, vA, vNM, vCS0, vCS1, vT0, vT1 = 8, 9, 10, 11, 12, 13, 14, 15
vXO = vCS0
XRES = 16
XF = 32
ACK, ACV, ACQ = 144, 160, 176
WF = 192
SA, SB = 208, 224
CS16 = 240
def v(b, n=1): return f"v{b}" if n == 1 else f"v[{b}:{b+n-1}]"

LOG2E = 1.4426950408889634
QSCALE = LOG2E / math.sqrt(28.0)
SHIFT_UP = 40.0
L_MIN = 2.0 ** -60


class Cnt:
    def __init__(self, name, mx): self.name, self.q, self.mx = name, [], mx
    def issue(self, tag): self.q.append(tag)
    def n_after(self, tag):
        idx = max(i for i, t in enumerate(self.q) if t == tag)
        n = len(self.q) - 1 - idx
        self.q = self.q[idx + 1:]
        assert n <= self.mx, (self.name, n)
        return n
    def has(self, tag): return tag in self.q
    def clear(self): self.q = []


class Gen:
    def __init__(self, prof=None, opt={}):
        self.a = Asm(); self.prof = prof; self.opt = opt
        self.vm = Cnt("vmcnt", 63); self.lg = Cnt("lgkmcnt", 15)
        self.D = opt.get("D", 12)
        self.thr = opt.get("thr", 2)
        self.kd = opt.get("kd", 0)
        self.eo, self.ex, self.ek = opt.get("eo", 1), opt.get("ex", 2), opt.get("ek", 1)

    def mfma(self, d, A, B, C):
        c = "0" if C is None else v(C, 16)
        self.a(f"v_mfma_f32_32x32x16_bf16 {v(d,16)}, {v(A,4)}, {v(B,4)}, {c}")
    def wait(self, vm=None, lg=None):
        parts = []
        if vm is not None and self.vm.has(vm): parts.append(f"vmcnt({self.vm.n_after(vm)})")
        if lg is not None and self.lg.has(lg): parts.append(f"lgkmcnt({self.lg.n_after(lg)})")
        if parts: self.a("s_waitcnt " + " ".join(parts))
    def wait_all(self, vm=True, lg=True):
        p = []
        if vm: p.append("vmcnt(0)"); self.vm.clear()
        if lg: p.append("lgkmcnt(0)"); self.lg.clear()
        self.a("s_waitcnt " + " ".join(p))
    def exec_all(self): self.a("s_mov_b64 exec, -1")
    def exec_hi(self): self.a("s_mov_b32 exec_lo, 0\ns_mov_b32 exec_hi, -1")
    def exec_lo(self): self.a("s_mov_b32 exec_lo, -1\ns_mov_b32 exec_hi, 0")
    def barrier(self): self.a("s_barrier")
    def stamp(self, idx, L=None):
        if not self.prof: return
        op = "s_memrealtime" if self.prof == "rt" else "s_memtime"
        self.a(f"{op} s[{sST0}:{sST0+1}]")
        if L is None:
            self.a(f"s_lshl_b32 s{sPI}, s{sL}, 4\ns_add_u32 s{sPI}, s{sPI}, {idx}\ns_mov_b32 m0, s{sPI}")
        else:
            self.a(f"s_mov_b32 m0, {16*L+idx}")
        self.a(f"s_waitcnt lgkmcnt(0)\nv_writelane_b32 v0, s{sST0}, m0")
    def stamp_flush(self):
        if not self.prof: return
        self.a(f"""s_lshl_b32 s{sPI}, s2, 3
        s_add_u32 s{sPI}, s{sPI}, s{sWAVE}
        s_lshl_b32 s{sPI}, s{sPI}, 8
        s_add_u32 s{sPI}, s{sPI}, {hx(PROF_OFF)}
        s_mov_b64 exec, -1
        v_lshlrev_b32 {v(vT0)}, 2, {v(vLANE)}
        buffer_store_dword v0, {v(vT0)}, {srd(S_WS)}, s{sPI} offen""")

    def poll_ctr(self, soff, want, vdst, srd_b=S_WS, ld=False, four=None):
        a = self.a
        L, D = a.label("Lpc"), a.label("Lpd")
        if four is not None: a(f"v_lshlrev_b32 {v(four)}, 7, {v(vLANE)}")
        ad = ("off", "") if four is None else (v(four), "offen")
        a(f"""s_mov_b32 s{sSPIN}, 200000
        s_mov_b64 exec, {1 if four is None else 15}
        {L}:
        v_mov_b32 {v(vdst)}, 0""")
        if ld:
            a(f"buffer_load_dword {v(vdst)}, {ad[0]}, {srd(srd_b)}, {soff} {ad[1]} sc1")
        else:
            a(f"buffer_atomic_add {v(vdst)}, {ad[0]}, {srd(srd_b)}, {soff} {ad[1]} sc0 sc1")
        a(f"""s_waitcnt vmcnt(0)
        v_cmp_gt_u32 vcc, {want}, {v(vdst)}
        s_cbranch_vccz {D}
        s_sub_u32 s{sSPIN}, s{sSPIN}, 1
        s_cmp_eq_u32 s{sSPIN}, 0
        s_cbranch_scc0 {L}
        s_endpgm
        {D}:
        s_mov_b64 exec, -1""")
    def ctr_add(self, sgrp, extra, vone, fb=True):
        a = self.a
        if fb:
            a(f"s_add_u32 s{sA}, s{sFB}, s{sgrp}")
            if extra: a(f"s_add_u32 s{sA}, s{sA}, {hx(extra)}")
        else:
            a(f"s_add_u32 s{sA}, s{sgrp}, {hx(extra)}")
        a(f"""s_mov_b64 exec, 1
        buffer_atomic_add {v(vone)}, off, {srd(S_WS)}, s{sA} sc1
        s_mov_b64 exec, -1""")
        self.vm.issue("flag")
    def drained(self, sgrp, k):
        self.a(f"s_waitcnt vmcnt(0)\nv_mov_b32 {v(vT0)}, 1")
        self.vm.clear()
        self.a(f"s_add_u32 s{sB_}, s{sgrp}, s{sWL}")
        self.ctr_add(sB_, k * SEAM + DRN, vT0)
    def drained_late(self, sgrp, extra, need_wo=False):
        a = self.a
        lab = a.label("Ldl")
        a(f"s_cmp_lg_u32 s{sRETRY}, 0\ns_cbranch_scc1 {lab}")
        if need_wo: a(f"s_cmp_eq_u32 s{sISWO}, 0\ns_cbranch_scc1 {lab}")
        a(f"v_mov_b32 {v(vT0)}, 1\ns_add_u32 s{sB_}, s{sgrp}, s{sWL}")
        self.ctr_add(sB_, extra, vT0)
        a(f"{lab}:")
    def wait_go(self, k, dst=vT0, L=None):
        a = self.a
        if self.opt.get("bgo", 1):
            self.barrier()
            return
        Lb, D = a.label("Lgo"), a.label("Lgd")
        if L is None:
            a(f"s_mul_i32 s{sA}, s{sL}, 12\ns_add_u32 s{sA}, s{sA}, {GO+4*k}\nv_mov_b32 {v(vT1)}, s{sA}")
        else:
            a(f"v_mov_b32 {v(vT1)}, {GO+12*L+4*k}")
        a(f"""s_mov_b32 s{sSPIN}, 2000000
        {Lb}:
        ds_read_b32 {v(dst)}, {v(vT1)}
        s_waitcnt lgkmcnt(0)
        v_cmp_eq_u32 vcc, 0, {v(dst)}
        s_cbranch_vccz {D}
        s_sub_u32 s{sSPIN}, s{sSPIN}, 1
        s_cmp_eq_u32 s{sSPIN}, 0
        s_cbranch_scc0 {Lb}
        s_endpgm
        {D}:""")
        self.lg.clear()
    def nan_check(self, reg, redo, want):
        a = self.a
        bad, ok = a.label("Lbad"), a.label("Lok")
        a(f"""v_cmp_u_f32 vcc, {v(reg)}, {v(reg)}
        s_cbranch_vccnz {bad}
        {ok}:""")
        self.tail.append((bad, ok, redo, want))
    def emit_tail(self):
        a = self.a
        for n_, (bad, ok, redo, want) in enumerate(self.tail):
            a(f"""{bad}:
            s_cmp_lg_u32 s{sRETRY}, 0
            s_cbranch_scc1 {ok}
            s_mov_b32 s{sRETRY}, 1""")
            if self.opt.get("rdiag", 0):
                a(f"""s_lshl_b32 s{sA}, s{sL}, 4
                s_add_u32 s{sA}, s{sA}, {64+4*n_}
                v_mov_b32 {v(vT0)}, 1
                s_mov_b64 exec, 1
                buffer_atomic_add {v(vT0)}, off, {srd(S_DBG)}, s{sA} sc1
                s_mov_b64 exec, -1""")
            self.poll_ctr(f"s{sPF}", want, vT0, four=vT1)
            a(f"buffer_inv sc1\ns_waitcnt vmcnt(0)\ns_branch {redo}")

    def prologue(self):
        a = self.a
        a(f"""s_cmp_ge_u32 s2, 256
        s_cbranch_scc1 L_end
        s_load_dwordx16 s[{PTR}:{PTR+15}], s[0:1], 0
        s_load_dwordx2 s[{PTR+16}:{PTR+17}], s[0:1], 64
        s_getpc_b64 s[{sPC}:{sPC+1}]
        L_pcref:
        s_sub_u32 s{S_CODE}, s{sPC}, L_pcref-{NAME}
        s_subb_u32 s{S_CODE+1}, s{sPC+1}, 0
        s_mov_b32 s{S_CODE+2}, L_code_end-{NAME}
        s_mov_b32 s{S_CODE+3}, 0x20000
        s_lshl_b32 s{sC_}, s2, 10
        s_and_b32 s{sC_}, s{sC_}, 0x6000
        v_lshlrev_b32 {v(vT1)}, 4, v0
        buffer_load_dwordx4 v[252:255], {v(vT1)}, {srd(S_CODE)}, s{sC_} offen
        v_lshrrev_b32 {v(vT0)}, 6, v0
        v_and_b32 {v(vLANE)}, 63, v0
        v_readfirstlane_b32 s{sWAVE}, {v(vT0)}
        v_lshlrev_b32 {v(vL16)}, 4, {v(vLANE)}
        {"s_lshr_b32 s%d, s2, 5" % sA if self.opt.get("badmap", 0) else "s_and_b32 s%d, s2, 7" % sA}
        {"s_and_b32 s%d, s2, 31" % sB_ if self.opt.get("badmap", 0) else "s_lshr_b32 s%d, s2, 3" % sB_}
        s_lshr_b32 s{sRB}, s{sA}, 1
        s_lshl_b32 s{sRB}, s{sRB}, 2
        s_and_b32 s{sC_}, s{sB_}, 3
        s_add_u32 s{sRB}, s{sRB}, s{sC_}
        s_and_b32 s{sH}, s{sA}, 1
        s_lshl_b32 s{sH}, s{sH}, 3
        s_lshr_b32 s{sC_}, s{sB_}, 2
        s_add_u32 s{sH}, s{sH}, s{sC_}
        s_mov_b32 s{sCG}, s{sC_}
        s_cmp_lt_u32 s{sC_}, 7
        s_cselect_b32 s{sISWO}, 1, 0
        s_cselect_b32 s{sCG}, s{sCG}, 0
        s_and_b32 s{sTP}, s{sA}, 1
        s_lshl_b32 s{sD}, s{sRB}, 1
        s_add_u32 s{sTP}, s{sTP}, s{sD}
        s_mul_i32 s{sC_}, s{sB_}, 37
        s_lshr_b32 s{sC_}, s{sC_}, 8
        s_mul_i32 s{sD}, s{sC_}, 7
        s_sub_u32 s{sR7}, s{sB_}, s{sD}
        s_mov_b32 s{sL}, 0
        s_mov_b32 s{sLB}, 0x1000000
        s_mov_b32 s{sFB}, 0
        s_lshl_b32 s{sIM}, s{sH}, 4
        s_add_u32 s{sIM}, s{sIM}, s{sRB}
        s_mul_i32 s{sGH}, s{sH}, {CST}
        s_mul_i32 s{sGR}, s{sRB}, {CST}
        s_lshr_b32 s{sGT}, s{sTP}, 1
        s_mul_i32 s{sGT}, s{sGT}, {CST}
        s_mov_b32 s{sMPAD}, 0xf0000000
        s_mov_b32 s{sMPAD+1}, 0xf0000000
        """)
        a(f"""v_lshrrev_b32 v16, 5, {v(vLANE)}
        v_bfe_u32 v17, {v(vLANE)}, 4, 1
        v_bfe_u32 v18, {v(vLANE)}, 2, 2
        v_and_b32 v19, 3, {v(vLANE)}
        v_lshlrev_b32 v20, 5, v17
        v_lshl_add_u32 v20, v19, 3, v20
        v_lshl_add_u32 v21, v16, 3, v18
        s_and_b32 s{sD}, s{sH}, 1
        s_lshl_b32 s{sD}, s{sD}, 3
        v_add_u32 v24, s{sD}, v20
        v_and_b32 v24, 63, v24
        v_lshl_add_u32 {v(vTQ)}, v21, 6, v24
        v_add_u32 {v(vTQ)}, {R1Q}, {v(vTQ)}
        v_lshl_add_u32 v24, v21, 7, v24
        v_lshrrev_b32 v22, 1, v18
        v_lshl_add_u32 {v(vTK)}, v22, 6, v24
        v_xor_b32 v22, 1, v22
        v_lshl_add_u32 {v(vTV)}, v22, 6, v24
        v_lshl_add_u32 v21, v16, 2, v18
        v_lshlrev_b32 v21, 7, v21
        v_add_u32 v21, v21, v20
        v_add_u32 v21, {R2}, v21
        v_lshrrev_b32 v22, 1, v18
        v_and_b32 v23, 31, {v(vLANE)}
        v_mul_u32_u24 {v(vRM)}, 896, v23
        v_lshl_add_u32 {v(vRM)}, v16, 4, {v(vRM)}
        v_cmp_eq_u32 vcc, 28, v23
        v_mov_b32 v24, 0x3f803f80
        v_cndmask_b32 {v(vPADV)}, 0, v24, vcc
        s_lshr_b32 s{sA}, s{sWAVE}, 1
        s_and_b32 s{sA}, s{sA}, 1
        v_xor_b32 v22, s{sA}, v22
        v_lshl_add_u32 {v(vWK)}, v22, 6, v21
        v_xor_b32 v22, 1, v22
        v_lshl_add_u32 {v(vWS_)}, v22, 6, v21
        s_mul_i32 s{sB_}, s{sA}, {8*28*128}
        v_add_u32 {v(vWK)}, s{sB_}, {v(vWK)}
        v_add_u32 {v(vWS_)}, s{sB_}, {v(vWS_)}
        s_lshl_b32 s{sC}, s{sCG}, 1
        s_add_u32 s{sC}, s{sC}, s{sA}
        s_and_b32 s{sA}, s{sWAVE}, 1
        s_lshl_b32 s{sTW}, s{sTP}, 1
        s_add_u32 s{sTW}, s{sTW}, s{sA}
        s_and_b32 s{sA}, s{sWAVE}, 3
        s_lshl_b32 s{sWL}, s{sA}, 7
        s_lshl_b32 s{sT}, s{sRB}, 2
        s_add_u32 s{sT}, s{sT}, s{sA}
        s_waitcnt lgkmcnt(0)
        """)
        def mk(b, p, size):
            a(f"""s_mov_b32 s{b}, s{PTR+2*p}
            s_mov_b32 s{b+1}, s{PTR+2*p+1}
            s_mov_b32 s{b+2}, {size}
            s_mov_b32 s{b+3}, 0x20000""")
        mk(S_X, 0, 1835008); mk(S_WQ, 1, 1204224); mk(S_WO, 2, 401408)
        mk(S_OUT, 6, 1835008); mk(S_DBG, 7, 256); mk(S_WS, 8, 0x10000000); mk(S_XOUT, 8, 0x10000000)
        pfm = self.opt.get("pfm", 0)
        if pfm:
            a(f"""s_lshl_b32 s{sA}, s2, 3
            s_add_u32 s{sA}, s{sA}, s{sWAVE}
            s_lshl_b32 s{sA}, s{sA}, 10
            buffer_load_dwordx4 v[248:251], {v(vL16)}, {srd(S_WQ)}, s{sA} offen""")
            if pfm >= 2: a(f"buffer_load_dwordx4 v[244:247], {v(vL16)}, {srd(S_X)}, s{sA} offen")
        if self.prof: a("v_mov_b32 v0, 0")
        self.stamp(0)
        a(f"""s_cmp_lt_u32 s{sWAVE}, 4
        s_cbranch_scc1 L_layerA""")

    def stats_finish(self, vS, vQ):
        a = self.a
        a(f"""v_mov_b32 {v(vT0)}, {v(vS)}
        v_mov_b32 {v(vT1)}, {v(vQ)}
        v_permlane32_swap_b32 {v(vT0)}, {v(vS)}
        v_permlane32_swap_b32 {v(vT1)}, {v(vQ)}
        v_add_f32 {v(vS)}, {v(vS)}, {v(vT0)}
        v_add_f32 {v(vQ)}, {v(vQ)}, {v(vT1)}
        v_mul_f32 {v(vNM)}, {hx(f2u(-1.0/448))}, {v(vS)}
        v_mul_f32 {v(vQ)}, {hx(f2u(1.0/448))}, {v(vQ)}
        v_fma_f32 {v(vQ)}, -{v(vNM)}, {v(vNM)}, {v(vQ)}
        v_and_b32 {v(vQ)}, 0x7fffffff, {v(vQ)}
        v_add_f32 {v(vQ)}, {hx(f2u(1e-5))}, {v(vQ)}
        v_rsq_f32 {v(vA)}, {v(vQ)}
        s_lshl_b32 s{sA}, s{sWAVE}, 8
        s_add_u32 s{sA}, s{sA}, {STW}
        v_and_b32 {v(vT0)}, 31, {v(vLANE)}
        v_lshl_add_u32 {v(vT0)}, {v(vT0)}, 2, s{sA}
        v_lshrrev_b32 {v(vT1)}, 5, {v(vLANE)}
        v_lshl_add_u32 {v(vT1)}, {v(vT1)}, 4, s{sA}
        ds_write_b32 {v(vT0)}, {v(vA)}
        ds_write_b32 {v(vT0)}, {v(vNM)} offset:128""")
        self.lg.issue("stw"); self.lg.issue("stw")
    def stats_read(self, which):
        for q in range(4):
            self.a(f"ds_read_b128 {v((SA,SB)[which]+4*q,4)}, {v(vT1)} offset:{128*which+32*q}"); self.lg.issue("st")

    def tr_pair(self, dst, s, seg, tag):
        base, off, d = ((vTQ, s * 1024, 256), (vTK, s * 2048, 512), (vTV, s * 2048, 512))[seg]
        self.a(f"ds_read_b64_tr_b16 {v(dst,2)}, {v(base)} offset:{off}"); self.lg.issue(tag)
        self.a(f"ds_read_b64_tr_b16 {v(dst+2,2)}, {v(base)} offset:{off+d}"); self.lg.issue(tag)

    def xload(self, s):
        a = self.a
        if s and s % 4 == 0: a(f"s_add_u32 s{sOFF}, s{sOFF}, 4096")
        a(f"buffer_load_dwordx4 {v(XF+4*s,4)}, {v(vL16)}, {srd(S_WS)}, s{sOFF} offen offset:{(s%4)*1024} sc1")
        self.vm.issue(("x", s))

    def kv_loop(self, typ, inserts={}):
        D = self.D
        for s in range(28):
            p = s & 1
            if s + 1 < 28:
                self.tr_pair(WF + 8 * (1 - p), s + 1, 1, ("w", s + 1)); self.tr_pair(WF + 8 * (1 - p) + 4, s + 1, 2, ("w", s + 1))
            self.wait(vm=("x", s), lg=("w", s))
            wk, wv, x = WF + 8 * p, WF + 8 * p + 4, XF + 4 * s
            if typ == "A": self.mfma(ACK, x, wk, ACK if s else None)
            else: self.mfma(ACK, wk, x, ACK if s else None)
            self.mfma(ACV, x, wv, ACV if s else None)
            if s + D < 28: self.xload(s + D)
            if s in inserts: inserts[s]()

    def q_loop(self, inserts={}):
        for s in range(3): self.tr_pair(WF + 4 * s, s, 0, ("w", s))
        for s in range(28):
            if s + 3 < 28: self.tr_pair(WF + 4 * ((s + 3) & 3), s + 3, 0, ("w", s + 3))
            self.wait(lg=("w", s))
            self.mfma(ACQ, WF + 4 * (s & 3), XF + 4 * s, ACQ if s else None)
            if s in inserts: inserts[s]()

    def load_cs_lane(self, typ):
        base = CSA + (0 if typ == "A" else 384)
        self.a(f"""v_and_b32 {v(vT0)}, 31, {v(vLANE)}
        v_lshlrev_b32 {v(vT0)}, 2, {v(vT0)}
        v_add_u32 {v(vT0)}, {base}, {v(vT0)}
        ds_read_b32 {v(vCS0)}, {v(vT0)} offset:128
        ds_read_b32 {v(vCS1)}, {v(vT0)} offset:256""")
        self.lg.issue("cs"); self.lg.issue("cs")
    def load_cs_reg(self, typ, seg, dst=CS16):
        a = self.a
        base = CSA + (0 if typ == "A" else 384) + seg * 128
        a(f"""v_lshrrev_b32 {v(vT0)}, 5, {v(vLANE)}
        v_lshlrev_b32 {v(vT0)}, 4, {v(vT0)}
        v_add_u32 {v(vT0)}, {base}, {v(vT0)}""")
        for q in range(4):
            a(f"ds_read_b128 {v(dst+4*q,4)}, {v(vT0)} offset:{32*q}"); self.lg.issue("cs16")

    def fix_feat(self, acc, vcs):
        pair = vcs & ~1; sel = vcs & 1
        for r in range(0, 16, 2):
            self.a(f"v_pk_fma_f32 {v(acc+r,2)}, {v(SB+r,2)}, {v(pair,2)}, {v(acc+r,2)} op_sel:[0,{sel},0] op_sel_hi:[1,{sel},1]")
    def fix_tok(self, acc, cs=CS16):
        pair = vNM & ~1; sel = vNM & 1
        for r in range(0, 16, 2):
            self.a(f"v_pk_fma_f32 {v(acc+r,2)}, {v(cs+r,2)}, {v(pair,2)}, {v(acc+r,2)} op_sel:[0,{sel},0] op_sel_hi:[1,{sel},1]")
    def scale_lane(self, acc, vs):
        pair = vs & ~1; sel = vs & 1
        for r in range(0, 16, 2):
            self.a(f"v_pk_mul_f32 {v(acc+r,2)}, {v(acc+r,2)}, {v(pair,2)} op_sel:[0,{sel}] op_sel_hi:[1,{sel}]")
    def phi(self, acc, tmp, dst):
        a = self.a
        for r in range(0, 16, 2):
            a(f"v_pk_mul_f32 {v(tmp+r,2)}, {v(acc+r,2)}, s[{sK0}:{sK0+1}] op_sel:[0,0] op_sel_hi:[1,0]")
        for r in range(16):
            a(f"v_exp_f32_e64 {v(tmp+r)}, {v(tmp+r)} clamp")
            a(f"v_max_f32 {v(acc+r)}, s{sK0+1}, {v(acc+r)}")
        for r in range(0, 16, 2):
            a(f"v_pk_add_f32 {v(acc+r,2)}, {v(acc+r,2)}, {v(tmp+r,2)}")
        self.pack(acc, dst)
    def pack(self, src, dst):
        for i in range(8):
            self.a(f"v_cvt_pk_bf16_f32 {v(dst+i)}, {v(src+2*i)}, {v(src+2*i+1)}")
    def sumsq(self, acc, dst):
        a = self.a
        a(f"v_pk_mul_f32 {v(vCS0,2)}, {v(acc,2)}, {v(acc,2)}")
        for r in range(2, 16, 2):
            a(f"v_pk_fma_f32 {v(vCS0,2)}, {v(acc+r,2)}, {v(acc+r,2)}, {v(vCS0,2)}")
        a(f"""v_add_f32 {v(dst)}, {v(vCS0)}, {v(vCS1)}
        v_add_f32 {v(vT1)}, {v(vCS0)}, {v(vCS1)}
        v_permlane32_swap_b32 {v(dst)}, {v(vT1)}
        v_add_f32 {v(dst)}, {v(dst)}, {v(vT1)}""")

    def finalize_o(self, D, P, eps):
        a = self.a
        a(f"""v_mov_b32 {v(vT0)}, {v(D+12)}
        v_mov_b32 {v(vT1)}, {v(D+12)}
        s_lshl_b32 s{sB_}, s{sT}, 4
        s_add_u32 s{sB_}, s{sB_}, s{sH}
        v_permlane32_swap_b32 {v(vT0)}, {v(vT1)}""")
        if eps: a(f"v_add_f32 {v(vT1)}, {hx(f2u(1e-6))}, {v(vT1)}")
        a(f"""v_rcp_f32 {v(vT0)}, {v(vT1)}
        s_lshl_b32 s{sB_}, s{sB_}, 11
        s_add_u32 s{sB_}, s{sB_}, s{sLB}
        s_add_u32 s{sB_}, s{sB_}, {hx(OFF_O)}""")
        pr = vT0
        for r in range(0, 8, 2):
            a(f"v_pk_mul_f32 {v(D+r,2)}, {v(D+r,2)}, {v(pr,2)} op_sel:[0,0] op_sel_hi:[1,0]")
        for i in range(4): a(f"v_cvt_pk_bf16_f32 {v(P+i)}, {v(D+2*i)}, {v(D+2*i+1)}")
        a(f"buffer_store_dwordx4 {v(P,4)}, {v(vL16)}, {srd(S_WS)}, s{sB_} offen sc1")
        for r in range(8, 16, 2):
            a(f"v_pk_mul_f32 {v(D+r,2)}, {v(D+r,2)}, {v(pr,2)} op_sel:[0,0] op_sel_hi:[1,0]")
        a(f"v_mov_b32 {v(P+6)}, 0\nv_mov_b32 {v(P+7)}, 0")
        for i in range(4, 6): a(f"v_cvt_pk_bf16_f32 {v(P+i)}, {v(D+2*i)}, {v(D+2*i+1)}")
        self.exec_lo()
        for i in range(6, 8): a(f"v_cvt_pk_bf16_f32 {v(P+i)}, {v(D+2*i)}, {v(D+2*i+1)}")
        self.exec_all()
        a(f"buffer_store_dwordx4 {v(P+4,4)}, {v(vL16)}, {srd(S_WS)}, s{sB_} offen offset:1024 sc1")
        self.vm.issue("o"); self.vm.issue("o")
        rb = self.opt.get("rb", 0)
        if rb & 1:
            if rb & 4: a("s_waitcnt vmcnt(0)")
            a(f"""buffer_load_dwordx4 {v(232,4)}, {v(vL16)}, {srd(S_WS)}, s{sB_} offen sc1
            buffer_load_dwordx4 {v(236,4)}, {v(vL16)}, {srd(S_WS)}, s{sB_} offen offset:1024 sc1""")

    def prefill(self, L, R, parts="ox", thr=False, track=False):
        a = self.a
        LB = (L + 1) << 24
        def st(so, off):
            a(f"buffer_store_dwordx4 {v(R,4)}, {v(vL16)}, {srd(S_WS)}, s{so} offen offset:{off} sc1")
            if thr: a(f"s_waitcnt vmcnt({self.thr})")
            if track: self.vm.issue("pf")
        if "o" in parts:
            a(f"""s_lshl_b32 s{sC_}, s{sT}, 4
            s_add_u32 s{sC_}, s{sC_}, s{sH}
            s_lshl_b32 s{sC_}, s{sC_}, 11
            s_add_u32 s{sC_}, s{sC_}, {hx(LB+OFF_O)}""")
            st(sC_, 0); st(sC_, 1024)
            if L % 2 == 0:
                a(f"""s_lshl_b32 s{sC_}, s{sIM}, 11
                s_and_b32 s{sSO0}, s{sWAVE}, 1
                s_lshl_b32 s{sSO0}, s{sSO0}, 10
                s_add_u32 s{sC_}, s{sC_}, s{sSO0}
                s_add_u32 s{sC_}, s{sC_}, {hx(LB+OFF_KV)}""")
                st(sC_, 0)
            elif not self.kd:
                a(f"""s_lshl_b32 s{sC_}, s{sH}, 6
                s_add_u32 s{sC_}, s{sC_}, s{sT}
                s_lshl_b32 s{sC_}, s{sC_}, 12
                s_add_u32 s{sC_}, s{sC_}, {hx(LB+OFF_KV)}""")
                for i in range(4): st(sC_, 1024 * i)
        if "x" in parts and L < 3:
            lab = a.label("Lpf")
            a(f"""s_cmp_eq_u32 s{sISWO}, 0
            s_cbranch_scc1 {lab}
            s_mul_i32 s{sC_}, s{sTW}, 14
            s_add_u32 s{sC_}, s{sC_}, s{sC}
            s_lshl_b32 s{sSO0}, s{sC_}, 11
            s_add_u32 s{sSO0}, s{sSO0}, {hx(LB+OFF_X)}
            s_lshl_b32 s{sC_}, s{sC_}, 8
            s_add_u32 s{sC_}, s{sC_}, {hx(LB+OFF_ST)}""")
            st(sSO0, 0); st(sSO0, 1024)
            a("s_mov_b64 exec, 0xffff")
            st(sC_, 0)
            a(f"s_mov_b64 exec, -1\n{lab}:")

    def qkv_front(self, redo):
        a = self.a
        D = self.D
        a(f"""s_add_u32 s{sPF}, s{sFB}, s{sGR}
        s_add_u32 s{sPF}, s{sPF}, {hx(2*SEAM + DRN - LBLK)}
        s_mov_b32 s{sRETRY}, 0""")
        self.wait_go(-1)
        self.stamp(1)
        a(f"""{redo}:
        s_mul_i32 s{sOFF}, s{sT}, 28672
        s_add_u32 s{sOFF}, s{sOFF}, s{sLB}
        s_sub_u32 s{sOFF}, s{sOFF}, 0x1000000""")
        self.xload(0); self.xload(1)
        a(f"""v_lshrrev_b32 {v(vCS0)}, 5, {v(vLANE)}
        v_mul_u32_u24 {v(vCS0)}, {7*256}, {v(vCS0)}
        v_and_b32 {v(vCS1)}, 31, {v(vLANE)}
        v_lshl_add_u32 {v(vCS0)}, {v(vCS1)}, 3, {v(vCS0)}
        s_mul_i32 s{sB_}, s{sT}, {14*256}
        s_add_u32 s{sB_}, s{sB_}, s{sLB}
        s_add_u32 s{sB_}, s{sB_}, {hx(OFF_ST - 0x1000000)}""")
        for i in range(7):
            a(f"buffer_load_dwordx2 {v(ACQ+2*i,2)}, {v(vCS0)}, {srd(S_WS)}, s{sB_} offen offset:{256*i} sc1"); self.vm.issue("st")
        for s in range(2, D): self.xload(s)
        self.tr_pair(WF, 0, 1, ("w", 0)); self.tr_pair(WF + 4, 0, 2, ("w", 0))
        def st0():
            for i in range(1, 7):
                a(f"v_pk_add_f32 {v(ACQ,2)}, {v(ACQ,2)}, {v(ACQ+2*i,2)}")
        return {2: st0, 3: lambda: self.stats_finish(ACQ, ACQ + 1), 5: lambda: self.stats_read(0), 7: lambda: self.stats_read(1)}

    def first_qkv(self):
        a = self.a
        a(f"""s_mov_b32 s{sRETRY}, 1
        s_mov_b32 s{sPF}, 0
        s_mul_i32 s{sOFF}, s{sT}, 28672
        v_lshrrev_b32 v22, 3, {v(vLANE)}
        v_and_b32 v23, 7, {v(vLANE)}
        v_lshrrev_b32 v24, 4, {v(vLANE)}
        v_xor_b32 v23, v23, v24
        v_mul_u32_u24 v22, 896, v22
        v_lshl_add_u32 {v(SB)}, v23, 4, v22
        v_xor_b32 v23, 4, v23
        v_lshl_add_u32 {v(SB+1)}, v23, 4, v22
        s_lshl_b32 s{sE}, s{sWAVE}, 14
        s_add_u32 s{sE}, s{sE}, {R2}
        s_lshl_b32 s{sXC}, s{sR7}, 7
        s_add_u32 s{sXC}, s{sXC}, s{sOFF}
        s_add_u32 s{sLIM}, s{sOFF}, 896""")
        def xdma(c):
            for i in range(4):
                a(f"""s_add_u32 m0, s{sE}, {(c&3)*4096+i*1024}
                s_add_u32 s{sA}, s{sXC}, {i*8*896}
                buffer_load_dwordx4 {v(SB+(i&1))}, {srd(S_X)}, s{sA} offen lds""")
                self.vm.issue(("xc", c))
            a(f"""s_add_u32 s{sXC}, s{sXC}, 128
            s_cmp_eq_u32 s{sXC}, s{sLIM}
            s_cselect_b32 s{sXC}, s{sOFF}, s{sXC}""")
        NX0 = self.opt.get("nx0", 4)
        for c in range(NX0): xdma(c)
        a(f"""s_mov_b32 s{sB_}, 0x3f803f80
        v_and_b32 v22, 31, {v(vLANE)}
        v_lshrrev_b32 v23, 5, {v(vLANE)}
        v_bfe_u32 v24, {v(vLANE)}, 1, 3
        v_xor_b32 v23, v23, v24
        v_lshlrev_b32 v23, 4, v23
        v_lshl_add_u32 v22, v22, 7, v23""")
        for i in range(4):
            a(f"v_xor_b32 {v(SB+2+i)}, {32*i}, v22\nv_add_u32 {v(SB+2+i)}, s{sE}, {v(SB+2+i)}")
        for i in range(4): a(f"v_mov_b32 {v(ACQ+i)}, 0\nv_mov_b32 {v(ACQ+4+i)}, -1")
        self.stamp(12)
        def xstage(c):
            self.wait(vm=("xc", c))
            for i in range(4):
                a(f"ds_read_b128 {v(XF+16*c+4*i,4)}, {v(SB+2+i)} offset:{(c&3)*4096}"); self.lg.issue(("xr", i))
            for i in range(4):
                self.wait(lg=("xr", i))
                if i == 3 and c + NX0 < 7: xdma(c + NX0)
                for j in range(4):
                    r = XF + 16 * c + 4 * i + j
                    a(f"v_dot2_f32_bf16 {v(ACQ+(j&1)*2)}, {v(r)}, s{sB_}, {v(ACQ+(j&1)*2)}")
                    a(f"v_dot2_f32_bf16 {v(ACQ+(j&1)*2+1)}, {v(r)}, {v(r)}, {v(ACQ+(j&1)*2+1)}")
            if c == 7 - NX0:
                a(f"""s_mul_i32 s{sA}, s{sTW}, 28672
                s_lshl_b32 s{sC_}, s{sC}, 6
                s_add_u32 s{sA}, s{sA}, s{sC_}
                buffer_load_dwordx4 {v(ACQ+8,4)}, {v(vRM)}, {srd(S_X)}, s{sA} offen
                buffer_load_dwordx4 {v(ACQ+12,4)}, {v(vRM)}, {srd(S_X)}, s{sA} offen offset:32""")
                self.vm.issue("res"); self.vm.issue("res")
                self.prefill(0, ACQ + 4, parts="o", track=True)
            if c == 6:
                a(f"v_pk_add_f32 {v(ACQ,2)}, {v(ACQ,2)}, {v(ACQ+2,2)}")
                self.stats_finish(ACQ, ACQ + 1)
                self.stats_read(0); self.stats_read(1)
                self.wait_all(vm=False)
        def wstage(c):
            self.barrier()
            if c == 0: self.stamp(2)
            WB = (WF, WF + 8, CS16, CS16 + 8)
            for i in range(3):
                self.tr_pair(WB[i], 4 * c + i, 1, ("w", i)); self.tr_pair(WB[i] + 4, 4 * c + i, 2, ("w", i))
            for i in range(4):
                s = 4 * c + i
                self.wait(lg=("w", i))
                if i == 0:
                    self.tr_pair(WB[3], 4 * c + 3, 1, ("w", 3)); self.tr_pair(WB[3] + 4, 4 * c + 3, 2, ("w", 3))
                self.mfma(ACK, XF + 4 * s, WB[i], ACK if s else None)
                self.mfma(ACV, XF + 4 * s, WB[i] + 4, ACV if s else None)
            if c == 5:
                R = ACQ + 8
                self.wait(vm="res")
                for f in range(2):
                    a(f"v_permlane32_swap_b32 {v(R+4*f)}, {v(R+4*f+2)}\nv_permlane32_swap_b32 {v(R+4*f+1)}, {v(R+4*f+3)}")
                for i in range(8):
                    a(f"v_lshlrev_b32 {v(XRES+2*i)}, 16, {v(R+i)}\nv_and_b32 {v(XRES+2*i+1)}, 0xffff0000, {v(R+i)}")
        AH = self.opt.get("ah", 3)
        for c in range(AH): xstage(c)
        for c in range(7):
            if c + AH < 7: xstage(c + AH)
            wstage(c)

    def layer_A(self):
        a = self.a
        a("L_layerA:")
        a(f"""s_mov_b32 s{sK0}, {hx(f2u(LOG2E))}
        s_mov_b32 s{sK0+1}, {hx(f2u(1e-6))}
        s_cmp_eq_u32 s{sL}, 0
        s_cbranch_scc0 L_A_later""")
        self.first_qkv()
        self.stamp(11)
        self.barrier()
        if self.opt.get("cp", 0): a(f"s_setprio {self.opt.get('cp', 0)}")
        self.load_cs_lane("A")
        self.wait_all()
        a("s_branch L_A_epi\nL_A_later:")
        self.vm.clear(); self.lg.clear()
        ins = self.qkv_front("L_A_redo")
        ins[9] = lambda: self.load_cs_lane("A")
        self.kv_loop("A", inserts=ins)
        self.drained_late(sGT, 2 * SEAM + DRN - LBLK, True)
        a("L_A_epi:")
        self.vm.clear(); self.lg.clear()
        self.stamp(3)
        self.fix_feat(ACK, vCS0)
        self.fix_feat(ACV, vCS1)
        for r in range(0, 16, 2):
            a(f"v_pk_fma_f32 {v(ACK+r,2)}, {v(ACK+r,2)}, {v(SA+r,2)}, s[{sK0}:{sK0+1}] op_sel:[0,0,1] op_sel_hi:[1,1,1]")
        for r in range(0, 16, 2):
            a(f"v_pk_mul_f32 {v(ACV+r,2)}, {v(ACV+r,2)}, {v(SA+r,2)}")
        self.pack(ACV, WF + 8)
        for i in range(8):
            a(f"v_cndmask_b32 {v(WF+8+i)}, {v(WF+8+i)}, {v(vPADV)}, s[{sMPAD}:{sMPAD+1}]")
        self.phi(ACK, CS16, WF)
        self.mfma(ACK, WF, WF + 8, None)
        self.mfma(ACK, WF + 4, WF + 12, ACK)
        a(f"""s_lshl_b32 s{sA}, s{sWAVE}, 12
        s_add_u32 s{sA}, s{sA}, {SCR}
        v_add_u32 {v(vCS0)}, s{sA}, {v(vL16)}
        s_lshl_b32 s{sA}, s{sWAVE}, 11
        s_add_u32 s{sA}, s{sA}, {SCR}
        v_add_u32 {v(vCS1)}, s{sA}, {v(vL16)}
        s_lshl_b32 s{sC_}, s{sIM}, 11
        s_lshl_b32 s{sA}, s{sWAVE}, 10
        s_add_u32 s{sC_}, s{sC_}, s{sA}
        s_add_u32 s{sC_}, s{sC_}, s{sLB}
        s_add_u32 s{sC_}, s{sC_}, {hx(OFF_KV)}""")
        self.nan_check(ACK, "L_A_redo", 14)
        for q in range(4):
            a(f"ds_write_b128 {v(vCS0)}, {v(ACK+4*q,4)} offset:{1024*q}")
        self.stamp(13)
        self.wait_all(vm=False)
        self.stamp(14)
        self.barrier()
        self.stamp(7)
        a(f"""s_cmp_ge_u32 s{sWAVE}, 2
        s_cbranch_scc1 L_A_q""")
        for w in range(4):
            a(f"ds_read_b128 {v(ACK+8*w,4)}, {v(vCS1)} offset:{4096*w}\nds_read_b128 {v(ACK+8*w+4,4)}, {v(vCS1)} offset:{4096*w+1024}")
        for w in range(1, 4):
            a(f"s_waitcnt lgkmcnt({6-2*w})")
            for r in range(0, 8, 2):
                a(f"v_pk_add_f32 {v(ACK+r,2)}, {v(ACK+r,2)}, {v(ACK+8*w+r,2)}")
        for i in range(4):
            a(f"v_cvt_pk_bf16_f32 {v(ACK+8+i)}, {v(ACK+2*i)}, {v(ACK+2*i+1)}")
        a(f"""v_mov_b32 {v(vT0)}, 1
        buffer_store_dwordx4 {v(ACK+8,4)}, {v(vL16)}, {srd(S_WS)}, s{sC_} offen sc1""")
        if not self.ek: self.ctr_add(sGH, 0, vT0)
        a("L_A_q:")
        self.vm.clear(); self.lg.clear()
        self.stamp(4)
        ID = ACV
        def ident(i):
            d0 = 16 * (i >> 2) + 8 * ((i & 3) >> 1) + 2 * (i & 1)
            a(f"""v_cmp_eq_u32 vcc, {d0}, {v(vCS1)}
            v_cmp_eq_u32 s[{sE}:{sE+1}], {d0+1}, {v(vCS1)}
            v_cndmask_b32 {v(ID+i)}, 0, {v(ID+8)}, vcc
            v_cndmask_b32 {v(ID+i)}, {v(ID+i)}, {v(ID+9)}, s[{sE}:{sE+1}]""")
        def ident0():
            a(f"""v_lshrrev_b32 {v(vCS0)}, 5, {v(vLANE)}
            v_and_b32 {v(vCS1)}, 31, {v(vLANE)}
            v_lshlrev_b32 {v(vCS0)}, 2, {v(vCS0)}
            v_sub_u32 {v(vCS1)}, {v(vCS1)}, {v(vCS0)}
            v_mov_b32 {v(ID+8)}, 0x3f80
            v_mov_b32 {v(ID+9)}, 0x3f800000""")
        ins = {1: ident0, 24: lambda: self.load_cs_reg("A", 0)}
        for i in range(8): ins[3 + 2 * i] = (lambda i=i: ident(i))
        self.q_loop(ins)
        self.drained(sGH, 0)
        a(f"""s_lshl_b32 s{sOFF}, s{sH}, 2
        s_add_u32 s{sOFF}, s{sOFF}, s{sWAVE}
        s_lshl_b32 s{sOFF}, s{sOFF}, 13
        s_add_u32 s{sOFF}, s{sOFF}, s{sLB}
        s_add_u32 s{sOFF}, s{sOFF}, {hx(OFF_KV)}
        s_add_u32 s{sOFFMAX}, s{sOFF}, 4096
        s_add_u32 s{sPF}, s{sFB}, s{sGH}
        s_add_u32 s{sPF}, s{sPF}, {DRN}
        s_mov_b32 s{sRETRY}, 0""")
        self.wait_all(vm=False)
        self.fix_tok(ACQ)
        pair = vA & ~1; sel = vA & 1
        for r in range(0, 16, 2):
            a(f"v_pk_fma_f32 {v(ACQ+r,2)}, {v(ACQ+r,2)}, {v(pair,2)}, s[{sK0}:{sK0+1}] op_sel:[0,{sel},1] op_sel_hi:[1,{sel},1]")
        PQ = WF
        self.stamp(5)
        self.barrier()
        self.stamp(6)
        a("L_A_mredo:")
        for i in range(8):
            so = sOFF if i < 4 else sOFFMAX
            a(f"buffer_load_dwordx4 {v(XF+4*i,4)}, {v(vL16)}, {srd(S_WS)}, s{so} offen offset:{(i&3)*1024} sc1"); self.vm.issue(("p", i))
        a(f"""s_cmp_lg_u32 s{sRETRY}, 0
        s_cbranch_scc1 L_A_nophi""")
        self.phi(ACQ, CS16, PQ)
        self.exec_hi()
        a(f"v_mov_b32 {v(PQ+6)}, 0\nv_mov_b32 {v(PQ+7)}, 0")
        self.exec_all()
        a(f"""L_A_nophi:
        s_lshl_b32 s{sA}, s{sWAVE}, 11
        s_add_u32 s{sA}, s{sA}, {SCR}
        v_add_u32 {v(vCS0)}, s{sA}, {v(vL16)}
        v_add_u32 {v(vCS1)}, {SCR}, {v(vL16)}""")
        for i in range(8):
            self.wait(vm=("p", i))
            self.mfma(ACK, ID + 4 * (i & 1), XF + 4 * i, ACK if i else None)
        self.nan_check(ACK, "L_A_mredo", 16)
        self.pack(ACK, XF + 64)
        a(f"ds_write_b128 {v(vCS0)}, {v(XF+64,4)}\nds_write_b128 {v(vCS0)}, {v(XF+68,4)} offset:1024")
        self.wait_all(vm=False)
        self.barrier()
        for i in range(8):
            a(f"ds_read_b128 {v(XF+4*i,4)}, {v(vCS1)} offset:{1024*i}")
        for i in range(8):
            a(f"s_waitcnt lgkmcnt({7-i})")
            acc = ACQ if i & 1 else ACK
            self.mfma(ACQ, XF + 4 * i, PQ + 4 * (i & 1), ACQ if i else None)
        if self.eo: self.barrier()
        self.finalize_o(ACQ, ACK, True)
        if not self.eo: self.barrier()
        a("s_branch L_wo")

    def layer_B(self):
        a = self.a
        Q = 32; O = 64
        a("L_layerB:")
        self.vm.clear(); self.lg.clear()
        ins = self.qkv_front("L_B_redo")
        ins[9] = lambda: self.load_cs_lane("B")
        ins[11] = lambda: self.load_cs_reg("B", 1)
        def padf():
            a(f"v_and_b32 {v(vCS0)}, 0xffff0000, {v(vPADV)}")
        ins[14] = padf
        self.kv_loop("B", inserts=ins)
        self.drained_late(sGT, 2 * SEAM + DRN - LBLK, True)
        a(f"""s_cmp_lg_u32 s{sL}, 1
        s_cbranch_scc1 L_B_cs
        s_cmp_lg_u32 s{sRETRY}, 0
        s_cbranch_scc1 L_B_cs""")
        self.barrier()
        self.load_cs_lane("B"); self.load_cs_reg("B", 1)
        self.wait_all(vm=False)
        padf()
        a("L_B_cs:")
        self.stamp(3)
        a(f"""s_lshl_b32 s{sC_}, s{sH}, 6
        s_add_u32 s{sC_}, s{sC_}, s{sT}
        s_lshl_b32 s{sC_}, s{sC_}, 12
        s_add_u32 s{sC_}, s{sC_}, s{sLB}
        s_add_u32 s{sC_}, s{sC_}, {hx(OFF_KV)}""")
        self.fix_tok(ACK)
        self.scale_lane(ACK, vA)
        self.nan_check(ACK, "L_B_redo", 14)
        KO = CS16
        self.pack(ACK, KO)
        self.exec_hi()
        a(f"v_mov_b32 {v(KO+6)}, 0x3f803f80\nv_mov_b32 {v(KO+7)}, 0x3f80")
        self.exec_all()
        for i in range(2):
            a(f"buffer_store_dwordx4 {v(KO+4*i,4)}, {v(vL16)}, {srd(S_WS)}, s{sC_} offen offset:{1024*i} sc1")
        self.fix_feat(ACV, vCS1)
        for r in range(0, 16, 2):
            a(f"v_pk_fma_f32 {v(ACV+r,2)}, {v(ACV+r,2)}, {v(SA+r,2)}, {v(vCS0,2)} op_sel:[0,0,0] op_sel_hi:[1,1,0]")
        self.pack(ACV, KO + 8)
        for i in range(2, 4):
            a(f"buffer_store_dwordx4 {v(KO+4*i,4)}, {v(vL16)}, {srd(S_WS)}, s{sC_} offen offset:{1024*i} sc1")
        self.sumsq(ACK, vT0)
        for sh in (1, 2, 4, 8):
            a(f"v_max_f32_dpp {v(vT0)}, {v(vT0)}, {v(vT0)} row_ror:{sh} row_mask:0xf bank_mask:0xf")
        a(f"""v_readlane_b32 s{sC_}, {v(vT0)}, 16
        s_add_u32 s{sA}, s{sFB}, s{sGH}
        s_add_u32 s{sA}, s{sA}, s{sWL}
        s_lshl_b32 s{sB_}, s{sRB}, 2
        s_add_u32 s{sA}, s{sA}, s{sB_}
        v_max3_u32 {v(vCS0)}, s{sC_}, {v(vT0)}, 1""")
        def kvhint():
            if self.kd: a("s_waitcnt vmcnt(0)")
            a(f"""s_mov_b64 exec, 1
            buffer_atomic_add {v(vCS0)}, off, {srd(S_WS)}, s{sA} sc1
            s_mov_b64 exec, -1""")
        if not self.kd: kvhint()
        self.stamp(4)
        self.load_cs_reg("B", 0, SB)
        ins = {}
        for s_ in range(8, 24):
            ins[s_ + 1] = (lambda s_=s_: [a(f"v_mov_b32 {v(XF+4*s_+j)}, 0") for j in range(4)])
        if self.kd:
            prev = ins.get(self.kd)
            ins[self.kd] = lambda: ((prev() if prev else None), kvhint())
        self.q_loop(ins)
        if not self.kd: self.drained(sGH, 0)
        self.fix_tok(ACQ, SB)
        a(f"v_mul_f32 {v(vA)}, {hx(f2u(QSCALE))}, {v(vA)}")
        self.scale_lane(ACQ, vA)
        self.pack(ACQ, WF)
        self.sumsq(ACQ, vT0)
        a(f"v_sqrt_f32 {v(vT0)}, {v(vT0)}")
        self.exec_hi()
        a(f"v_mov_b32 {v(WF+6)}, {v(vT0)}")
        self.exec_all()
        a(f"""s_lshl_b32 s{sA}, s{sWAVE}, 11
        s_add_u32 s{sA}, s{sA}, {SCR}
        v_add_u32 {v(vT0)}, s{sA}, {v(vL16)}
        ds_write_b128 {v(vT0)}, {v(WF,4)}
        ds_write_b128 {v(vT0)}, {v(WF+4,4)} offset:1024
        s_add_u32 s{sPF}, s{sFB}, s{sGH}
        s_add_u32 s{sPF}, s{sPF}, {DRN}""")
        self.attention()

    def attention(self):
        a = self.a
        Q = 32; O = 64; S = 128; P = 160
        SL = (CS16, 168, 184, 200)
        for i in range(4): a(f"v_mov_b32 {v(P+4+i)}, 0\nv_mov_b32 {v(SL[3]+12+i)}, 0")
        for i in range(4):
            a(f"""s_add_u32 s{sA}, s{sWAVE}, {i+1}
            s_and_b32 s{sA}, s{sA}, 3
            s_mul_i32 s{sB_}, s{sA}, 12288
            s_lshl_b32 s{sA}, s{sA}, 11
            s_add_u32 s{sA}, s{sA}, {SCR}
            v_add_u32 {v(S+16+i)}, s{sA}, {v(vL16)}
            v_add_u32 {v(216+i)}, s{sB_}, {v(vL16)}""")
        a(f"""s_lshl_b32 s{sOFFMAX}, s{sH}, 18
        s_lshl_b32 s{sA}, s{sWAVE}, 12
        s_add_u32 s{sOFFMAX}, s{sOFFMAX}, s{sA}
        s_add_u32 s{sOFFMAX}, s{sOFFMAX}, s{sLB}
        s_add_u32 s{sOFFMAX}, s{sOFFMAX}, {hx(OFF_KV)}
        s_lshl_b32 s{sG}, s{sRB}, 14
        s_add_u32 s{sG}, s{sG}, s{sOFFMAX}
        s_sub_u32 s{sOFF}, s{sOFFMAX}, 0x4000
        s_mul_i32 s{sA}, s{sL}, 12
        s_add_u32 s{sA}, s{sA}, {GO}
        v_mov_b32 {v(vT1)}, s{sA}""")
        def kvload(slot, j):
            a(f"buffer_load_dwordx4 {v(SL[slot]+4*j,4)}, {v(vL16)}, {srd(S_WS)}, s{sOFF} offen offset:{1024*j} sc1")
        def adv():
            a(f"s_add_u32 s{sOFF}, s{sOFF}, 0x4000\ns_cmp_eq_u32 s{sOFF}, s{sG}\ns_cselect_b32 s{sA}, 0x4000, 0\ns_add_u32 s{sOFF}, s{sOFF}, s{sA}")
        adv()
        a("s_waitcnt lgkmcnt(0)")
        self.stamp(5)
        self.barrier()
        self.stamp(6)
        a(f"ds_read_b32 {v(vT0)}, {v(vT1)}")
        for i in range(4):
            a(f"ds_read_b128 {v(Q+8*i,4)}, {v(S+16+i)}\nds_read_b128 {v(Q+8*i+4,4)}, {v(S+16+i)} offset:1024")
        for slot in (1, 2):
            for j in range(4): kvload(slot, j)
            adv()
        a(f"""s_waitcnt lgkmcnt(6)
        v_sqrt_f32 {v(vT0)}, {v(vT0)}
        v_mov_b32 {v(vT1)}, {hx(f2u(SHIFT_UP))}""")
        self.mfma(S, SL[0], Q, None)
        self.exec_hi()
        for i in range(4):
            if i: a(f"s_waitcnt lgkmcnt({6-2*i})")
            a(f"v_fma_f32 {v(Q+8*i+6)}, -{v(Q+8*i+6)}, {v(vT0)}, {v(vT1)}")
            a(f"v_cvt_pk_bf16_f32 {v(Q+8*i+6)}, {v(Q+8*i+6)}, 0")
        self.exec_all()
        self.mfma(S, SL[0] + 4, Q + 4, S)
        a(f"s_mov_b32 s{sLOOP}, 3\ns_mov_b32 s{sRETRY}, 0\ns_nop 9")
        def group(last):
            for n in range(16):
                kt, i = n >> 2, n & 3
                pk, pi = ((n - 1) & 15) >> 2, (n - 1) & 3
                nk, ni = ((n + 1) & 15) >> 2, (n + 1) & 3
                Sc, Sn = S + 16 * (n & 1), S + 16 * ((n + 1) & 1)
                ex = lambda r: a(f"v_exp_f32 {v(Sc+r)}, {v(Sc+r)}")
                cv = lambda j: a(f"v_cvt_pk_bf16_f32 {v(P+j)}, {v(Sc+2*j)}, {v(Sc+2*j+1)}")
                fin = last and n == 15
                wr = last and n >= 13
                dw = lambda q: a(f"ds_write_b128 {v(216+pi)}, {v(O+16*pi+4*q,4)} offset:{OX+4096*(2-pi)+1024*q}")
                ex(0); ex(1)
                self.mfma(O + 16 * pi, SL[pk] + 12, P + 4, O + 16 * pi)
                for r in range(2, 6): ex(r)
                if i == 3 and not fin:
                    a(f"s_waitcnt vmcnt({7 if not last else (7, 4, 0)[kt]})")
                if not fin: self.mfma(Sn, SL[nk], Q + 8 * ni, None)
                ex(6); ex(7); cv(0); cv(1); cv(2)
                if not fin: self.mfma(Sn, SL[nk] + 4, Q + 8 * ni + 4, Sn)
                cv(3)
                for r in range(8, 12): ex(r)
                self.mfma(O + 16 * i, SL[kt] + 8, P, O + 16 * i)
                if not last or kt == 0:
                    kvload((kt + 3) & 3, i)
                    if i == 3: adv()
                for r in range(12, 16):
                    ex(r)
                    if wr: dw(r - 12)
                for j in range(4, 8): cv(j)
        a("L_att:")
        group(False)
        a(f"""s_sub_u32 s{sLOOP}, s{sLOOP}, 1
        s_cmp_lg_u32 s{sLOOP}, 0
        s_cbranch_scc1 L_att""")
        group(True)
        self.mfma(O + 48, SL[3] + 12, P + 4, O + 48)
        self.stamp(7)
        a("s_waitcnt lgkmcnt(0)")
        self.barrier()
        for i in range(3):
            for q in range(4):
                a(f"ds_read_b128 {v(O+16*i+4*q,4)}, {v(219)} offset:{OX+4096*i+1024*q}")
        O = O + 48
        for i in range(3):
            a(f"s_waitcnt lgkmcnt({8-4*i})")
            for r in range(0, 16, 2):
                a(f"v_pk_add_f32 {v(O+r,2)}, {v(O+r,2)}, {v(O-48+16*i+r,2)}")
        if self.eo: self.barrier()
        a(f"v_pk_add_f32 {v(vCS0,2)}, {v(O,2)}, {v(O+2,2)}")
        for r in range(4, 16, 2):
            a(f"v_pk_add_f32 {v(vCS0,2)}, {v(vCS0,2)}, {v(O+r,2)}")
        a(f"""v_add_f32 {v(vCS0)}, {v(vCS0)}, {v(vCS1)}
        s_movk_i32 s{sB_}, 0x207
        v_cmp_class_f32_e64 s[{sK0}:{sK0+1}], {v(vCS0)}, s{sB_}
        s_mov_b32 exec_lo, 0
        v_cmp_nle_f32 vcc, {hx(f2u(L_MIN))}, {v(O+12)}
        s_mov_b32 exec_lo, -1
        s_or_b64 vcc, vcc, s[{sK0}:{sK0+1}]
        s_cbranch_vccnz L_slow
        L_att_fin:""")
        self.finalize_o(O, P, False)
        if not self.eo: self.barrier()

    def slow_path(self):
        a = self.a
        Q = 56; O = 112; S = 128; P = 160; KV = 168; M = 232
        a("L_slow:")
        if not self.kd:
            self.poll_ctr(f"s{sPF}", 16, vT0, four=vT1)
            a("buffer_inv sc1\ns_waitcnt vmcnt(0)")
        a(f"""s_mov_b32 s{sRETRY}, 1
        s_lshl_b32 s{sOFFMAX}, s{sH}, 18
        s_add_u32 s{sOFFMAX}, s{sOFFMAX}, s{sLB}
        s_add_u32 s{sOFFMAX}, s{sOFFMAX}, {hx(OFF_KV)}
        s_mov_b32 s{sOFF}, s{sOFFMAX}
        v_mov_b32 {v(M)}, 0xff800000""")
        self.exec_hi()
        a(f"v_mov_b32 {v(Q+6)}, 0\nv_mov_b32 {v(Q+7)}, 0")
        self.exec_all()
        a(f"""s_mov_b32 s{sLOOP}, 64
        L_slow1:
        buffer_load_dwordx4 {v(KV,4)}, {v(vL16)}, {srd(S_WS)}, s{sOFF} offen sc1
        buffer_load_dwordx4 {v(KV+4,4)}, {v(vL16)}, {srd(S_WS)}, s{sOFF} offen offset:1024 sc1
        s_add_u32 s{sOFF}, s{sOFF}, 4096
        s_waitcnt vmcnt(0)""")
        self.mfma(S, KV, Q, None); self.mfma(S, KV + 4, Q + 4, S)
        for r in range(0, 16, 2):
            a(f"v_max3_f32 {v(M)}, {v(S+r)}, {v(S+r+1)}, {v(M)}")
        a(f"""s_sub_u32 s{sLOOP}, s{sLOOP}, 1
        s_cmp_lg_u32 s{sLOOP}, 0
        s_cbranch_scc1 L_slow1
        v_mov_b32 {v(M+1)}, {v(M)}
        v_permlane32_swap_b32 {v(M)}, {v(M+1)}
        v_max_f32 {v(M)}, {v(M)}, {v(M+1)}
        v_sub_f32 {v(M)}, 0, {v(M)}
        v_and_b32 {v(M+1)}, 0xffff0000, {v(M)}
        v_sub_f32 {v(M)}, {v(M)}, {v(M+1)}
        v_and_b32 {v(M+2)}, 0xffff0000, {v(M)}
        v_sub_f32 {v(M)}, {v(M)}, {v(M+2)}
        v_lshrrev_b32 {v(M+1)}, 16, {v(M+1)}""")
        self.exec_hi()
        a(f"v_or_b32 {v(Q+6)}, {v(M+1)}, {v(M+2)}\nv_lshrrev_b32 {v(Q+7)}, 16, {v(M)}")
        self.exec_all()
        for i in range(16): a(f"v_mov_b32 {v(O+i)}, 0")
        a(f"""s_mov_b32 s{sOFF}, s{sOFFMAX}
        s_mov_b32 s{sLOOP}, 64
        L_slow2:""")
        for j in range(4):
            a(f"buffer_load_dwordx4 {v(KV+4*j,4)}, {v(vL16)}, {srd(S_WS)}, s{sOFF} offen offset:{1024*j} sc1")
        a(f"s_add_u32 s{sOFF}, s{sOFF}, 4096\ns_waitcnt vmcnt(0)")
        self.mfma(S, KV, Q, None); self.mfma(S, KV + 4, Q + 4, S)
        for r in range(16): a(f"v_exp_f32 {v(S+r)}, {v(S+r)}")
        self.pack(S, P)
        self.mfma(O, KV + 8, P, O); self.mfma(O, KV + 12, P + 4, O)
        a(f"""s_sub_u32 s{sLOOP}, s{sLOOP}, 1
        s_cmp_lg_u32 s{sLOOP}, 0
        s_cbranch_scc1 L_slow2
        s_branch L_att_fin""")

    def wo_phase(self):
        a = self.a
        OF = 32; SEND = 96; RECV = 112; PK = 128; KEEP = 144
        a("L_wo:")
        self.vm.clear(); self.lg.clear()
        self.stamp(8)
        a(f"""s_cmp_eq_u32 s{sISWO}, 0
        s_cbranch_scc1 L_wo_skip
        s_lshr_b32 s{sD}, s{sWAVE}, 1
        s_lshl_b32 s{sA}, s{sTW}, 1
        s_add_u32 s{sA}, s{sA}, s{sD}
        s_lshl_b32 s{sOFFMAX}, s{sA}, 14
        s_add_u32 s{sOFFMAX}, s{sOFFMAX}, s{sLB}
        s_add_u32 s{sOFFMAX}, s{sOFFMAX}, {hx(OFF_O)}
        s_add_u32 s{sPF}, s{sFB}, s{sGT}
        s_add_u32 s{sPF}, s{sPF}, {SEAM+DRN}
        s_mov_b32 s{sRETRY}, 0
        s_mul_i32 s{sSO0}, s{sTW}, 28672
        s_cmp_eq_u32 s{sL}, 3
        s_cbranch_scc1 L_wo_last
        s_lshl_b32 s{sB_}, s{sC}, 11
        s_add_u32 s{sSO0}, s{sSO0}, s{sB_}
        s_add_u32 s{sSO0}, s{sSO0}, s{sLB}
        s_add_u32 s{sSO1}, s{sSO0}, 1024
        v_mov_b32 {v(vXO)}, {v(vL16)}
        s_branch L_wo_addr
        L_wo_last:
        s_lshl_b32 s{sB_}, s{sC}, 6
        s_add_u32 s{sSO0}, s{sSO0}, s{sB_}
        s_add_u32 s{sSO1}, s{sSO0}, 32
        v_mov_b32 {v(vXO)}, {v(vRM)}
        s_mov_b32 s{S_XOUT}, s{PTR+12}
        s_mov_b32 s{S_XOUT+1}, s{PTR+13}
        s_mov_b32 s{S_XOUT+2}, 1835008
        L_wo_addr:
        s_lshl_b32 s{sA}, s{sWAVE}, 12
        s_add_u32 s{sB_}, s{sA}, {SCR}
        v_add_u32 {v(vA)}, s{sB_}, {v(vL16)}
        s_xor_b32 s{sA}, s{sA}, 8192
        s_add_u32 s{sA}, s{sA}, {SCR}
        v_add_u32 {v(vNM)}, s{sA}, {v(vL16)}
        s_mul_i32 s{sG}, s{sTW}, 14
        s_add_u32 s{sG}, s{sG}, s{sC}
        s_lshl_b32 s{sG}, s{sG}, 8
        s_add_u32 s{sG}, s{sG}, s{sLB}
        s_add_u32 s{sG}, s{sG}, {hx(OFF_ST)}
        v_lshlrev_b32 {v(vCS1)}, 3, {v(vLANE)}""")
        def wtr(dst, base, n):
            off = (28 * (n >> 1) + 16 * (n & 1)) * 128
            a(f"ds_read_b64_tr_b16 {v(dst,2)}, {v(base)} offset:{off}"); self.lg.issue(("w", n))
            a(f"ds_read_b64_tr_b16 {v(dst+2,2)}, {v(base)} offset:{off+1024}"); self.lg.issue(("w", n))
        self.wait_go(1)
        self.stamp(9)
        a(f"L_wo_redo:\ns_mov_b32 s{sOFF}, s{sOFFMAX}")
        for n in range(16):
            if n and n % 4 == 0: a(f"s_add_u32 s{sOFF}, s{sOFF}, 4096")
            a(f"buffer_load_dwordx4 {v(OF+4*n,4)}, {v(vL16)}, {srd(S_WS)}, s{sOFF} offen offset:{(n%4)*1024} sc1"); self.vm.issue(("o", n))
        wtr(WF, vWK, 0); wtr(WF + 4, vWS_, 0)
        for n in range(16):
            p = n & 1
            if n + 1 < 16:
                wtr(WF + 8 * (1 - p), vWK, n + 1); wtr(WF + 8 * (1 - p) + 4, vWS_, n + 1)
            self.wait(vm=("o", n), lg=("w", n))
            self.mfma(SEND, WF + 8 * p + 4, OF + 4 * n, SEND if n else None)
            self.mfma(KEEP, WF + 8 * p, OF + 4 * n, KEEP if n else XRES)
        self.drained_late(sGR, SEAM + DRN)
        self.nan_check(SEND, "L_wo_redo", 16)
        for q in range(4):
            a(f"ds_write_b128 {v(vA)}, {v(SEND+4*q,4)} offset:{1024*q}")
        a("s_waitcnt lgkmcnt(0)")
        self.barrier()
        self.stamp(12)
        for q in range(4):
            a(f"ds_read_b128 {v(RECV+4*q,4)}, {v(vNM)} offset:{1024*q}")
        for f in range(2):
            for q in range(2 * f, 2 * f + 2):
                a(f"s_waitcnt lgkmcnt({3-q})")
                a(f"v_pk_add_f32 {v(XRES+4*q,2)}, {v(KEEP+4*q,2)}, {v(RECV+4*q,2)}\nv_pk_add_f32 {v(XRES+4*q+2,2)}, {v(KEEP+4*q+2,2)}, {v(RECV+4*q+2,2)}")
            if f == 0 and self.ex >= 2:
                a("s_waitcnt lgkmcnt(0)")
                self.barrier()
            for i in range(4 * f, 4 * f + 4):
                a(f"v_cvt_pk_bf16_f32 {v(PK+i)}, {v(XRES+2*i)}, {v(XRES+2*i+1)}")
            a(f"v_permlane32_swap_b32 {v(PK+4*f)}, {v(PK+4*f+2)}\nv_permlane32_swap_b32 {v(PK+4*f+1)}, {v(PK+4*f+3)}")
            fs = self.opt.get("fs", 1)
            if fs:
                l1, l2 = a.label("Lfs"), a.label("Lfe")
                a(f"""s_cmp_eq_u32 s{sL}, 3
                s_cbranch_scc1 {l1}
                buffer_store_dwordx4 {v(PK+4*f,4)}, {v(vXO)}, {srd(S_XOUT)}, s{(sSO0,sSO1)[f]} offen sc1
                s_branch {l2}
                {l1}:
                buffer_store_dwordx4 {v(PK+4*f,4)}, {v(vXO)}, {srd(S_XOUT)}, s{(sSO0,sSO1)[f]} offen {("", "", "nt", "sc0")[fs]}
                {l2}:""")
            else:
                a(f"buffer_store_dwordx4 {v(PK+4*f,4)}, {v(vXO)}, {srd(S_XOUT)}, s{(sSO0,sSO1)[f]} offen sc1")
        a(f"""s_cmp_eq_u32 s{sL}, 3
        s_cbranch_scc1 L_fin""")
        if self.ex == 1: self.barrier()
        a(f"v_pk_add_f32 {v(RECV,2)}, {v(XRES,2)}, {v(XRES+2,2)}\nv_pk_mul_f32 {v(RECV+2,2)}, {v(XRES,2)}, {v(XRES,2)}")
        for r in range(2, 16, 2):
            if r >= 4: a(f"v_pk_add_f32 {v(RECV,2)}, {v(RECV,2)}, {v(XRES+r,2)}")
            a(f"v_pk_fma_f32 {v(RECV+2,2)}, {v(XRES+r,2)}, {v(XRES+r,2)}, {v(RECV+2,2)}")
        a(f"""v_add_f32 {v(RECV+4)}, {v(RECV)}, {v(RECV+1)}
        v_add_f32 {v(RECV+5)}, {v(RECV+2)}, {v(RECV+3)}
        v_add_f32 {v(RECV+6)}, {v(RECV)}, {v(RECV+1)}
        v_add_f32 {v(RECV+7)}, {v(RECV+2)}, {v(RECV+3)}
        v_permlane32_swap_b32 {v(RECV+4)}, {v(RECV+6)}
        v_permlane32_swap_b32 {v(RECV+5)}, {v(RECV+7)}
        v_pk_add_f32 {v(RECV+4,2)}, {v(RECV+4,2)}, {v(RECV+6,2)}""")
        self.exec_lo()
        a(f"buffer_store_dwordx2 {v(RECV+4,2)}, {v(vCS1)}, {srd(S_WS)}, s{sG} offen sc1")
        self.exec_all()
        rb = self.opt.get("rb", 0)
        if rb & 2:
            if rb & 4: a("s_waitcnt vmcnt(0)")
            a(f"""buffer_load_dwordx4 {v(ACK,4)}, {v(vL16)}, {srd(S_WS)}, s{sSO0} offen sc1
            buffer_load_dwordx4 {v(ACK+4,4)}, {v(vL16)}, {srd(S_WS)}, s{sSO1} offen sc1""")
        if self.ex == 0: self.barrier()
        self.stamp(10)
        a("s_branch L_next\nL_wo_skip:")
        self.drained(sGR, 1)
        if self.opt.get("bgo", 1): self.barrier()
        self.barrier()
        a(f"""s_cmp_eq_u32 s{sL}, 3
        s_cbranch_scc1 L_fin""")
        self.barrier()
        a(f"""L_next:
        s_add_u32 s{sL}, s{sL}, 1
        s_add_u32 s{sLB}, s{sLB}, 0x1000000
        s_add_u32 s{sFB}, s{sFB}, {LBLK}
        s_bitcmp1_b32 s{sL}, 0
        s_cbranch_scc1 L_layerB
        s_branch L_layerA""")

    def helper(self):
        a = self.a
        VKV, VQ, VWO, VCS = 16, 17, 18, 19
        ONES, FR, ACC = 24, 28, 64
        NANR, VONE = 128, 132
        NFL = self.opt.get("nfl", 8)
        a(f"""s_sub_u32 s{sHH}, s{sWAVE}, 4
        v_lshrrev_b32 v22, 3, {v(vLANE)}
        v_and_b32 v23, 7, {v(vLANE)}
        v_bfe_u32 v28, {v(vLANE)}, 4, 1
        v_lshlrev_b32 v28, 2, v28
        v_xor_b32 v23, v23, v28
        v_mul_u32_u24 v29, 896, v22
        v_lshl_add_u32 v{VWO}, v23, 4, v29
        v_mul_u32_u24 v29, 2688, v22
        v_lshrrev_b32 v28, 2, v23
        v_mul_u32_u24 v28, 896, v28
        v_and_b32 v23, 3, v23
        v_lshl_add_u32 v29, v23, 4, v29
        v_add_u32 v{VKV}, v29, v28
        v_lshrrev_b32 v22, 2, {v(vLANE)}
        v_mul_u32_u24 v22, 2688, v22
        v_lshl_add_u32 v{VQ}, v23, 4, v22
        s_mul_i32 s{sE}, s{sH}, 56
        s_and_b32 s{sE}, s{sE}, 0xfff0
        s_mul_i32 s{sB_}, s{sHH}, {8*2688}
        s_add_u32 s{sB_}, s{sB_}, s{sE}
        s_add_u32 s{sXC}, s{sB_}, 896
        s_add_u32 s{sLIM}, s{sXC}, {448*2688}
        s_mul_i32 s{sROT}, s{sR7}, {64*2688}
        s_add_u32 s{sB_}, s{sXC}, s{sROT}
        s_lshl_b32 s{sA}, s{sHH}, 10""")
        def raw_kv():
            a(f"""s_mov_b32 m0, s{sA}
            s_add_u32 s{sA}, s{sA}, 4096
            buffer_load_dwordx4 v{VKV}, {srd(S_WQ)}, s{sB_} offen lds
            s_add_u32 s{sB_}, s{sB_}, {32*2688}
            s_cmp_eq_u32 s{sB_}, s{sLIM}
            s_cselect_b32 s{sB_}, s{sXC}, s{sB_}""")
        a(f"""v_mov_b32 v28, 0
        v_mov_b32 v29, 0
        v_mov_b32 v30, 0
        v_mov_b32 v31, 0
        s_cmp_lg_u32 s{sHH}, 3
        s_cbranch_scc1 L_h_noz
        s_cmp_ge_u32 s2, {NZERO}
        s_cbranch_scc1 L_h_noz
        v_mul_u32_u24 v22, {LN}, {v(vLANE)}
        s_mul_i32 s{sC_}, s2, {64*LN}
        buffer_store_dwordx4 v[28:31], v22, {srd(S_WS)}, s{sC_} offen sc1
        buffer_store_dwordx4 v[28:31], v22, {srd(S_WS)}, s{sC_} offen offset:16 sc1
        buffer_store_dwordx4 v[28:31], v22, {srd(S_WS)}, s{sC_} offen offset:32 sc1
        buffer_store_dwordx4 v[28:31], v22, {srd(S_WS)}, s{sC_} offen offset:48 sc1
        L_h_noz:""")
        for i in range(NFL): raw_kv()
        if self.opt.get("tlb", 0):
            a(f"""s_cmp_lg_u32 s{sHH}, 2
            s_cbranch_scc1 L_h_notlb
            v_min_u32 v22, 39, {v(vLANE)}
            v_lshlrev_b32 v22, 21, v22
            v_add_u32 v22, 0x1fff00, v22
            buffer_load_dword v60, v22, {srd(S_WS)}, 0 offen sc1
            L_h_notlb:""")
        a(f"""v_and_b32 v22, 31, {v(vLANE)}
        v_lshlrev_b32 v{VCS}, 2, v22
        v_mov_b32 v24, 0x3f803f80
        v_mov_b32 v25, 0x3f803f80
        v_mov_b32 v26, 0x3f803f80
        v_mov_b32 v27, 0x3f803f80
        v_mov_b32 v{NANR}, -1
        v_mov_b32 v{NANR+1}, -1
        v_mov_b32 v{NANR+2}, -1
        v_mov_b32 v{NANR+3}, -1
        v_mov_b32 v{VONE}, 1
        v_min_u32 v22, 47, {v(vLANE)}
        v_lshlrev_b32 v22, 4, v22
        v_add_u32 v22, {CSA}, v22
        ds_write_b128 v22, v[28:31]
        v_and_b32 v22, 15, {v(vLANE)}
        v_lshlrev_b32 v22, 2, v22
        v_add_u32 v22, {GO}, v22
        ds_write_b32 v22, v28
        s_lshl_b32 s{sC_}, s{sHH}, 11
        v_add_u32 v20, s{sC_}, {v(vTK)}
        v_add_u32 v21, s{sC_}, {v(vTV)}
        s_mul_i32 s{sD}, s{sHH}, {16*2688}
        s_add_u32 s{sD}, s{sD}, s{sE}
        s_add_u32 s{sLIM2}, s{sD}, {448*2688}
        s_add_u32 s{sF}, s{sD}, s{sROT}
        s_lshl_b32 s{sG}, s{sHH}, 10
        s_add_u32 s{sG}, s{sG}, {R1Q}
        s_waitcnt lgkmcnt(0)""")
        def raw_q():
            a(f"""s_mov_b32 m0, s{sG}
            s_add_u32 s{sG}, s{sG}, 4096
            buffer_load_dwordx4 v{VQ}, {srd(S_WQ)}, s{sF} offen lds
            s_add_u32 s{sF}, s{sF}, {64*2688}
            s_cmp_eq_u32 s{sF}, s{sLIM2}
            s_cselect_b32 s{sF}, s{sD}, s{sF}""")
        a("s_setprio 1")
        seq = ["kv"] * 14 + ["q"] * 7
        nxt = NFL
        for c in range(7):
            if c == 0: self.stamp(1)
            a(f"s_waitcnt vmcnt({nxt-2*c-2})")
            if c == 0:
                self.stamp(2)
                a(f"""s_cmp_lg_u32 s{sHH}, 3
                s_cbranch_scc1 L_h_nosig
                s_cmp_ge_u32 s2, {NZERO}
                s_cbranch_scc1 L_h_nosig
                s_mov_b64 exec, 1
                buffer_atomic_add v{VONE}, off, {srd(S_DBG)}, 0 sc1
                s_mov_b64 exec, -1
                L_h_nosig:""")
            if c == 3: self.stamp(11)
            if c == 6: self.stamp(12)
            self.barrier()
            for _ in range(2):
                if nxt < 21:
                    (raw_kv if seq[nxt] == "kv" else raw_q)(); nxt += 1
            a(f"""ds_read_b64_tr_b16 v[{FR}:{FR+1}], v20 offset:{c*8192}
            ds_read_b64_tr_b16 v[{FR+2}:{FR+3}], v20 offset:{c*8192+512}
            ds_read_b64_tr_b16 v[{FR+4}:{FR+5}], v21 offset:{c*8192}
            ds_read_b64_tr_b16 v[{FR+6}:{FR+7}], v21 offset:{c*8192+512}
            s_waitcnt lgkmcnt(0)""")
            self.mfma(ACC + 16, ONES, FR, ACC + 16 if c else None)
            self.mfma(ACC + 32, ONES, FR + 4, ACC + 32 if c else None)
        while nxt < 21:
            raw_q(); nxt += 1
        def cs_add(base, tiles):
            self.exec_lo()
            a(f"v_add_u32 v22, {base}, v{VCS}")
            for t in tiles:
                a(f"ds_add_f32 v22, v{ACC+16*t} offset:{128*t}")
            self.exec_all()
            a("s_waitcnt lgkmcnt(0)")
        cs_add(CSA, (1, 2))
        a("s_setprio 0")
        self.stamp(3)
        self.barrier()
        def dma_wq(typ, lo, hi, thr=False, two=False):
            if lo >= hi: return
            L = a.label("Lhq")
            a(f"""s_add_u32 s{sB_}, s{sH}, {16*typ}
            s_mul_i32 s{sB_}, s{sB_}, 86016
            s_add_u32 s{sB_}, s{sB_}, {hx(WPK)}
            s_and_b32 s{sA}, s{sHH}, {1 if two else 3}
            s_lshl_b32 s{sA}, s{sA}, 10
            s_add_u32 s{sA}, s{sA}, {lo}
            {L}:
            s_mov_b32 m0, s{sA}
            s_add_u32 s{sC_}, s{sA}, s{sB_}
            buffer_load_dwordx4 {v(vL16)}, {srd(S_WS)}, s{sC_} offen sc1 lds
            {"s_waitcnt vmcnt(%d)" % self.thr if thr else ""}
            s_add_u32 s{sA}, s{sA}, {2048 if two else 4096}
            s_cmp_lt_u32 s{sA}, {hi}
            s_cbranch_scc1 {L}""")
        def dma_wo(p, thr=False, two=False):
            L = a.label("Lho")
            a(f"""s_mov_b32 s{S_WO}, s{PTR+2*p}
            s_mov_b32 s{S_WO+1}, s{PTR+2*p+1}
            s_and_b32 s{sC_}, s{sHH}, {1 if two else 3}
            s_lshl_b32 s{sA}, s{sC_}, 10
            s_add_u32 s{sA}, s{sA}, {R2}
            s_mul_i32 s{sB_}, s{sC_}, {8*896}
            s_lshl_b32 s{sC_}, s{sCG}, 7
            s_add_u32 s{sB_}, s{sB_}, s{sC_}
            {L}:
            s_mov_b32 m0, s{sA}
            s_add_u32 s{sA}, s{sA}, {2048 if two else 4096}
            buffer_load_dwordx4 v{VWO}, {srd(S_WO)}, s{sB_} offen lds
            {"s_waitcnt vmcnt(%d)" % self.thr if thr else ""}
            s_add_u32 s{sB_}, s{sB_}, {(16 if two else 32)*896}
            s_cmp_lt_u32 s{sA}, {R2+57*1024}
            s_cbranch_scc1 {L}""")
        def wo3(lo, cnt):
            a(f"""s_add_u32 s{sD}, s{sHH}, {lo-1}
            s_lshl_b32 s{sC_}, s{sCG}, 7""")
            for i in range(cnt):
                a(f"""s_min_u32 s{sA}, s{sD}, 56
                s_mul_i32 s{sB_}, s{sA}, {8*896}
                s_add_u32 s{sB_}, s{sB_}, s{sC_}
                s_lshl_b32 s{sA}, s{sA}, 10
                s_add_u32 m0, s{sA}, {R2}
                s_add_u32 s{sD}, s{sD}, 3
                buffer_load_dwordx4 v{VWO}, {srd(S_WO)}, s{sB_} offen lds""")
        def wq3(typ, cnt):
            a(f"""s_add_u32 s{sB_}, s{sH}, {16*typ}
            s_mul_i32 s{sB_}, s{sB_}, 86016
            s_add_u32 s{sB_}, s{sB_}, {hx(WPK)}
            s_sub_u32 s{sA}, s{sHH}, 1
            s_lshl_b32 s{sA}, s{sA}, 10""")
            for i in range(cnt):
                a(f"""s_mov_b32 m0, s{sA}
                s_add_u32 s{sC_}, s{sA}, s{sB_}
                s_add_u32 s{sA}, s{sA}, 3072
                buffer_load_dwordx4 {v(vL16)}, {srd(S_WS)}, s{sC_} offen sc1 lds""")
        def colsum_B(part):
            if part == 0: a(f"""s_and_b32 s{sD}, s{sHH}, 1
            s_mul_i32 s{sC_}, s{sD}, 28672
            v_add_u32 v20, s{sC_}, {v(vTK)}
            v_add_u32 v21, s{sC_}, {v(vTV)}
            s_mul_i32 s{sC_}, s{sD}, 14336
            v_add_u32 v23, s{sC_}, {v(vTQ)}""")
            Lq = a.label("Lhq")
            if part == 0: a(f"""s_add_u32 s{sB_}, s{sH}, 16
            s_mul_i32 s{sB_}, s{sB_}, 86016
            s_add_u32 s{sB_}, s{sB_}, {hx(WPK)}
            s_add_u32 s{sA}, s{sC_}, {R1Q}
            s_add_u32 s{sD}, s{sA}, 14336
            {Lq}:
            s_mov_b32 m0, s{sA}
            s_add_u32 s{sC_}, s{sA}, s{sB_}
            buffer_load_dwordx4 {v(vL16)}, {srd(S_WS)}, s{sC_} offen sc1 lds
            s_add_u32 s{sA}, s{sA}, 1024
            s_cmp_lt_u32 s{sA}, s{sD}
            s_cbranch_scc1 {Lq}""")
            for tiles in (((1, 2), (0,))[part],):
                nt = len(tiles)
                if nt == 1: a("s_waitcnt vmcnt(0)")
                def rd(s_):
                    for k_, t in enumerate(tiles):
                        b, st, d = ((23, 1024, 256), (20, 2048, 512), (21, 2048, 512))[t]
                        r = FR + 4 * ((nt * s_ + k_) % 6)
                        a(f"ds_read_b64_tr_b16 v[{r}:{r+1}], v{b} offset:{s_*st}\nds_read_b64_tr_b16 v[{r+2}:{r+3}], v{b} offset:{s_*st+d}")
                rd(0); rd(1)
                for s_ in range(14):
                    if s_ + 2 < 14: rd(s_ + 2)
                    a(f"s_waitcnt lgkmcnt({2*nt*min(2, 13-s_)})")
                    for k_, t in enumerate(tiles):
                        self.mfma(ACC + 16 * t, ONES, FR + 4 * ((nt * s_ + k_) % 6), ACC + 16 * t if s_ else None)
            if part == 1: cs_add(CSA + 384, (0, 1, 2))
        def role(h0=None, h1=None, h23=None, h123=None):
            if h123:
                l1, done = a.label("Lr1"), a.label("Lrd")
                a(f"s_cmp_lg_u32 s{sHH}, 0\ns_cbranch_scc1 {l1}")
                if h0: h0(done)
                a(f"s_branch {done}\n{l1}:")
                h123(done)
                a(f"{done}:")
                return
            l1, l2, done = a.label("Lr1"), a.label("Lr2"), a.label("Lrd")
            a(f"s_cmp_ge_u32 s{sHH}, 2\ns_cbranch_scc1 {l2 if h23 else done}")
            a(f"s_cmp_eq_u32 s{sHH}, 1\ns_cbranch_scc1 {l1 if h1 else done}")
            if h0: h0(done)
            a(f"s_branch {done}")
            if h1:
                a(f"{l1}:"); h1(done); a(f"s_branch {done}")
            if h23:
                a(f"{l2}:"); h23(done)
            a(f"{done}:")
        def hint(L, k):
            def f(done):
                want = (0, 16, 14)[k]
                if k == 2: a(f"s_cmp_eq_u32 s{sISWO}, 0\ns_cbranch_scc1 {done}")
                if not self.opt.get("rh", 0):
                    self.ctr_add(sGR if k else sGH, L * LBLK + k * SEAM, VONE, fb=False)
                    return
                Lp, Dp = a.label("Lhp"), a.label("Lhd")
                a(f"""s_add_u32 s{sA}, s{sGR}, {hx(L*LBLK + k*SEAM)}
                s_mov_b64 exec, 1
                v_mov_b32 v22, 1
                buffer_atomic_add v22, off, {srd(S_WS)}, s{sA} sc0 sc1
                v_mov_b32 v20, {GO+12*L+4*k}
                s_waitcnt vmcnt(0)
                v_cmp_gt_u32 vcc, {want-1}, v22
                s_cbranch_vccz {Dp}""")
                if self.opt.get("rh", 0) == 2:
                    self.poll_ctr(f"s{sA}", want, 22)
                    a("s_mov_b64 exec, 1")
                else:
                    a(f"s_mov_b64 exec, -1\ns_branch {done}")
                a(f"""{Dp}:
                ds_write_b32 v20, v{VONE}
                s_mov_b64 exec, -1
                s_waitcnt lgkmcnt(0)""")
            return f
        def poll(L, k):
            def f(done):
                skip = a.label("Lps")
                if k == 1: a(f"s_cmp_eq_u32 s{sISWO}, 0\ns_cbranch_scc1 {skip}")
                a(f"s_add_u32 s{sA}, s{(sGH, sGT, sGR)[k]}, {hx(L*LBLK + k*SEAM)}")
                self.stamp(9 + 2 * k, L)
                bm = (k == 0 and (L & 1))
                if bm:
                    Lp, Dp = a.label("Lpw"), a.label("Lpd")
                    a(f"""v_lshrrev_b32 v21, 4, {v(vLANE)}
                    v_lshlrev_b32 v21, 7, v21
                    v_and_b32 v20, 15, {v(vLANE)}
                    v_lshl_add_u32 v21, v20, 2, v21
                    s_mov_b32 s{sSPIN}, 200000
                    {Lp}:
                    v_mov_b32 v23, 0
                    buffer_atomic_add v23, v21, {srd(S_WS)}, s{sA} offen sc0 sc1
                    s_waitcnt vmcnt(0)
                    v_cmp_eq_u32 vcc, 0, v23
                    s_cbranch_vccz {Dp}
                    s_sub_u32 s{sSPIN}, s{sSPIN}, 1
                    s_cmp_eq_u32 s{sSPIN}, 0
                    s_cbranch_scc0 {Lp}
                    s_endpgm
                    {Dp}:""")
                    for sh in (1, 2, 4, 8):
                        a(f"v_max_u32_dpp v23, v23, v23 row_ror:{sh} row_mask:0xf bank_mask:0xf")
                    a(f"""v_readlane_b32 s{sA}, v23, 16
                    v_readlane_b32 s{sB_}, v23, 32
                    v_readlane_b32 s{sC_}, v23, 48
                    s_max_u32 s{sA}, s{sA}, s{sB_}
                    s_max_u32 s{sA}, s{sA}, s{sC_}
                    v_max_u32 v23, s{sA}, v23""")
                else:
                    self.poll_ctr(f"s{sA}", (16 if self.ek else 32, 16, 14)[k], 22)
                self.stamp(10 + 2 * k, L)
                if self.prof and L:
                    a(f"""s_sub_u32 s{sST0}, 200001, s{sSPIN}
                    s_mov_b32 m0, {16*L+1+k}
                    s_nop 0
                    v_writelane_b32 v0, s{sST0}, m0""")
                if k or bm:
                    a(f"""v_mov_b32 v20, {GO+12*L+4*k}
                    s_mov_b64 exec, 1
                    ds_write_b32 v20, v{23 if bm else 22}
                    s_mov_b64 exec, -1
                    s_waitcnt lgkmcnt(0)""")
                a(f"{skip}:")
            return f
        seqf = lambda *fs: (lambda done: [f(done) for f in fs])
        W = lambda f: (lambda done: f())
        N1 = self.opt.get("n1", 48) * 1024
        pf = lambda L, parts="ox", thr=True: self.prefill(L, NANR, parts=parts, thr=thr)

        a(f"""s_lshr_b32 s{sA}, s{sHH}, 1
        s_cmp_eq_u32 s{sA}, 0
        s_cselect_b32 s{S_WQ}, s{PTR+2}, s{PTR+8}
        s_cselect_b32 s{S_WQ+1}, s{PTR+3}, s{PTR+9}
        s_lshl_b32 s{sA}, s{sA}, 4
        s_add_u32 s{sA}, s{sA}, s{sH}
        s_mul_i32 s{sF}, s{sA}, 86016
        s_add_u32 s{sF}, s{sF}, {hx(WPK)}
        s_mul_i32 s{sB_}, s{sRB}, {28*2688}
        s_add_u32 s{sB_}, s{sB_}, s{sE}
        s_bitcmp1_b32 s{sHH}, 0
        s_cbranch_scc1 L_h_packq
        s_add_u32 s{sB_}, s{sB_}, 896
        s_mul_i32 s{sC_}, s{sRB}, {28*128}
        s_add_u32 s{sF}, s{sF}, s{sC_}""")
        for i in range(4):
            a(f"buffer_load_dwordx4 v[{112+4*i}:{115+4*i}], v{VKV}, {srd(S_WQ)}, s{sB_} offen\ns_add_u32 s{sB_}, s{sB_}, {8*2688}")
        a(f"""s_waitcnt vmcnt(4)
        s_branch L_h_packed
        L_h_packq:
        s_mul_i32 s{sC_}, s{sRB}, {28*64}
        s_add_u32 s{sF}, s{sF}, s{sC_}
        s_add_u32 s{sF}, s{sF}, {R1Q}
        buffer_load_dwordx4 v[112:115], v{VQ}, {srd(S_WQ)}, s{sB_} offen
        s_add_u32 s{sB_}, s{sB_}, {16*2688}
        buffer_load_dwordx4 v[116:119], v{VQ}, {srd(S_WQ)}, s{sB_} offen
        s_waitcnt vmcnt(2)
        L_h_packed:
        s_lshl_b32 s{sC_}, s{sHH}, 10
        v_add_u32 v20, s{sC_}, {v(vTQ)}""")
        for i in range(7):
            a(f"ds_read_b64_tr_b16 v[{FR+4*i}:{FR+4*i+1}], v20 offset:{i*4096}\nds_read_b64_tr_b16 v[{FR+4*i+2}:{FR+4*i+3}], v20 offset:{i*4096+256}")
        for i in range(7):
            a(f"s_waitcnt lgkmcnt({12-2*i})")
            self.mfma(ACC, ONES, FR + 4 * i, ACC if i else None)
        role(h0=W(lambda: self.poll_ctr("0", NZERO, 22, srd_b=S_DBG, ld=True)),
             h123=W(lambda: wo3(0, 7)))
        cs_add(CSA, (0,))
        self.stamp(4)

        self.barrier()
        def pack_store(nyoung):
            zo, zd, sq, sd = a.label("Lzo"), a.label("Lzd"), a.label("Lsq"), a.label("Lsd")
            a(f"""s_and_b32 s{sC_}, s{sH}, 1
            s_mul_i32 s{sC_}, s{sC_}, 3
            s_xor_b32 s{sC_}, s{sC_}, 3
            v_and_b32 v22, 3, {v(vLANE)}
            v_cmp_ne_u32 vcc, s{sC_}, v22
            s_waitcnt vmcnt({nyoung})
            s_bitcmp1_b32 s{sH}, 0
            s_cbranch_scc1 {zo}""")
            for i in range(4):
                a(f"v_cndmask_b32 v{114+4*i}, 0, v{114+4*i}, vcc\nv_cndmask_b32 v{115+4*i}, 0, v{115+4*i}, vcc")
            a(f"s_branch {zd}\n{zo}:")
            for i in range(4):
                a(f"v_cndmask_b32 v{112+4*i}, 0, v{112+4*i}, vcc\nv_cndmask_b32 v{113+4*i}, 0, v{113+4*i}, vcc")
            a(f"""{zd}:
            buffer_store_dwordx4 v[112:115], {v(vL16)}, {srd(S_WS)}, s{sF} offen sc1
            s_bitcmp1_b32 s{sHH}, 0
            s_cbranch_scc1 {sq}
            buffer_store_dwordx4 v[116:119], {v(vL16)}, {srd(S_WS)}, s{sF} offen offset:1024 sc1
            buffer_store_dwordx4 v[120:123], {v(vL16)}, {srd(S_WS)}, s{sF} offen offset:2048 sc1
            s_mov_b32 exec_hi, 0
            buffer_store_dwordx4 v[124:127], {v(vL16)}, {srd(S_WS)}, s{sF} offen offset:3072 sc1
            s_branch {sd}
            {sq}:
            s_mov_b32 exec_hi, 0xffff
            buffer_store_dwordx4 v[116:119], {v(vL16)}, {srd(S_WS)}, s{sF} offen offset:1024 sc1
            {sd}:
            s_mov_b64 exec, -1""")
        def l0_a(done):
            if self.ek:
                sk = a.label("Lsk")
                a(f"s_cmp_lg_u32 s{sHH}, 1\ns_cbranch_scc1 {sk}")
                hint(0, 0)(done)
                a(f"{sk}:")
            pack_store(7)
            wo3(21, 7)
            a(f"s_cmp_eq_u32 s{sHH}, 1\ns_cbranch_scc1 {done}\ns_waitcnt vmcnt(7)")
            self.ctr_add(sGH, 11 * SEAM, VONE, fb=False)
        role(h0=poll(0, 0), h123=l0_a)
        self.stamp(5)
        self.barrier()
        def l0_b0(done):
            a(f"s_add_u32 s{sD}, s{sGH}, {hx(11*SEAM)}")
            self.poll_ctr(f"s{sD}", 32, 22)
            pack_store(0)
        role(h0=l0_b0, h123=W(lambda: wo3(42, 5)))
        self.barrier()
        if self.eo == 2: role(h0=hint(0, 1))
        role(h123=W(lambda: (wq3(1, 7), a("s_waitcnt vmcnt(7)"))))
        self.barrier()
        role(h0=poll(0, 1), h1=(None if self.eo == 2 else hint(0, 1)), h23=W(lambda: dma_wq(1, 21504, R1Q, two=True)))
        if self.opt.get("bgo", 1): self.barrier()
        self.stamp(7)
        pf(0, "x", False)
        pf(1, "o", False)
        a(f"s_waitcnt vmcnt({2 if self.kd else 6})")
        self.stamp(8)
        self.barrier()
        if self.ex == 3: role(h1=hint(0, 2))
        self.barrier()
        if self.opt.get("bgo", 1):
            role(h0=poll(0, 2), h1=(None if self.ex == 3 else hint(0, 2)), h23=W(lambda: colsum_B(0)))
            self.barrier()
            role(h23=W(lambda: colsum_B(1)))
        else:
            role(h0=poll(0, 2), h1=(None if self.ex == 3 else hint(0, 2)), h23=W(lambda: (colsum_B(0), colsum_B(1))))
        a("s_waitcnt vmcnt(0)")
        self.barrier()
        role(h0=poll(1, 0))
        self.barrier()
        dma_wo(5, True)
        dma_wq(0, 0, OX, True)
        pf(1, "x"); pf(2); pf(3)
        a("s_waitcnt vmcnt(0)")
        self.barrier()
        if self.eo == 2: role(h0=hint(1, 1))
        self.barrier()
        role(h0=poll(1, 1), h1=(None if self.eo == 2 else hint(1, 1)), h23=W(lambda: dma_wq(0, OX, 86016, two=True)))
        if self.opt.get("bgo", 1): self.barrier()
        a("s_waitcnt vmcnt(0)")
        self.barrier()
        if self.ex == 3: role(h1=hint(1, 2))
        self.barrier()
        role(h0=poll(1, 2), h1=(None if self.ex == 3 else hint(1, 2)), h23=W(lambda: dma_wo(2, two=True)))
        if self.opt.get("bgo", 1): self.barrier()
        self.barrier()
        role(h0=poll(2, 0), h1=(hint(2, 0) if self.ek else None), h23=W(lambda: dma_wq(1, 0, N1, two=True)))
        self.barrier()
        a("s_waitcnt vmcnt(0)")
        self.barrier()
        if self.eo == 2: role(h0=hint(2, 1))
        self.barrier()
        role(h0=poll(2, 1), h1=(None if self.eo == 2 else hint(2, 1)), h23=W(lambda: dma_wq(1, N1, 86016, two=True)))
        if self.opt.get("bgo", 1): self.barrier()
        a("s_waitcnt vmcnt(0)")
        self.barrier()
        if self.ex == 3: role(h1=hint(2, 2))
        self.barrier()
        role(h0=poll(2, 2), h1=(None if self.ex == 3 else hint(2, 2)))
        if self.opt.get("bgo", 1): self.barrier()
        role(h0=poll(3, 0))
        self.barrier()
        dma_wo(5, True)
        a("s_waitcnt vmcnt(0)")
        self.barrier()
        if self.eo == 2: role(h0=hint(3, 1))
        self.barrier()
        role(h0=poll(3, 1), h1=(None if self.eo == 2 else hint(3, 1)))
        if self.opt.get("bgo", 1): self.barrier()
        a("s_branch L_fin")

    def build(self):
        a = self.a
        self.tail = []
        self.prologue()
        self.helper()
        self.layer_A()
        self.layer_B()
        self.wo_phase()
        self.slow_path()
        self.emit_tail()
        a("L_fin:")
        self.stamp(15)
        self.stamp_flush()
        a("L_end:\ns_endpgm\nL_code_end:")
        body = a.resolve()
        hdr = open("interleave_layers__linear_attn_block__softmax_full_mha__prompt.s.ref").read().split("; Override")[0]
        return hdr + f"""; @launch grid=(256,1,1) block=(512,1,1) lds={LDS_TOTAL}
.amdgcn_target "amdgcn-amd-amdhsa--gfx950"
.text
.globl {NAME}
.p2align 8
.type {NAME},@function
{NAME}:
{body}
.section .rodata,"a"
.p2align 6
.amdhsa_kernel {NAME}
  .amdhsa_next_free_vgpr 256
  .amdhsa_next_free_sgpr 102
  .amdhsa_accum_offset 256
  .amdhsa_group_segment_fixed_size 0
  .amdhsa_kernarg_size 72
  .amdhsa_user_sgpr_count 2
  .amdhsa_user_sgpr_kernarg_segment_ptr 1
  .amdhsa_system_sgpr_workgroup_id_x 1
.end_amdhsa_kernel
"""

if __name__ == "__main__":
    import argparse
    ap = argparse.ArgumentParser()
    ap.add_argument("-o", default="k.s")
    ap.add_argument("--prof", default=None)
    ap.add_argument("--opt", default="")
    args = ap.parse_args()
    opt = {kv.split("=")[0]: int(kv.split("=")[1]) for kv in args.opt.split(",") if kv}
    g = Gen(prof=args.prof, opt=opt)
    s = g.build()
    open(args.o, "w").write(s)
    print("wrote", args.o, "lines", s.count("\n"), "nops inserted", g.a.nops)
```

```python
import sys, struct, math
sys.path.insert(0, "dev")
from asmb import Asm

NAME = "interleave_layers__linear_attn_block__softmax_full_mha__prompt_kernel"

def f2u(x): return struct.unpack("<I", struct.pack("<f", x))[0]
def hx(x): return "0x%08x" % (x & 0xffffffff)

R1 = 0
R1Q = 57344
OX = 86016 - 49152
R2 = 86016
SCR = 144384
CSA = SCR + 16384
CSAQ = CSA + 512
CSB = CSA + 1024
STW = CSA + 1792
GO = STW + 1024
LDS_TOTAL = 163840
LN = 128
CST = 4 * LN
SEAM = 32 * CST
DRN = 16 * CST
LBLK = 3 * SEAM
NZERO = 24
WPK = 0x400000
OFF_X, OFF_O, OFF_KV, OFF_ST = 0x000000, 0x200000, 0x400000, 0x800000
PROF_OFF = 0x8000000

sGH, sGR, sGT, sPF, sIM = 3, 4, 5, 6, 7
S_X, S_WQ, S_WO, S_OUT, S_DBG, S_WS, S_XOUT, S_CODE = 8, 12, 16, 20, 24, 28, 32, 36
sWAVE, sRB, sH, sTP, sCG, sISWO, sL, sLB = 40, 41, 42, 43, 44, 45, 46, 47
sT, sTW, sC, sFB, sSPIN = 48, 49, 50, 51, 52
sA, sB_, sC_, sD, sF, sE = 53, 54, 55, 56, 57, 58
sMPAD = 60
sK0 = 62
PTR = 64
sSO0, sSO1, sR7 = 82, 83, 84
sG, sHH, sWL = 85, 86, 87
sPC = 88
sST0 = 90
sPI, sLOOP, sOFF, sOFFMAX, sRETRY = 92, 93, 94, 95, 96
sROT, sXC, sLIM, sLIM2 = 97, 98, 99, 100
def srd(b): return f"s[{b}:{b+3}]"

vTID, vLANE, vL16, vTK, vTV, vWK, vWS_, vRM = 0, 1, 2, 3, 4, 5, 6, 7
vTQ, vPADV, vA, vNM, vCS0, vCS1, vT0, vT1 = 8, 9, 10, 11, 12, 13, 14, 15
vXO = vCS0
XRES = 16
XF = 32
ACK, ACV, ACQ = 144, 160, 176
WF = 192
SA, SB = 208, 224
CS16 = 240
def v(b, n=1): return f"v{b}" if n == 1 else f"v[{b}:{b+n-1}]"

LOG2E = 1.4426950408889634
QSCALE = LOG2E / math.sqrt(28.0)
SHIFT_UP = 40.0
L_MIN = 2.0 ** -60


class Cnt:
    def __init__(self, name, mx): self.name, self.q, self.mx = name, [], mx
    def issue(self, tag): self.q.append(tag)
    def n_after(self, tag):
        idx = max(i for i, t in enumerate(self.q) if t == tag)
        n = len(self.q) - 1 - idx
        self.q = self.q[idx + 1:]
        assert n <= self.mx, (self.name, n)
        return n
    def has(self, tag): return tag in self.q
    def clear(self): self.q = []


class Gen:
    def __init__(self, prof=None, opt={}):
        self.a = Asm(); self.prof = prof; self.opt = opt
        self.vm = Cnt("vmcnt", 63); self.lg = Cnt("lgkmcnt", 15)
        self.D = opt.get("D", 12)
        self.thr = opt.get("thr", 2)
        self.kd = opt.get("kd", 0)
        self.groups = ([(0,2),(2,4),(4,7)], [(0,1),(1,3),(3,5),(5,7)], [(0,3),(3,7)], [(0,2),(2,4),(4,6),(6,7)], [(0,4),(4,6),(6,7)])[opt.get("grp", 0)]
        self.eo, self.ex, self.ek = opt.get("eo", 1), opt.get("ex", 2), opt.get("ek", 1)

    def mfma(self, d, A, B, C):
        c = "0" if C is None else v(C, 16)
        self.a(f"v_mfma_f32_32x32x16_bf16 {v(d,16)}, {v(A,4)}, {v(B,4)}, {c}")
    def wait(self, vm=None, lg=None):
        parts = []
        if vm is not None and self.vm.has(vm): parts.append(f"vmcnt({self.vm.n_after(vm)})")
        if lg is not None and self.lg.has(lg): parts.append(f"lgkmcnt({self.lg.n_after(lg)})")
        if parts: self.a("s_waitcnt " + " ".join(parts))
    def wait_all(self, vm=True, lg=True):
        p = []
        if vm: p.append("vmcnt(0)"); self.vm.clear()
        if lg: p.append("lgkmcnt(0)"); self.lg.clear()
        self.a("s_waitcnt " + " ".join(p))
    def exec_all(self): self.a("s_mov_b64 exec, -1")
    def exec_hi(self): self.a("s_mov_b32 exec_lo, 0\ns_mov_b32 exec_hi, -1")
    def exec_lo(self): self.a("s_mov_b32 exec_lo, -1\ns_mov_b32 exec_hi, 0")
    def barrier(self): self.a("s_barrier")
    def stamp(self, idx, L=None):
        if not self.prof: return
        op = "s_memrealtime" if self.prof == "rt" else "s_memtime"
        self.a(f"{op} s[{sST0}:{sST0+1}]")
        if L is None:
            self.a(f"s_lshl_b32 s{sPI}, s{sL}, 4\ns_add_u32 s{sPI}, s{sPI}, {idx}\ns_mov_b32 m0, s{sPI}")
        else:
            self.a(f"s_mov_b32 m0, {16*L+idx}")
        self.a(f"s_waitcnt lgkmcnt(0)\nv_writelane_b32 v0, s{sST0}, m0")
    def stamp_flush(self):
        if not self.prof: return
        self.a(f"""s_lshl_b32 s{sPI}, s2, 3
        s_add_u32 s{sPI}, s{sPI}, s{sWAVE}
        s_lshl_b32 s{sPI}, s{sPI}, 8
        s_add_u32 s{sPI}, s{sPI}, {hx(PROF_OFF)}
        s_mov_b64 exec, -1
        v_lshlrev_b32 {v(vT0)}, 2, {v(vLANE)}
        buffer_store_dword v0, {v(vT0)}, {srd(S_WS)}, s{sPI} offen""")

    def poll_ctr(self, soff, want, vdst, srd_b=S_WS, ld=False, four=None):
        a = self.a
        L, D = a.label("Lpc"), a.label("Lpd")
        if four is not None: a(f"v_lshlrev_b32 {v(four)}, 7, {v(vLANE)}")
        ad = ("off", "") if four is None else (v(four), "offen")
        a(f"""s_mov_b32 s{sSPIN}, 200000
        s_mov_b64 exec, {1 if four is None else 15}
        {L}:
        v_mov_b32 {v(vdst)}, 0""")
        if ld:
            a(f"buffer_load_dword {v(vdst)}, {ad[0]}, {srd(srd_b)}, {soff} {ad[1]} sc1")
        else:
            a(f"buffer_atomic_add {v(vdst)}, {ad[0]}, {srd(srd_b)}, {soff} {ad[1]} sc0 sc1")
        a(f"""s_waitcnt vmcnt(0)
        v_cmp_gt_u32 vcc, {want}, {v(vdst)}
        s_cbranch_vccz {D}
        s_sub_u32 s{sSPIN}, s{sSPIN}, 1
        s_cmp_eq_u32 s{sSPIN}, 0
        s_cbranch_scc0 {L}
        s_endpgm
        {D}:
        s_mov_b64 exec, -1""")
    def ctr_add(self, sgrp, extra, vone, fb=True):
        a = self.a
        if fb:
            a(f"s_add_u32 s{sA}, s{sFB}, s{sgrp}")
            if extra: a(f"s_add_u32 s{sA}, s{sA}, {hx(extra)}")
        else:
            a(f"s_add_u32 s{sA}, s{sgrp}, {hx(extra)}")
        a(f"""s_mov_b64 exec, 1
        buffer_atomic_add {v(vone)}, off, {srd(S_WS)}, s{sA} sc1
        s_mov_b64 exec, -1""")
        self.vm.issue("flag")
    def drained(self, sgrp, k):
        self.a(f"s_waitcnt vmcnt(0)\nv_mov_b32 {v(vT0)}, 1")
        self.vm.clear()
        self.a(f"s_add_u32 s{sB_}, s{sgrp}, s{sWL}")
        self.ctr_add(sB_, k * SEAM + DRN, vT0)
    def drained_late(self, sgrp, extra, need_wo=False):
        a = self.a
        lab = a.label("Ldl")
        a(f"s_cmp_lg_u32 s{sRETRY}, 0\ns_cbranch_scc1 {lab}")
        if need_wo: a(f"s_cmp_eq_u32 s{sISWO}, 0\ns_cbranch_scc1 {lab}")
        a(f"v_mov_b32 {v(vT0)}, 1\ns_add_u32 s{sB_}, s{sgrp}, s{sWL}")
        self.ctr_add(sB_, extra, vT0)
        a(f"{lab}:")
    def wait_go(self, k, dst=vT0, L=None):
        a = self.a
        if self.opt.get("bgo", 1):
            self.barrier()
            return
        Lb, D = a.label("Lgo"), a.label("Lgd")
        if L is None:
            a(f"s_mul_i32 s{sA}, s{sL}, 12\ns_add_u32 s{sA}, s{sA}, {GO+4*k}\nv_mov_b32 {v(vT1)}, s{sA}")
        else:
            a(f"v_mov_b32 {v(vT1)}, {GO+12*L+4*k}")
        a(f"""s_mov_b32 s{sSPIN}, 2000000
        {Lb}:
        ds_read_b32 {v(dst)}, {v(vT1)}
        s_waitcnt lgkmcnt(0)
        v_cmp_eq_u32 vcc, 0, {v(dst)}
        s_cbranch_vccz {D}
        s_sub_u32 s{sSPIN}, s{sSPIN}, 1
        s_cmp_eq_u32 s{sSPIN}, 0
        s_cbranch_scc0 {Lb}
        s_endpgm
        {D}:""")
        self.lg.clear()
    def nan_check(self, reg, redo, want):
        a = self.a
        bad, ok = a.label("Lbad"), a.label("Lok")
        a(f"""v_cmp_u_f32 vcc, {v(reg)}, {v(reg)}
        s_cbranch_vccnz {bad}
        {ok}:""")
        self.tail.append((bad, ok, redo, want))
    def emit_tail(self):
        a = self.a
        for n_, (bad, ok, redo, want) in enumerate(self.tail):
            a(f"""{bad}:
            s_cmp_lg_u32 s{sRETRY}, 0
            s_cbranch_scc1 {ok}
            s_mov_b32 s{sRETRY}, 1""")
            if self.opt.get("rdiag", 0):
                a(f"""s_lshl_b32 s{sA}, s{sL}, 4
                s_add_u32 s{sA}, s{sA}, {64+4*n_}
                v_mov_b32 {v(vT0)}, 1
                s_mov_b64 exec, 1
                buffer_atomic_add {v(vT0)}, off, {srd(S_DBG)}, s{sA} sc1
                s_mov_b64 exec, -1""")
            self.poll_ctr(f"s{sPF}", want, vT0, four=vT1)
            a(f"buffer_inv sc1\ns_waitcnt vmcnt(0)\ns_branch {redo}")

    def prologue(self):
        a = self.a
        a(f"""s_cmp_ge_u32 s2, 256
        s_cbranch_scc1 L_end
        s_load_dwordx16 s[{PTR}:{PTR+15}], s[0:1], 0
        s_load_dwordx2 s[{PTR+16}:{PTR+17}], s[0:1], 64
        s_getpc_b64 s[{sPC}:{sPC+1}]
        L_pcref:
        s_sub_u32 s{S_CODE}, s{sPC}, L_pcref-{NAME}
        s_subb_u32 s{S_CODE+1}, s{sPC+1}, 0
        s_mov_b32 s{S_CODE+2}, L_code_end-{NAME}
        s_mov_b32 s{S_CODE+3}, 0x20000
        s_lshr_b32 s{sC_}, s2, 3
        s_mul_i32 s{sD}, s{sC_}, 52
        s_lshr_b32 s{sD}, s{sD}, 8
        s_mul_i32 s{sD}, s{sD}, 5
        s_sub_u32 s{sC_}, s{sC_}, s{sD}
        s_lshl_b32 s{sC_}, s{sC_}, 13
        v_lshlrev_b32 {v(vT1)}, 4, v0
        buffer_load_dwordx4 v[252:255], {v(vT1)}, {srd(S_CODE)}, s{sC_} offen
        v_lshrrev_b32 {v(vT0)}, 6, v0
        v_and_b32 {v(vLANE)}, 63, v0
        v_readfirstlane_b32 s{sWAVE}, {v(vT0)}
        v_lshlrev_b32 {v(vL16)}, 4, {v(vLANE)}
        {"s_lshr_b32 s%d, s2, 5" % sA if self.opt.get("badmap", 0) else "s_and_b32 s%d, s2, 7" % sA}
        {"s_and_b32 s%d, s2, 31" % sB_ if self.opt.get("badmap", 0) else "s_lshr_b32 s%d, s2, 3" % sB_}
        s_lshr_b32 s{sRB}, s{sA}, 1
        s_lshl_b32 s{sRB}, s{sRB}, 2
        s_and_b32 s{sC_}, s{sB_}, 3
        s_add_u32 s{sRB}, s{sRB}, s{sC_}
        s_and_b32 s{sH}, s{sA}, 1
        s_lshl_b32 s{sH}, s{sH}, 3
        s_lshr_b32 s{sC_}, s{sB_}, 2
        s_add_u32 s{sH}, s{sH}, s{sC_}
        s_mov_b32 s{sCG}, s{sC_}
        s_cmp_lt_u32 s{sC_}, 7
        s_cselect_b32 s{sISWO}, 1, 0
        s_cselect_b32 s{sCG}, s{sCG}, 0
        s_and_b32 s{sTP}, s{sA}, 1
        s_lshl_b32 s{sD}, s{sRB}, 1
        s_add_u32 s{sTP}, s{sTP}, s{sD}
        s_mul_i32 s{sC_}, s{sB_}, 37
        s_lshr_b32 s{sC_}, s{sC_}, 8
        s_mul_i32 s{sD}, s{sC_}, 7
        s_sub_u32 s{sR7}, s{sB_}, s{sD}
        s_mov_b32 s{sL}, 0
        s_mov_b32 s{sLB}, 0x1000000
        s_mov_b32 s{sFB}, 0
        s_lshl_b32 s{sIM}, s{sH}, 4
        s_add_u32 s{sIM}, s{sIM}, s{sRB}
        s_mul_i32 s{sGH}, s{sH}, {CST}
        s_mul_i32 s{sGR}, s{sRB}, {CST}
        s_lshr_b32 s{sGT}, s{sTP}, 1
        s_mul_i32 s{sGT}, s{sGT}, {CST}
        s_mov_b32 s{sMPAD}, 0xf0000000
        s_mov_b32 s{sMPAD+1}, 0xf0000000
        """)
        a(f"""v_lshrrev_b32 v16, 5, {v(vLANE)}
        v_bfe_u32 v17, {v(vLANE)}, 4, 1
        v_bfe_u32 v18, {v(vLANE)}, 2, 2
        v_and_b32 v19, 3, {v(vLANE)}
        v_lshlrev_b32 v20, 5, v17
        v_lshl_add_u32 v20, v19, 3, v20
        v_lshl_add_u32 v21, v16, 3, v18
        s_and_b32 s{sD}, s{sH}, 1
        s_lshl_b32 s{sD}, s{sD}, 3
        v_add_u32 v24, s{sD}, v20
        v_and_b32 v24, 63, v24
        v_lshl_add_u32 {v(vTQ)}, v21, 6, v24
        v_add_u32 {v(vTQ)}, {R1Q}, {v(vTQ)}
        v_lshl_add_u32 v24, v21, 7, v24
        v_lshrrev_b32 v22, 1, v18
        v_lshl_add_u32 {v(vTK)}, v22, 6, v24
        v_xor_b32 v22, 1, v22
        v_lshl_add_u32 {v(vTV)}, v22, 6, v24
        v_lshl_add_u32 v21, v16, 2, v18
        v_lshlrev_b32 v21, 7, v21
        v_add_u32 v21, v21, v20
        v_add_u32 v21, {R2}, v21
        v_lshrrev_b32 v22, 1, v18
        v_and_b32 v23, 31, {v(vLANE)}
        v_mul_u32_u24 {v(vRM)}, 896, v23
        v_lshl_add_u32 {v(vRM)}, v16, 4, {v(vRM)}
        v_cmp_eq_u32 vcc, 28, v23
        v_mov_b32 v24, 0x3f803f80
        v_cndmask_b32 {v(vPADV)}, 0, v24, vcc
        s_lshr_b32 s{sA}, s{sWAVE}, 1
        s_and_b32 s{sA}, s{sA}, 1
        v_xor_b32 v22, s{sA}, v22
        v_lshl_add_u32 {v(vWK)}, v22, 6, v21
        v_xor_b32 v22, 1, v22
        v_lshl_add_u32 {v(vWS_)}, v22, 6, v21
        s_mul_i32 s{sB_}, s{sA}, {8*28*128}
        v_add_u32 {v(vWK)}, s{sB_}, {v(vWK)}
        v_add_u32 {v(vWS_)}, s{sB_}, {v(vWS_)}
        s_lshl_b32 s{sC}, s{sCG}, 1
        s_add_u32 s{sC}, s{sC}, s{sA}
        s_and_b32 s{sA}, s{sWAVE}, 1
        s_lshl_b32 s{sTW}, s{sTP}, 1
        s_add_u32 s{sTW}, s{sTW}, s{sA}
        s_and_b32 s{sA}, s{sWAVE}, 3
        s_lshl_b32 s{sWL}, s{sA}, 7
        s_lshl_b32 s{sT}, s{sRB}, 2
        s_add_u32 s{sT}, s{sT}, s{sA}
        s_waitcnt lgkmcnt(0)
        """)
        def mk(b, p, size):
            a(f"""s_mov_b32 s{b}, s{PTR+2*p}
            s_mov_b32 s{b+1}, s{PTR+2*p+1}
            s_mov_b32 s{b+2}, {size}
            s_mov_b32 s{b+3}, 0x20000""")
        mk(S_X, 0, 1835008); mk(S_WQ, 1, 1204224); mk(S_WO, 2, 401408)
        mk(S_OUT, 6, 1835008); mk(S_DBG, 7, 256); mk(S_WS, 8, 0x10000000); mk(S_XOUT, 8, 0x10000000)
        pfm = self.opt.get("pfm", 0)
        if pfm:
            a(f"""s_lshl_b32 s{sA}, s2, 3
            s_add_u32 s{sA}, s{sA}, s{sWAVE}
            s_lshl_b32 s{sA}, s{sA}, 10
            buffer_load_dwordx4 v[248:251], {v(vL16)}, {srd(S_WQ)}, s{sA} offen""")
            if pfm >= 2: a(f"buffer_load_dwordx4 v[244:247], {v(vL16)}, {srd(S_X)}, s{sA} offen")
        if self.prof: a("v_mov_b32 v0, 0")
        self.stamp(0)
        a(f"""s_cmp_lt_u32 s{sWAVE}, 4
        s_cbranch_scc1 L_layerA""")

    def stats_finish(self, vS, vQ):
        a = self.a
        a(f"""v_mov_b32 {v(vT0)}, {v(vS)}
        v_mov_b32 {v(vT1)}, {v(vQ)}
        v_permlane32_swap_b32 {v(vT0)}, {v(vS)}
        v_permlane32_swap_b32 {v(vT1)}, {v(vQ)}
        v_add_f32 {v(vS)}, {v(vS)}, {v(vT0)}
        v_add_f32 {v(vQ)}, {v(vQ)}, {v(vT1)}
        v_mul_f32 {v(vNM)}, {hx(f2u(-1.0/448))}, {v(vS)}
        v_mul_f32 {v(vQ)}, {hx(f2u(1.0/448))}, {v(vQ)}
        v_fma_f32 {v(vQ)}, -{v(vNM)}, {v(vNM)}, {v(vQ)}
        v_and_b32 {v(vQ)}, 0x7fffffff, {v(vQ)}
        v_add_f32 {v(vQ)}, {hx(f2u(1e-5))}, {v(vQ)}
        v_rsq_f32 {v(vA)}, {v(vQ)}
        s_lshl_b32 s{sA}, s{sWAVE}, 8
        s_add_u32 s{sA}, s{sA}, {STW}
        v_and_b32 {v(vT0)}, 31, {v(vLANE)}
        v_lshl_add_u32 {v(vT0)}, {v(vT0)}, 2, s{sA}
        v_lshrrev_b32 {v(vT1)}, 5, {v(vLANE)}
        v_lshl_add_u32 {v(vT1)}, {v(vT1)}, 4, s{sA}
        ds_write_b32 {v(vT0)}, {v(vA)}
        ds_write_b32 {v(vT0)}, {v(vNM)} offset:128""")
        self.lg.issue("stw"); self.lg.issue("stw")
    def stats_read(self, which):
        for q in range(4):
            self.a(f"ds_read_b128 {v((SA,SB)[which]+4*q,4)}, {v(vT1)} offset:{128*which+32*q}"); self.lg.issue("st")

    def tr_pair(self, dst, s, seg, tag):
        base, off, d = ((vTQ, s * 1024, 256), (vTK, s * 2048, 512), (vTV, s * 2048, 512))[seg]
        self.a(f"ds_read_b64_tr_b16 {v(dst,2)}, {v(base)} offset:{off}"); self.lg.issue(tag)
        self.a(f"ds_read_b64_tr_b16 {v(dst+2,2)}, {v(base)} offset:{off+d}"); self.lg.issue(tag)

    def xload(self, s):
        a = self.a
        if s and s % 4 == 0: a(f"s_add_u32 s{sOFF}, s{sOFF}, 4096")
        a(f"buffer_load_dwordx4 {v(XF+4*s,4)}, {v(vL16)}, {srd(S_WS)}, s{sOFF} offen offset:{(s%4)*1024} sc1")
        self.vm.issue(("x", s))

    def kv_loop(self, typ, inserts={}):
        D = self.D
        for s in range(28):
            p = s & 1
            if s + 1 < 28:
                self.tr_pair(WF + 8 * (1 - p), s + 1, 1, ("w", s + 1)); self.tr_pair(WF + 8 * (1 - p) + 4, s + 1, 2, ("w", s + 1))
            self.wait(vm=("x", s), lg=("w", s))
            wk, wv, x = WF + 8 * p, WF + 8 * p + 4, XF + 4 * s
            if typ == "A": self.mfma(ACK, x, wk, ACK if s else None)
            else: self.mfma(ACK, wk, x, ACK if s else None)
            self.mfma(ACV, x, wv, ACV if s else None)
            if s + D < 28: self.xload(s + D)
            if s in inserts: inserts[s]()

    def q_loop(self, inserts={}):
        for s in range(3): self.tr_pair(WF + 4 * s, s, 0, ("w", s))
        for s in range(28):
            if s + 3 < 28: self.tr_pair(WF + 4 * ((s + 3) & 3), s + 3, 0, ("w", s + 3))
            self.wait(lg=("w", s))
            self.mfma(ACQ, WF + 4 * (s & 3), XF + 4 * s, ACQ if s else None)
            if s in inserts: inserts[s]()

    def cs_lane(self, typ, T):
        a = self.a
        def issue():
            a(f"""v_and_b32 {v(vT0)}, 31, {v(vLANE)}
            v_lshlrev_b32 {v(vT0)}, 2, {v(vT0)}
            v_add_u32 {v(vT0)}, {CSA if typ == "A" else CSB}, {v(vT0)}""")
            if typ == "A":
                a(f"ds_read2_b32 {v(T,2)}, {v(vT0)} offset0:0 offset1:64\nds_read2_b32 {v(T+2,2)}, {v(vT0)} offset0:32 offset1:96")
                self.lg.issue("cs"); self.lg.issue("cs")
            else:
                a(f"ds_read2_b32 {v(T+2,2)}, {v(vT0)} offset0:64 offset1:160"); self.lg.issue("cs")
        def finish():
            self.wait(lg="cs")
            if typ == "A": a(f"v_add_f32 {v(vCS0)}, {v(T)}, {v(T+1)}")
            a(f"v_add_f32 {v(vCS1)}, {v(T+2)}, {v(T+3)}")
        return issue, finish
    def cs_reg(self, typ, seg, dst=CS16):
        a = self.a
        def issue():
            a(f"""v_and_b32 {v(vT0)}, 31, {v(vLANE)}
            v_lshlrev_b32 {v(vT0)}, 2, {v(vT0)}
            v_add_u32 {v(dst+4)}, {CSAQ if typ == "A" else CSB + 128*seg}, {v(vT0)}""")
            if typ == "A":
                a(f"ds_read2_b32 {v(dst,2)}, {v(dst+4)} offset0:0 offset1:32\nds_read2_b32 {v(dst+2,2)}, {v(dst+4)} offset0:64 offset1:96")
                self.lg.issue("cr"); self.lg.issue("cr")
            else:
                a(f"ds_read2_b32 {v(dst,2)}, {v(dst+4)} offset0:0 offset1:96"); self.lg.issue("cr")
            a(f"""s_lshl_b32 s{sD}, s{sWAVE}, 8
            s_add_u32 s{sD}, s{sD}, {STW}
            v_add_u32 {v(vT0)}, s{sD}, {v(vT0)}
            v_lshrrev_b32 {v(vT1)}, 5, {v(vLANE)}
            v_lshl_add_u32 {v(vT1)}, {v(vT1)}, 4, s{sD}""")
        def finish():
            self.wait(lg="cr")
            if typ == "A": a(f"v_pk_add_f32 {v(dst,2)}, {v(dst,2)}, {v(dst+2,2)}")
            a(f"v_add_f32 {v(dst+5)}, {v(dst)}, {v(dst+1)}\nds_write_b32 {v(vT0)}, {v(dst+5)}"); self.lg.issue("cw")
            for q in range(4):
                a(f"ds_read_b128 {v(dst+4*q,4)}, {v(vT1)} offset:{32*q}"); self.lg.issue("cs16")
        return issue, finish

    def fix_feat(self, acc, vcs):
        pair = vcs & ~1; sel = vcs & 1
        for r in range(0, 16, 2):
            self.a(f"v_pk_fma_f32 {v(acc+r,2)}, {v(SB+r,2)}, {v(pair,2)}, {v(acc+r,2)} op_sel:[0,{sel},0] op_sel_hi:[1,{sel},1]")
    def fix_tok(self, acc, cs=CS16):
        pair = vNM & ~1; sel = vNM & 1
        for r in range(0, 16, 2):
            self.a(f"v_pk_fma_f32 {v(acc+r,2)}, {v(cs+r,2)}, {v(pair,2)}, {v(acc+r,2)} op_sel:[0,{sel},0] op_sel_hi:[1,{sel},1]")
    def scale_lane(self, acc, vs):
        pair = vs & ~1; sel = vs & 1
        for r in range(0, 16, 2):
            self.a(f"v_pk_mul_f32 {v(acc+r,2)}, {v(acc+r,2)}, {v(pair,2)} op_sel:[0,{sel}] op_sel_hi:[1,{sel}]")
    def phi(self, acc, tmp, dst):
        a = self.a
        for r in range(0, 16, 2):
            a(f"v_pk_mul_f32 {v(tmp+r,2)}, {v(acc+r,2)}, s[{sK0}:{sK0+1}] op_sel:[0,0] op_sel_hi:[1,0]")
        for r in range(16):
            a(f"v_exp_f32_e64 {v(tmp+r)}, {v(tmp+r)} clamp")
            a(f"v_max_f32 {v(acc+r)}, s{sK0+1}, {v(acc+r)}")
        for r in range(0, 16, 2):
            a(f"v_pk_add_f32 {v(acc+r,2)}, {v(acc+r,2)}, {v(tmp+r,2)}")
        self.pack(acc, dst)
    def pack(self, src, dst):
        for i in range(8):
            self.a(f"v_cvt_pk_bf16_f32 {v(dst+i)}, {v(src+2*i)}, {v(src+2*i+1)}")
    def sumsq(self, acc, dst):
        a = self.a
        a(f"v_pk_mul_f32 {v(vCS0,2)}, {v(acc,2)}, {v(acc,2)}")
        for r in range(2, 16, 2):
            a(f"v_pk_fma_f32 {v(vCS0,2)}, {v(acc+r,2)}, {v(acc+r,2)}, {v(vCS0,2)}")
        a(f"""v_add_f32 {v(dst)}, {v(vCS0)}, {v(vCS1)}
        v_add_f32 {v(vT1)}, {v(vCS0)}, {v(vCS1)}
        v_permlane32_swap_b32 {v(dst)}, {v(vT1)}
        v_add_f32 {v(dst)}, {v(dst)}, {v(vT1)}""")

    def finalize_o(self, D, P, eps):
        a = self.a
        a(f"""v_mov_b32 {v(vT0)}, {v(D+12)}
        v_mov_b32 {v(vT1)}, {v(D+12)}
        s_lshl_b32 s{sB_}, s{sT}, 4
        s_add_u32 s{sB_}, s{sB_}, s{sH}
        v_permlane32_swap_b32 {v(vT0)}, {v(vT1)}""")
        if eps: a(f"v_add_f32 {v(vT1)}, {hx(f2u(1e-6))}, {v(vT1)}")
        a(f"""v_rcp_f32 {v(vT0)}, {v(vT1)}
        s_lshl_b32 s{sB_}, s{sB_}, 11
        s_add_u32 s{sB_}, s{sB_}, s{sLB}
        s_add_u32 s{sB_}, s{sB_}, {hx(OFF_O)}""")
        pr = vT0
        for r in range(0, 8, 2):
            a(f"v_pk_mul_f32 {v(D+r,2)}, {v(D+r,2)}, {v(pr,2)} op_sel:[0,0] op_sel_hi:[1,0]")
        for i in range(4): a(f"v_cvt_pk_bf16_f32 {v(P+i)}, {v(D+2*i)}, {v(D+2*i+1)}")
        a(f"buffer_store_dwordx4 {v(P,4)}, {v(vL16)}, {srd(S_WS)}, s{sB_} offen sc1")
        for r in range(8, 16, 2):
            a(f"v_pk_mul_f32 {v(D+r,2)}, {v(D+r,2)}, {v(pr,2)} op_sel:[0,0] op_sel_hi:[1,0]")
        a(f"v_mov_b32 {v(P+6)}, 0\nv_mov_b32 {v(P+7)}, 0")
        for i in range(4, 6): a(f"v_cvt_pk_bf16_f32 {v(P+i)}, {v(D+2*i)}, {v(D+2*i+1)}")
        self.exec_lo()
        for i in range(6, 8): a(f"v_cvt_pk_bf16_f32 {v(P+i)}, {v(D+2*i)}, {v(D+2*i+1)}")
        self.exec_all()
        a(f"buffer_store_dwordx4 {v(P+4,4)}, {v(vL16)}, {srd(S_WS)}, s{sB_} offen offset:1024 sc1")
        self.vm.issue("o"); self.vm.issue("o")
        rb = self.opt.get("rb", 0)
        if rb & 1:
            if rb & 4: a("s_waitcnt vmcnt(0)")
            a(f"""buffer_load_dwordx4 {v(232,4)}, {v(vL16)}, {srd(S_WS)}, s{sB_} offen sc1
            buffer_load_dwordx4 {v(236,4)}, {v(vL16)}, {srd(S_WS)}, s{sB_} offen offset:1024 sc1""")

    def prefill(self, L, R, parts="ox", thr=False, track=False):
        a = self.a
        LB = (L + 1) << 24
        def st(so, off):
            a(f"buffer_store_dwordx4 {v(R,4)}, {v(vL16)}, {srd(S_WS)}, s{so} offen offset:{off} sc1")
            if thr: a(f"s_waitcnt vmcnt({self.thr})")
            if track: self.vm.issue("pf")
        if "o" in parts:
            a(f"""s_lshl_b32 s{sC_}, s{sT}, 4
            s_add_u32 s{sC_}, s{sC_}, s{sH}
            s_lshl_b32 s{sC_}, s{sC_}, 11
            s_add_u32 s{sC_}, s{sC_}, {hx(LB+OFF_O)}""")
            st(sC_, 0); st(sC_, 1024)
            if L % 2 == 0:
                a(f"""s_lshl_b32 s{sC_}, s{sIM}, 11
                s_and_b32 s{sSO0}, s{sWAVE}, 1
                s_lshl_b32 s{sSO0}, s{sSO0}, 10
                s_add_u32 s{sC_}, s{sC_}, s{sSO0}
                s_add_u32 s{sC_}, s{sC_}, {hx(LB+OFF_KV)}""")
                st(sC_, 0)
            elif not self.kd:
                a(f"""s_lshl_b32 s{sC_}, s{sH}, 6
                s_add_u32 s{sC_}, s{sC_}, s{sT}
                s_lshl_b32 s{sC_}, s{sC_}, 12
                s_add_u32 s{sC_}, s{sC_}, {hx(LB+OFF_KV)}""")
                for i in range(4): st(sC_, 1024 * i)
        if "x" in parts and L < 3:
            lab = a.label("Lpf")
            a(f"""s_cmp_eq_u32 s{sISWO}, 0
            s_cbranch_scc1 {lab}
            s_mul_i32 s{sC_}, s{sTW}, 14
            s_add_u32 s{sC_}, s{sC_}, s{sC}
            s_lshl_b32 s{sSO0}, s{sC_}, 11
            s_add_u32 s{sSO0}, s{sSO0}, {hx(LB+OFF_X)}
            s_lshl_b32 s{sC_}, s{sC_}, 8
            s_add_u32 s{sC_}, s{sC_}, {hx(LB+OFF_ST)}""")
            st(sSO0, 0); st(sSO0, 1024)
            a("s_mov_b64 exec, 0xffff")
            st(sC_, 0)
            a(f"s_mov_b64 exec, -1\n{lab}:")

    def qkv_front(self, redo):
        a = self.a
        D = self.D
        a(f"""s_add_u32 s{sPF}, s{sFB}, s{sGR}
        s_add_u32 s{sPF}, s{sPF}, {hx(2*SEAM + DRN - LBLK)}
        s_mov_b32 s{sRETRY}, 0""")
        self.wait_go(-1)
        self.stamp(1)
        a(f"""{redo}:
        s_mul_i32 s{sOFF}, s{sT}, 28672
        s_add_u32 s{sOFF}, s{sOFF}, s{sLB}
        s_sub_u32 s{sOFF}, s{sOFF}, 0x1000000""")
        self.xload(0); self.xload(1)
        a(f"""v_lshrrev_b32 {v(vCS0)}, 5, {v(vLANE)}
        v_mul_u32_u24 {v(vCS0)}, {7*256}, {v(vCS0)}
        v_and_b32 {v(vCS1)}, 31, {v(vLANE)}
        v_lshl_add_u32 {v(vCS0)}, {v(vCS1)}, 3, {v(vCS0)}
        s_mul_i32 s{sB_}, s{sT}, {14*256}
        s_add_u32 s{sB_}, s{sB_}, s{sLB}
        s_add_u32 s{sB_}, s{sB_}, {hx(OFF_ST - 0x1000000)}""")
        for i in range(7):
            a(f"buffer_load_dwordx2 {v(ACQ+2*i,2)}, {v(vCS0)}, {srd(S_WS)}, s{sB_} offen offset:{256*i} sc1"); self.vm.issue("st")
        for s in range(2, D): self.xload(s)
        self.tr_pair(WF, 0, 1, ("w", 0)); self.tr_pair(WF + 4, 0, 2, ("w", 0))
        def st0():
            for i in range(1, 7):
                a(f"v_pk_add_f32 {v(ACQ,2)}, {v(ACQ,2)}, {v(ACQ+2*i,2)}")
        return {2: st0, 3: lambda: self.stats_finish(ACQ, ACQ + 1), 5: lambda: self.stats_read(0), 7: lambda: self.stats_read(1)}

    def first_qkv(self):
        a = self.a
        a(f"""s_mov_b32 s{sRETRY}, 1
        s_mov_b32 s{sPF}, 0
        s_mul_i32 s{sOFF}, s{sT}, 28672
        v_lshrrev_b32 v22, 3, {v(vLANE)}
        v_and_b32 v23, 7, {v(vLANE)}
        v_lshrrev_b32 v24, 4, {v(vLANE)}
        v_xor_b32 v23, v23, v24
        v_mul_u32_u24 v22, 896, v22
        v_lshl_add_u32 {v(SB)}, v23, 4, v22
        v_xor_b32 v23, 4, v23
        v_lshl_add_u32 {v(SB+1)}, v23, 4, v22
        s_lshl_b32 s{sE}, s{sWAVE}, 14
        s_add_u32 s{sE}, s{sE}, {R2}
        s_lshl_b32 s{sXC}, s{sR7}, 7
        s_add_u32 s{sXC}, s{sXC}, s{sOFF}
        s_add_u32 s{sLIM}, s{sOFF}, 896""")
        def xdma(c):
            for i in range(4):
                a(f"""s_add_u32 m0, s{sE}, {(c&3)*4096+i*1024}
                s_add_u32 s{sA}, s{sXC}, {i*8*896}
                buffer_load_dwordx4 {v(SB+(i&1))}, {srd(S_X)}, s{sA} offen lds""")
                self.vm.issue(("xc", c))
            a(f"""s_add_u32 s{sXC}, s{sXC}, 128
            s_cmp_eq_u32 s{sXC}, s{sLIM}
            s_cselect_b32 s{sXC}, s{sOFF}, s{sXC}""")
        NX0 = self.opt.get("nx0", 4)
        for c in range(NX0): xdma(c)
        a(f"""s_mov_b32 s{sB_}, 0x3f803f80
        v_and_b32 v22, 31, {v(vLANE)}
        v_lshrrev_b32 v23, 5, {v(vLANE)}
        v_bfe_u32 v24, {v(vLANE)}, 1, 3
        v_xor_b32 v23, v23, v24
        v_lshlrev_b32 v23, 4, v23
        v_lshl_add_u32 v22, v22, 7, v23""")
        for i in range(4):
            a(f"v_xor_b32 {v(SB+2+i)}, {32*i}, v22\nv_add_u32 {v(SB+2+i)}, s{sE}, {v(SB+2+i)}")
        for i in range(4): a(f"v_mov_b32 {v(ACQ+i)}, 0\nv_mov_b32 {v(ACQ+4+i)}, -1")
        self.stamp(12)
        def xstage(c):
            self.wait(vm=("xc", c))
            for i in range(4):
                a(f"ds_read_b128 {v(XF+16*c+4*i,4)}, {v(SB+2+i)} offset:{(c&3)*4096}"); self.lg.issue(("xr", i))
            for i in range(4):
                self.wait(lg=("xr", i))
                if i == 3 and c + NX0 < 7: xdma(c + NX0)
                for j in range(4):
                    r = XF + 16 * c + 4 * i + j
                    a(f"v_dot2_f32_bf16 {v(ACQ+(j&1)*2)}, {v(r)}, s{sB_}, {v(ACQ+(j&1)*2)}")
                    a(f"v_dot2_f32_bf16 {v(ACQ+(j&1)*2+1)}, {v(r)}, {v(r)}, {v(ACQ+(j&1)*2+1)}")
            if c == 7 - NX0:
                a(f"""s_mul_i32 s{sA}, s{sTW}, 28672
                s_lshl_b32 s{sC_}, s{sC}, 6
                s_add_u32 s{sA}, s{sA}, s{sC_}
                buffer_load_dwordx4 {v(XRES+8,4)}, {v(vRM)}, {srd(S_X)}, s{sA} offen
                buffer_load_dwordx4 {v(XRES+12,4)}, {v(vRM)}, {srd(S_X)}, s{sA} offen offset:32""")
                self.vm.issue("res"); self.vm.issue("res")
                self.prefill(0, ACQ + 4, parts="o", track=True)
            if c == 6:
                a(f"v_pk_add_f32 {v(ACQ,2)}, {v(ACQ,2)}, {v(ACQ+2,2)}")
                self.stats_finish(ACQ, ACQ + 1)
                self.stats_read(0); self.stats_read(1)
                self.wait_all(vm=False)
        WB = (WF, WF + 8, CS16, CS16 + 8)
        def rd(s):
            self.tr_pair(WB[s & 3], s, 1, ("w", s)); self.tr_pair(WB[s & 3] + 4, s, 2, ("w", s))
        done = 0
        for gi, (lo, hi) in enumerate(self.groups):
            need = min(7, hi + self.opt.get("ah", 7))
            while done < need:
                xstage(done); done += 1
            if self.opt.get("fine", 0): self.stamp(1 + 2 * gi, 3)
            self.barrier()
            if self.opt.get("fine", 0): self.stamp(2 + 2 * gi, 3)
            if gi == 0: self.stamp(2)
            rd(4 * lo); rd(4 * lo + 1)
            for s in range(4 * lo, 4 * hi):
                if s + 2 < 4 * hi: rd(s + 2)
                self.wait(lg=("w", s))
                self.mfma(ACK, XF + 4 * s, WB[s & 3], ACK if s else None)
                self.mfma(ACV, XF + 4 * s, WB[s & 3] + 4, ACV if s else None)

    def layer_A(self):
        a = self.a
        a("L_layerA:")
        a(f"""s_mov_b32 s{sK0}, {hx(f2u(LOG2E))}
        s_mov_b32 s{sK0+1}, {hx(f2u(1e-6))}
""")
        self.first_qkv()
        self.stamp(11)
        if self.opt.get("fine", 0): a("s_branch L_fin")
        self.barrier()
        if self.opt.get("cp", 0): a(f"s_setprio {self.opt.get('cp', 0)}")
        i_, f_ = self.cs_lane("A", ACQ); i_(); f_()
        a("L_A_epi:")
        self.vm.clear(); self.lg.clear()
        self.stamp(3)
        self.fix_feat(ACK, vCS0)
        self.fix_feat(ACV, vCS1)
        for r in range(0, 16, 2):
            a(f"v_pk_fma_f32 {v(ACK+r,2)}, {v(ACK+r,2)}, {v(SA+r,2)}, s[{sK0}:{sK0+1}] op_sel:[0,0,1] op_sel_hi:[1,1,1]")
        for r in range(0, 16, 2):
            a(f"v_pk_mul_f32 {v(ACV+r,2)}, {v(ACV+r,2)}, {v(SA+r,2)}")
        self.pack(ACV, WF + 8)
        for i in range(8):
            a(f"v_cndmask_b32 {v(WF+8+i)}, {v(WF+8+i)}, {v(vPADV)}, s[{sMPAD}:{sMPAD+1}]")
        self.phi(ACK, CS16, WF)
        self.mfma(ACK, WF, WF + 8, None)
        self.mfma(ACK, WF + 4, WF + 12, ACK)
        a(f"""s_lshl_b32 s{sA}, s{sWAVE}, 12
        s_add_u32 s{sA}, s{sA}, {SCR}
        v_add_u32 {v(vCS0)}, s{sA}, {v(vL16)}
        s_lshl_b32 s{sA}, s{sWAVE}, 11
        s_add_u32 s{sA}, s{sA}, {SCR}
        v_add_u32 {v(vCS1)}, s{sA}, {v(vL16)}
        s_lshl_b32 s{sC_}, s{sIM}, 11
        s_lshl_b32 s{sA}, s{sWAVE}, 10
        s_add_u32 s{sC_}, s{sC_}, s{sA}
        s_add_u32 s{sC_}, s{sC_}, s{sLB}
        s_add_u32 s{sC_}, s{sC_}, {hx(OFF_KV)}""")
        self.nan_check(ACK, "L_A_redo", 14)
        for q in range(4):
            a(f"ds_write_b128 {v(vCS0)}, {v(ACK+4*q,4)} offset:{1024*q}")
        self.stamp(13)
        self.wait_all()
        self.stamp(14)
        self.barrier()
        self.stamp(7)
        a(f"""s_cmp_ge_u32 s{sWAVE}, 2
        s_cbranch_scc1 L_A_q""")
        for w in range(4):
            a(f"ds_read_b128 {v(ACK+8*w,4)}, {v(vCS1)} offset:{4096*w}\nds_read_b128 {v(ACK+8*w+4,4)}, {v(vCS1)} offset:{4096*w+1024}")
        for w in range(1, 4):
            a(f"s_waitcnt lgkmcnt({6-2*w})")
            for r in range(0, 8, 2):
                a(f"v_pk_add_f32 {v(ACK+r,2)}, {v(ACK+r,2)}, {v(ACK+8*w+r,2)}")
        for i in range(4):
            a(f"v_cvt_pk_bf16_f32 {v(ACK+8+i)}, {v(ACK+2*i)}, {v(ACK+2*i+1)}")
        a(f"""v_mov_b32 {v(vT0)}, 1
        buffer_store_dwordx4 {v(ACK+8,4)}, {v(vL16)}, {srd(S_WS)}, s{sC_} offen sc1""")
        if not self.ek: self.ctr_add(sGH, 0, vT0)
        a("L_A_q:")
        self.vm.clear(); self.lg.clear()
        self.stamp(4)
        ID = ACV
        def ident(i):
            d0 = 16 * (i >> 2) + 8 * ((i & 3) >> 1) + 2 * (i & 1)
            a(f"""v_cmp_eq_u32 vcc, {d0}, {v(vCS1)}
            v_cmp_eq_u32 s[{sE}:{sE+1}], {d0+1}, {v(vCS1)}
            v_cndmask_b32 {v(ID+i)}, 0, {v(ID+8)}, vcc
            v_cndmask_b32 {v(ID+i)}, {v(ID+i)}, {v(ID+9)}, s[{sE}:{sE+1}]""")
        def ident0():
            a(f"""v_lshrrev_b32 {v(vCS0)}, 5, {v(vLANE)}
            v_and_b32 {v(vCS1)}, 31, {v(vLANE)}
            v_lshlrev_b32 {v(vCS0)}, 2, {v(vCS0)}
            v_sub_u32 {v(vCS1)}, {v(vCS1)}, {v(vCS0)}
            v_mov_b32 {v(ID+8)}, 0x3f80
            v_mov_b32 {v(ID+9)}, 0x3f800000""")
        ins = {1: ident0}
        ins[20], ins[24] = self.cs_reg("A", 0)
        for i in range(8): ins[3 + 2 * i] = (lambda i=i: ident(i))
        self.q_loop(ins)
        self.drained(sGH, 0)
        a(f"""s_lshl_b32 s{sOFF}, s{sH}, 2
        s_add_u32 s{sOFF}, s{sOFF}, s{sWAVE}
        s_lshl_b32 s{sOFF}, s{sOFF}, 13
        s_add_u32 s{sOFF}, s{sOFF}, s{sLB}
        s_add_u32 s{sOFF}, s{sOFF}, {hx(OFF_KV)}
        s_add_u32 s{sOFFMAX}, s{sOFF}, 4096
        s_add_u32 s{sPF}, s{sFB}, s{sGH}
        s_add_u32 s{sPF}, s{sPF}, {DRN}
        s_mov_b32 s{sRETRY}, 0""")
        self.wait_all(vm=False)
        self.fix_tok(ACQ)
        pair = vA & ~1; sel = vA & 1
        for r in range(0, 16, 2):
            a(f"v_pk_fma_f32 {v(ACQ+r,2)}, {v(ACQ+r,2)}, {v(pair,2)}, s[{sK0}:{sK0+1}] op_sel:[0,{sel},1] op_sel_hi:[1,{sel},1]")
        PQ = WF
        a(f"s_cmp_lg_u32 s{sL}, 0\ns_cbranch_scc1 L_A_nores")
        R = XRES + 8
        for f in range(2):
            a(f"v_permlane32_swap_b32 {v(R+4*f)}, {v(R+4*f+2)}\nv_permlane32_swap_b32 {v(R+4*f+1)}, {v(R+4*f+3)}")
        for i in range(8):
            a(f"v_lshlrev_b32 {v(XRES+2*i)}, 16, {v(R+i)}\nv_and_b32 {v(XRES+2*i+1)}, 0xffff0000, {v(R+i)}")
        a("L_A_nores:")
        self.stamp(5)
        self.barrier()
        self.stamp(6)
        a("L_A_mredo:")
        for i in range(8):
            so = sOFF if i < 4 else sOFFMAX
            a(f"buffer_load_dwordx4 {v(XF+4*i,4)}, {v(vL16)}, {srd(S_WS)}, s{so} offen offset:{(i&3)*1024} sc1"); self.vm.issue(("p", i))
        a(f"""s_cmp_lg_u32 s{sRETRY}, 0
        s_cbranch_scc1 L_A_nophi""")
        self.phi(ACQ, CS16, PQ)
        self.exec_hi()
        a(f"v_mov_b32 {v(PQ+6)}, 0\nv_mov_b32 {v(PQ+7)}, 0")
        self.exec_all()
        a(f"""L_A_nophi:
        s_lshl_b32 s{sA}, s{sWAVE}, 11
        s_add_u32 s{sA}, s{sA}, {SCR}
        v_add_u32 {v(vCS0)}, s{sA}, {v(vL16)}
        v_add_u32 {v(vCS1)}, {SCR}, {v(vL16)}""")
        for i in range(8):
            self.wait(vm=("p", i))
            self.mfma(ACK, ID + 4 * (i & 1), XF + 4 * i, ACK if i else None)
        self.nan_check(ACK, "L_A_mredo", 16)
        self.pack(ACK, XF + 64)
        a(f"ds_write_b128 {v(vCS0)}, {v(XF+64,4)}\nds_write_b128 {v(vCS0)}, {v(XF+68,4)} offset:1024")
        self.wait_all(vm=False)
        self.barrier()
        for i in range(8):
            a(f"ds_read_b128 {v(XF+4*i,4)}, {v(vCS1)} offset:{1024*i}")
        for i in range(8):
            a(f"s_waitcnt lgkmcnt({7-i})")
            acc = ACQ if i & 1 else ACK
            self.mfma(ACQ, XF + 4 * i, PQ + 4 * (i & 1), ACQ if i else None)
        if self.eo: self.barrier()
        self.finalize_o(ACQ, ACK, True)
        if not self.eo: self.barrier()

    def layer_A2(self):
        a = self.a
        a(f"""L_A_later:
        s_mov_b32 s{sK0}, {hx(f2u(LOG2E))}
        s_mov_b32 s{sK0+1}, {hx(f2u(1e-6))}""")
        self.vm.clear(); self.lg.clear()
        ins = self.qkv_front("L_A_redo")
        ins[9], ins[11] = self.cs_lane("A", ACQ)
        self.kv_loop("A", inserts=ins)
        self.drained_late(sGT, 2 * SEAM + DRN - LBLK, True)
        a("s_branch L_A_epi")

    def layer_B(self):
        a = self.a
        Q = 32; O = 64
        a("L_layerB:")
        self.vm.clear(); self.lg.clear()
        ins = self.qkv_front("L_B_redo")
        ins[9], ins[11] = self.cs_lane("B", ACQ)
        ins[12], ins[15] = self.cs_reg("B", 1)
        def padf():
            a(f"v_and_b32 {v(vCS0)}, 0xffff0000, {v(vPADV)}")
        ins[14] = padf
        self.kv_loop("B", inserts=ins)
        self.drained_late(sGT, 2 * SEAM + DRN - LBLK, True)
        self.stamp(3)
        a(f"""s_lshl_b32 s{sC_}, s{sH}, 6
        s_add_u32 s{sC_}, s{sC_}, s{sT}
        s_lshl_b32 s{sC_}, s{sC_}, 12
        s_add_u32 s{sC_}, s{sC_}, s{sLB}
        s_add_u32 s{sC_}, s{sC_}, {hx(OFF_KV)}""")
        self.fix_tok(ACK)
        self.scale_lane(ACK, vA)
        self.nan_check(ACK, "L_B_redo", 14)
        KO = CS16
        self.pack(ACK, KO)
        self.exec_hi()
        a(f"v_mov_b32 {v(KO+6)}, 0x3f803f80\nv_mov_b32 {v(KO+7)}, 0x3f80")
        self.exec_all()
        for i in range(2):
            a(f"buffer_store_dwordx4 {v(KO+4*i,4)}, {v(vL16)}, {srd(S_WS)}, s{sC_} offen offset:{1024*i} sc1")
        self.fix_feat(ACV, vCS1)
        for r in range(0, 16, 2):
            a(f"v_pk_fma_f32 {v(ACV+r,2)}, {v(ACV+r,2)}, {v(SA+r,2)}, {v(vCS0,2)} op_sel:[0,0,0] op_sel_hi:[1,1,0]")
        self.pack(ACV, KO + 8)
        for i in range(2, 4):
            a(f"buffer_store_dwordx4 {v(KO+4*i,4)}, {v(vL16)}, {srd(S_WS)}, s{sC_} offen offset:{1024*i} sc1")
        self.sumsq(ACK, vT0)
        for sh in (1, 2, 4, 8):
            a(f"v_max_f32_dpp {v(vT0)}, {v(vT0)}, {v(vT0)} row_ror:{sh} row_mask:0xf bank_mask:0xf")
        a(f"""v_readlane_b32 s{sC_}, {v(vT0)}, 16
        s_add_u32 s{sA}, s{sFB}, s{sGH}
        s_add_u32 s{sA}, s{sA}, s{sWL}
        s_lshl_b32 s{sB_}, s{sRB}, 2
        s_add_u32 s{sA}, s{sA}, s{sB_}
        v_max3_u32 {v(vCS0)}, s{sC_}, {v(vT0)}, 1""")
        def kvhint():
            if self.kd: a("s_waitcnt vmcnt(0)")
            a(f"""s_mov_b64 exec, 1
            buffer_atomic_add {v(vCS0)}, off, {srd(S_WS)}, s{sA} sc1
            s_mov_b64 exec, -1""")
        if not self.kd: kvhint()
        self.stamp(4)
        a(f"s_cmp_lg_u32 s{sL}, 1\ns_cbranch_scc1 L_B_cs")
        self.barrier()
        a("L_B_cs:")
        ins = {}
        ins[2], ins[6] = self.cs_reg("B", 0, SB)
        for s_ in range(8, 24):
            ins[s_ + 1] = (lambda s_=s_: [a(f"v_mov_b32 {v(XF+4*s_+j)}, 0") for j in range(4)])
        if self.kd:
            prev = ins.get(self.kd)
            ins[self.kd] = lambda: ((prev() if prev else None), kvhint())
        self.q_loop(ins)
        if not self.kd: self.drained(sGH, 0)
        self.fix_tok(ACQ, SB)
        a(f"v_mul_f32 {v(vA)}, {hx(f2u(QSCALE))}, {v(vA)}")
        self.scale_lane(ACQ, vA)
        self.pack(ACQ, WF)
        self.sumsq(ACQ, vT0)
        a(f"v_sqrt_f32 {v(vT0)}, {v(vT0)}")
        self.exec_hi()
        a(f"v_mov_b32 {v(WF+6)}, {v(vT0)}")
        self.exec_all()
        a(f"""s_lshl_b32 s{sA}, s{sWAVE}, 11
        s_add_u32 s{sA}, s{sA}, {SCR}
        v_add_u32 {v(vT0)}, s{sA}, {v(vL16)}
        ds_write_b128 {v(vT0)}, {v(WF,4)}
        ds_write_b128 {v(vT0)}, {v(WF+4,4)} offset:1024
        s_add_u32 s{sPF}, s{sFB}, s{sGH}
        s_add_u32 s{sPF}, s{sPF}, {DRN}""")
        self.attention()

    def attention(self):
        a = self.a
        Q = 32; O = 64; S = 128; P = 160
        SL = (CS16, 168, 184, 200)
        for i in range(4): a(f"v_mov_b32 {v(P+4+i)}, 0\nv_mov_b32 {v(SL[3]+12+i)}, 0")
        for i in range(4):
            a(f"""s_add_u32 s{sA}, s{sWAVE}, {i+1}
            s_and_b32 s{sA}, s{sA}, 3
            s_mul_i32 s{sB_}, s{sA}, 12288
            s_lshl_b32 s{sA}, s{sA}, 11
            s_add_u32 s{sA}, s{sA}, {SCR}
            v_add_u32 {v(S+16+i)}, s{sA}, {v(vL16)}
            v_add_u32 {v(216+i)}, s{sB_}, {v(vL16)}""")
        a(f"""s_lshl_b32 s{sOFFMAX}, s{sH}, 18
        s_lshl_b32 s{sA}, s{sWAVE}, 12
        s_add_u32 s{sOFFMAX}, s{sOFFMAX}, s{sA}
        s_add_u32 s{sOFFMAX}, s{sOFFMAX}, s{sLB}
        s_add_u32 s{sOFFMAX}, s{sOFFMAX}, {hx(OFF_KV)}
        s_lshl_b32 s{sG}, s{sRB}, 14
        s_add_u32 s{sG}, s{sG}, s{sOFFMAX}
        s_sub_u32 s{sOFF}, s{sOFFMAX}, 0x4000
        s_mul_i32 s{sA}, s{sL}, 12
        s_add_u32 s{sA}, s{sA}, {GO}
        v_mov_b32 {v(vT1)}, s{sA}""")
        def kvload(slot, j):
            a(f"buffer_load_dwordx4 {v(SL[slot]+4*j,4)}, {v(vL16)}, {srd(S_WS)}, s{sOFF} offen offset:{1024*j} sc1")
        def adv():
            a(f"s_add_u32 s{sOFF}, s{sOFF}, 0x4000\ns_cmp_eq_u32 s{sOFF}, s{sG}\ns_cselect_b32 s{sA}, 0x4000, 0\ns_add_u32 s{sOFF}, s{sOFF}, s{sA}")
        adv()
        a("s_waitcnt lgkmcnt(0)")
        self.stamp(5)
        self.barrier()
        self.stamp(6)
        a(f"ds_read_b32 {v(vT0)}, {v(vT1)}")
        for i in range(4):
            a(f"ds_read_b128 {v(Q+8*i,4)}, {v(S+16+i)}\nds_read_b128 {v(Q+8*i+4,4)}, {v(S+16+i)} offset:1024")
        for slot in (1, 2):
            for j in range(4): kvload(slot, j)
            adv()
        a(f"""s_waitcnt lgkmcnt(6)
        v_sqrt_f32 {v(vT0)}, {v(vT0)}
        v_mov_b32 {v(vT1)}, {hx(f2u(SHIFT_UP))}""")
        self.mfma(S, SL[0], Q, None)
        self.exec_hi()
        for i in range(4):
            if i: a(f"s_waitcnt lgkmcnt({6-2*i})")
            a(f"v_fma_f32 {v(Q+8*i+6)}, -{v(Q+8*i+6)}, {v(vT0)}, {v(vT1)}")
            a(f"v_cvt_pk_bf16_f32 {v(Q+8*i+6)}, {v(Q+8*i+6)}, 0")
        self.exec_all()
        self.mfma(S, SL[0] + 4, Q + 4, S)
        a(f"s_mov_b32 s{sLOOP}, 3\ns_mov_b32 s{sRETRY}, 0\ns_nop 9")
        def group(last):
            for n in range(16):
                kt, i = n >> 2, n & 3
                pk, pi = ((n - 1) & 15) >> 2, (n - 1) & 3
                nk, ni = ((n + 1) & 15) >> 2, (n + 1) & 3
                Sc, Sn = S + 16 * (n & 1), S + 16 * ((n + 1) & 1)
                ex = lambda r: a(f"v_exp_f32 {v(Sc+r)}, {v(Sc+r)}")
                cv = lambda j: a(f"v_cvt_pk_bf16_f32 {v(P+j)}, {v(Sc+2*j)}, {v(Sc+2*j+1)}")
                fin = last and n == 15
                wr = last and n >= 13
                dw = lambda q: a(f"ds_write_b128 {v(216+pi)}, {v(O+16*pi+4*q,4)} offset:{OX+4096*(2-pi)+1024*q}")
                ex(0); ex(1)
                self.mfma(O + 16 * pi, SL[pk] + 12, P + 4, O + 16 * pi)
                for r in range(2, 6): ex(r)
                if i == 3 and not fin:
                    a(f"s_waitcnt vmcnt({7 if not last else (7, 4, 0)[kt]})")
                if not fin: self.mfma(Sn, SL[nk], Q + 8 * ni, None)
                ex(6); ex(7); cv(0); cv(1); cv(2)
                if not fin: self.mfma(Sn, SL[nk] + 4, Q + 8 * ni + 4, Sn)
                cv(3)
                for r in range(8, 12): ex(r)
                self.mfma(O + 16 * i, SL[kt] + 8, P, O + 16 * i)
                if not last or kt == 0:
                    kvload((kt + 3) & 3, i)
                    if i == 3: adv()
                for r in range(12, 16):
                    ex(r)
                    if wr: dw(r - 12)
                for j in range(4, 8): cv(j)
        a("L_att:")
        group(False)
        a(f"""s_sub_u32 s{sLOOP}, s{sLOOP}, 1
        s_cmp_lg_u32 s{sLOOP}, 0
        s_cbranch_scc1 L_att""")
        group(True)
        self.mfma(O + 48, SL[3] + 12, P + 4, O + 48)
        self.stamp(7)
        a("s_waitcnt lgkmcnt(0)")
        self.barrier()
        for i in range(3):
            for q in range(4):
                a(f"ds_read_b128 {v(O+16*i+4*q,4)}, {v(219)} offset:{OX+4096*i+1024*q}")
        O = O + 48
        for i in range(3):
            a(f"s_waitcnt lgkmcnt({8-4*i})")
            for r in range(0, 16, 2):
                a(f"v_pk_add_f32 {v(O+r,2)}, {v(O+r,2)}, {v(O-48+16*i+r,2)}")
        if self.eo: self.barrier()
        a(f"v_pk_add_f32 {v(vCS0,2)}, {v(O,2)}, {v(O+2,2)}")
        for r in range(4, 16, 2):
            a(f"v_pk_add_f32 {v(vCS0,2)}, {v(vCS0,2)}, {v(O+r,2)}")
        a(f"""v_add_f32 {v(vCS0)}, {v(vCS0)}, {v(vCS1)}
        s_movk_i32 s{sB_}, 0x207
        v_cmp_class_f32_e64 s[{sK0}:{sK0+1}], {v(vCS0)}, s{sB_}
        s_mov_b32 exec_lo, 0
        v_cmp_nle_f32 vcc, {hx(f2u(L_MIN))}, {v(O+12)}
        s_mov_b32 exec_lo, -1
        s_or_b64 vcc, vcc, s[{sK0}:{sK0+1}]
        s_cbranch_vccnz L_slow
        L_att_fin:""")
        self.finalize_o(O, P, False)
        if not self.eo: self.barrier()
        a("s_branch L_wo")

    def slow_path(self):
        a = self.a
        Q = 56; O = 112; S = 128; P = 160; KV = 168; M = 232
        a("L_slow:")
        if not self.kd:
            self.poll_ctr(f"s{sPF}", 16, vT0, four=vT1)
            a("buffer_inv sc1\ns_waitcnt vmcnt(0)")
        a(f"""s_mov_b32 s{sRETRY}, 1
        s_lshl_b32 s{sOFFMAX}, s{sH}, 18
        s_add_u32 s{sOFFMAX}, s{sOFFMAX}, s{sLB}
        s_add_u32 s{sOFFMAX}, s{sOFFMAX}, {hx(OFF_KV)}
        s_mov_b32 s{sOFF}, s{sOFFMAX}
        v_mov_b32 {v(M)}, 0xff800000""")
        self.exec_hi()
        a(f"v_mov_b32 {v(Q+6)}, 0\nv_mov_b32 {v(Q+7)}, 0")
        self.exec_all()
        a(f"""s_mov_b32 s{sLOOP}, 64
        L_slow1:
        buffer_load_dwordx4 {v(KV,4)}, {v(vL16)}, {srd(S_WS)}, s{sOFF} offen sc1
        buffer_load_dwordx4 {v(KV+4,4)}, {v(vL16)}, {srd(S_WS)}, s{sOFF} offen offset:1024 sc1
        s_add_u32 s{sOFF}, s{sOFF}, 4096
        s_waitcnt vmcnt(0)""")
        self.mfma(S, KV, Q, None); self.mfma(S, KV + 4, Q + 4, S)
        for r in range(0, 16, 2):
            a(f"v_max3_f32 {v(M)}, {v(S+r)}, {v(S+r+1)}, {v(M)}")
        a(f"""s_sub_u32 s{sLOOP}, s{sLOOP}, 1
        s_cmp_lg_u32 s{sLOOP}, 0
        s_cbranch_scc1 L_slow1
        v_mov_b32 {v(M+1)}, {v(M)}
        v_permlane32_swap_b32 {v(M)}, {v(M+1)}
        v_max_f32 {v(M)}, {v(M)}, {v(M+1)}
        v_sub_f32 {v(M)}, 0, {v(M)}
        v_and_b32 {v(M+1)}, 0xffff0000, {v(M)}
        v_sub_f32 {v(M)}, {v(M)}, {v(M+1)}
        v_and_b32 {v(M+2)}, 0xffff0000, {v(M)}
        v_sub_f32 {v(M)}, {v(M)}, {v(M+2)}
        v_lshrrev_b32 {v(M+1)}, 16, {v(M+1)}""")
        self.exec_hi()
        a(f"v_or_b32 {v(Q+6)}, {v(M+1)}, {v(M+2)}\nv_lshrrev_b32 {v(Q+7)}, 16, {v(M)}")
        self.exec_all()
        for i in range(16): a(f"v_mov_b32 {v(O+i)}, 0")
        a(f"""s_mov_b32 s{sOFF}, s{sOFFMAX}
        s_mov_b32 s{sLOOP}, 64
        L_slow2:""")
        for j in range(4):
            a(f"buffer_load_dwordx4 {v(KV+4*j,4)}, {v(vL16)}, {srd(S_WS)}, s{sOFF} offen offset:{1024*j} sc1")
        a(f"s_add_u32 s{sOFF}, s{sOFF}, 4096\ns_waitcnt vmcnt(0)")
        self.mfma(S, KV, Q, None); self.mfma(S, KV + 4, Q + 4, S)
        for r in range(16): a(f"v_exp_f32 {v(S+r)}, {v(S+r)}")
        self.pack(S, P)
        self.mfma(O, KV + 8, P, O); self.mfma(O, KV + 12, P + 4, O)
        a(f"""s_sub_u32 s{sLOOP}, s{sLOOP}, 1
        s_cmp_lg_u32 s{sLOOP}, 0
        s_cbranch_scc1 L_slow2
        s_nop 11
        s_branch L_att_fin""")

    def wo_phase(self):
        a = self.a
        OF = 32; SEND = 96; RECV = 112; PK = 128; KEEP = 144
        a("L_wo:")
        self.vm.clear(); self.lg.clear()
        self.stamp(8)
        a(f"""s_cmp_eq_u32 s{sISWO}, 0
        s_cbranch_scc1 L_wo_skip
        s_lshr_b32 s{sD}, s{sWAVE}, 1
        s_lshl_b32 s{sA}, s{sTW}, 1
        s_add_u32 s{sA}, s{sA}, s{sD}
        s_lshl_b32 s{sOFFMAX}, s{sA}, 14
        s_add_u32 s{sOFFMAX}, s{sOFFMAX}, s{sLB}
        s_add_u32 s{sOFFMAX}, s{sOFFMAX}, {hx(OFF_O)}
        s_add_u32 s{sPF}, s{sFB}, s{sGT}
        s_add_u32 s{sPF}, s{sPF}, {SEAM+DRN}
        s_mov_b32 s{sRETRY}, 0
        s_mul_i32 s{sSO0}, s{sTW}, 28672
        s_cmp_eq_u32 s{sL}, 3
        s_cbranch_scc1 L_wo_last
        s_lshl_b32 s{sB_}, s{sC}, 11
        s_add_u32 s{sSO0}, s{sSO0}, s{sB_}
        s_add_u32 s{sSO0}, s{sSO0}, s{sLB}
        s_add_u32 s{sSO1}, s{sSO0}, 1024
        v_mov_b32 {v(vXO)}, {v(vL16)}
        s_branch L_wo_addr
        L_wo_last:
        s_lshl_b32 s{sB_}, s{sC}, 6
        s_add_u32 s{sSO0}, s{sSO0}, s{sB_}
        s_add_u32 s{sSO1}, s{sSO0}, 32
        v_mov_b32 {v(vXO)}, {v(vRM)}
        s_mov_b32 s{S_XOUT}, s{PTR+12}
        s_mov_b32 s{S_XOUT+1}, s{PTR+13}
        s_mov_b32 s{S_XOUT+2}, 1835008
        L_wo_addr:
        s_lshl_b32 s{sA}, s{sWAVE}, 12
        s_add_u32 s{sB_}, s{sA}, {SCR}
        v_add_u32 {v(vA)}, s{sB_}, {v(vL16)}
        s_xor_b32 s{sA}, s{sA}, 8192
        s_add_u32 s{sA}, s{sA}, {SCR}
        v_add_u32 {v(vNM)}, s{sA}, {v(vL16)}
        s_mul_i32 s{sG}, s{sTW}, 14
        s_add_u32 s{sG}, s{sG}, s{sC}
        s_lshl_b32 s{sG}, s{sG}, 8
        s_add_u32 s{sG}, s{sG}, s{sLB}
        s_add_u32 s{sG}, s{sG}, {hx(OFF_ST)}
        v_lshlrev_b32 {v(vCS1)}, 3, {v(vLANE)}""")
        def wtr(dst, base, n):
            off = (28 * (n >> 1) + 16 * (n & 1)) * 128
            a(f"ds_read_b64_tr_b16 {v(dst,2)}, {v(base)} offset:{off}"); self.lg.issue(("w", n))
            a(f"ds_read_b64_tr_b16 {v(dst+2,2)}, {v(base)} offset:{off+1024}"); self.lg.issue(("w", n))
        self.wait_go(1)
        self.stamp(9)
        a(f"L_wo_redo:\ns_mov_b32 s{sOFF}, s{sOFFMAX}")
        for n in range(16):
            if n and n % 4 == 0: a(f"s_add_u32 s{sOFF}, s{sOFF}, 4096")
            a(f"buffer_load_dwordx4 {v(OF+4*n,4)}, {v(vL16)}, {srd(S_WS)}, s{sOFF} offen offset:{(n%4)*1024} sc1"); self.vm.issue(("o", n))
        wtr(WF, vWK, 0); wtr(WF + 4, vWS_, 0)
        for n in range(16):
            p = n & 1
            if n + 1 < 16:
                wtr(WF + 8 * (1 - p), vWK, n + 1); wtr(WF + 8 * (1 - p) + 4, vWS_, n + 1)
            self.wait(vm=("o", n), lg=("w", n))
            self.mfma(SEND, WF + 8 * p + 4, OF + 4 * n, SEND if n else None)
            self.mfma(KEEP, WF + 8 * p, OF + 4 * n, KEEP if n else XRES)
        self.drained_late(sGR, SEAM + DRN)
        self.nan_check(SEND, "L_wo_redo", 16)
        for q in range(4):
            a(f"ds_write_b128 {v(vA)}, {v(SEND+4*q,4)} offset:{1024*q}")
        a("s_waitcnt lgkmcnt(0)")
        self.barrier()
        self.stamp(12)
        for q in range(4):
            a(f"ds_read_b128 {v(RECV+4*q,4)}, {v(vNM)} offset:{1024*q}")
        for f in range(2):
            for q in range(2 * f, 2 * f + 2):
                a(f"s_waitcnt lgkmcnt({3-q})")
                a(f"v_pk_add_f32 {v(XRES+4*q,2)}, {v(KEEP+4*q,2)}, {v(RECV+4*q,2)}\nv_pk_add_f32 {v(XRES+4*q+2,2)}, {v(KEEP+4*q+2,2)}, {v(RECV+4*q+2,2)}")
            if f == 0 and self.ex >= 2:
                a("s_waitcnt lgkmcnt(0)")
                self.barrier()
            for i in range(4 * f, 4 * f + 4):
                a(f"v_cvt_pk_bf16_f32 {v(PK+i)}, {v(XRES+2*i)}, {v(XRES+2*i+1)}")
            a(f"v_permlane32_swap_b32 {v(PK+4*f)}, {v(PK+4*f+2)}\nv_permlane32_swap_b32 {v(PK+4*f+1)}, {v(PK+4*f+3)}")
            fs = self.opt.get("fs", 1)
            if fs:
                l1, l2 = a.label("Lfs"), a.label("Lfe")
                a(f"""s_cmp_eq_u32 s{sL}, 3
                s_cbranch_scc1 {l1}
                buffer_store_dwordx4 {v(PK+4*f,4)}, {v(vXO)}, {srd(S_XOUT)}, s{(sSO0,sSO1)[f]} offen sc1
                s_branch {l2}
                {l1}:
                buffer_store_dwordx4 {v(PK+4*f,4)}, {v(vXO)}, {srd(S_XOUT)}, s{(sSO0,sSO1)[f]} offen {("", "", "nt", "sc0")[fs]}
                {l2}:""")
            else:
                a(f"buffer_store_dwordx4 {v(PK+4*f,4)}, {v(vXO)}, {srd(S_XOUT)}, s{(sSO0,sSO1)[f]} offen sc1")
        a(f"""s_cmp_eq_u32 s{sL}, 3
        s_cbranch_scc1 L_fin""")
        if self.ex == 1: self.barrier()
        a(f"v_pk_add_f32 {v(RECV,2)}, {v(XRES,2)}, {v(XRES+2,2)}\nv_pk_mul_f32 {v(RECV+2,2)}, {v(XRES,2)}, {v(XRES,2)}")
        for r in range(2, 16, 2):
            if r >= 4: a(f"v_pk_add_f32 {v(RECV,2)}, {v(RECV,2)}, {v(XRES+r,2)}")
            a(f"v_pk_fma_f32 {v(RECV+2,2)}, {v(XRES+r,2)}, {v(XRES+r,2)}, {v(RECV+2,2)}")
        a(f"""v_add_f32 {v(RECV+4)}, {v(RECV)}, {v(RECV+1)}
        v_add_f32 {v(RECV+5)}, {v(RECV+2)}, {v(RECV+3)}
        v_add_f32 {v(RECV+6)}, {v(RECV)}, {v(RECV+1)}
        v_add_f32 {v(RECV+7)}, {v(RECV+2)}, {v(RECV+3)}
        v_permlane32_swap_b32 {v(RECV+4)}, {v(RECV+6)}
        v_permlane32_swap_b32 {v(RECV+5)}, {v(RECV+7)}
        v_pk_add_f32 {v(RECV+4,2)}, {v(RECV+4,2)}, {v(RECV+6,2)}""")
        self.exec_lo()
        a(f"buffer_store_dwordx2 {v(RECV+4,2)}, {v(vCS1)}, {srd(S_WS)}, s{sG} offen sc1")
        self.exec_all()
        rb = self.opt.get("rb", 0)
        if rb & 2:
            if rb & 4: a("s_waitcnt vmcnt(0)")
            a(f"""buffer_load_dwordx4 {v(ACK,4)}, {v(vL16)}, {srd(S_WS)}, s{sSO0} offen sc1
            buffer_load_dwordx4 {v(ACK+4,4)}, {v(vL16)}, {srd(S_WS)}, s{sSO1} offen sc1""")
        if self.ex == 0: self.barrier()
        self.stamp(10)
        a("s_branch L_next\nL_wo_skip:")
        self.drained(sGR, 1)
        if self.opt.get("bgo", 1): self.barrier()
        self.barrier()
        a(f"""s_cmp_eq_u32 s{sL}, 3
        s_cbranch_scc1 L_fin""")
        self.barrier()
        a(f"""L_next:
        s_add_u32 s{sL}, s{sL}, 1
        s_add_u32 s{sLB}, s{sLB}, 0x1000000
        s_add_u32 s{sFB}, s{sFB}, {LBLK}
        s_bitcmp1_b32 s{sL}, 0
        s_cbranch_scc0 L_A_later""")

    def helper(self):
        a = self.a
        VKV, VQ, VWO, VCS = 16, 17, 18, 19
        ONES, FR, ACC = 24, 28, 64
        NANR, VONE = 128, 132
        NFL = self.opt.get("nfl", 14)
        a(f"""s_sub_u32 s{sHH}, s{sWAVE}, 4
        v_lshrrev_b32 v22, 3, {v(vLANE)}
        v_and_b32 v23, 7, {v(vLANE)}
        v_bfe_u32 v28, {v(vLANE)}, 4, 1
        v_lshlrev_b32 v28, 2, v28
        v_xor_b32 v23, v23, v28
        v_mul_u32_u24 v29, 896, v22
        v_lshl_add_u32 v{VWO}, v23, 4, v29
        v_mul_u32_u24 v29, 2688, v22
        v_lshrrev_b32 v28, 2, v23
        v_mul_u32_u24 v28, 896, v28
        v_and_b32 v23, 3, v23
        v_lshl_add_u32 v29, v23, 4, v29
        v_add_u32 v{VKV}, v29, v28
        v_lshrrev_b32 v22, 2, {v(vLANE)}
        v_mul_u32_u24 v22, 2688, v22
        v_lshl_add_u32 v{VQ}, v23, 4, v22
        s_mul_i32 s{sE}, s{sH}, 56
        s_and_b32 s{sE}, s{sE}, 0xfff0
        s_mul_i32 s{sB_}, s{sHH}, {8*2688}
        s_add_u32 s{sB_}, s{sB_}, s{sE}
        s_add_u32 s{sXC}, s{sB_}, 896
        s_add_u32 s{sLIM}, s{sXC}, {448*2688}
        s_mul_i32 s{sROT}, s{sR7}, {64*2688}
        s_add_u32 s{sB_}, s{sXC}, s{sROT}
        s_lshl_b32 s{sA}, s{sHH}, 10""")
        def raw_kv():
            a(f"""s_mov_b32 m0, s{sA}
            s_add_u32 s{sA}, s{sA}, 4096
            buffer_load_dwordx4 v{VKV}, {srd(S_WQ)}, s{sB_} offen lds
            s_add_u32 s{sB_}, s{sB_}, {32*2688}
            s_cmp_eq_u32 s{sB_}, s{sLIM}
            s_cselect_b32 s{sB_}, s{sXC}, s{sB_}""")
        a(f"""v_mov_b32 v28, 0
        v_mov_b32 v29, 0
        v_mov_b32 v30, 0
        v_mov_b32 v31, 0
        s_cmp_lg_u32 s{sHH}, 3
        s_cbranch_scc1 L_h_noz
        s_cmp_ge_u32 s2, {NZERO}
        s_cbranch_scc1 L_h_noz
        v_mul_u32_u24 v22, {LN}, {v(vLANE)}
        s_mul_i32 s{sC_}, s2, {64*LN}
        buffer_store_dwordx4 v[28:31], v22, {srd(S_WS)}, s{sC_} offen sc1
        buffer_store_dwordx4 v[28:31], v22, {srd(S_WS)}, s{sC_} offen offset:16 sc1
        buffer_store_dwordx4 v[28:31], v22, {srd(S_WS)}, s{sC_} offen offset:32 sc1
        buffer_store_dwordx4 v[28:31], v22, {srd(S_WS)}, s{sC_} offen offset:48 sc1
        L_h_noz:""")
        for i in range(min(NFL, 14)): raw_kv()
        if self.opt.get("tlb", 0):
            a(f"""s_cmp_lg_u32 s{sHH}, 2
            s_cbranch_scc1 L_h_notlb
            v_min_u32 v22, 39, {v(vLANE)}
            v_lshlrev_b32 v22, 21, v22
            v_add_u32 v22, 0x1fff00, v22
            buffer_load_dword v60, v22, {srd(S_WS)}, 0 offen sc1
            L_h_notlb:""")
        a(f"""v_and_b32 v22, 31, {v(vLANE)}
        v_lshlrev_b32 v{VCS}, 2, v22
        v_mov_b32 v24, 0x3f803f80
        v_mov_b32 v25, 0x3f803f80
        v_mov_b32 v26, 0x3f803f80
        v_mov_b32 v27, 0x3f803f80
        v_mov_b32 v{NANR}, -1
        v_mov_b32 v{NANR+1}, -1
        v_mov_b32 v{NANR+2}, -1
        v_mov_b32 v{NANR+3}, -1
        v_mov_b32 v{VONE}, 1
        v_and_b32 v22, 15, {v(vLANE)}
        v_lshlrev_b32 v22, 2, v22
        v_add_u32 v22, {GO}, v22
        ds_write_b32 v22, v28
        s_and_b32 s{sC_}, s{sHH}, 1
        s_lshl_b32 s{sC_}, s{sC_}, 12
        s_cmp_ge_u32 s{sHH}, 2
        s_cselect_b64 vcc, -1, 0
        v_cndmask_b32 v20, {v(vTK)}, {v(vTV)}, vcc
        v_add_u32 v20, s{sC_}, v20
        s_mul_i32 s{sD}, s{sHH}, {16*2688}
        s_add_u32 s{sD}, s{sD}, s{sE}
        s_add_u32 s{sLIM2}, s{sD}, {448*2688}
        s_add_u32 s{sF}, s{sD}, s{sROT}
        s_lshl_b32 s{sG}, s{sHH}, 10
        s_add_u32 s{sG}, s{sG}, {R1Q}
        s_waitcnt lgkmcnt(0)""")
        def raw_q():
            a(f"""s_mov_b32 m0, s{sG}
            s_add_u32 s{sG}, s{sG}, 4096
            buffer_load_dwordx4 v{VQ}, {srd(S_WQ)}, s{sF} offen lds
            s_add_u32 s{sF}, s{sF}, {64*2688}
            s_cmp_eq_u32 s{sF}, s{sLIM2}
            s_cselect_b32 s{sF}, s{sD}, s{sF}""")
        a("s_setprio 1")
        seq = ["kv"] * 14 + ["q"] * 7
        nxt = NFL
        for i in range(14, NFL): raw_q()
        for gi, (lo, hi) in enumerate(self.groups):
            if gi == 0: self.stamp(1)
            assert nxt >= 2 * hi
            a(f"s_waitcnt vmcnt({nxt-2*hi})")
            if gi == 0:
                self.stamp(2)
                a(f"""s_cmp_lg_u32 s{sHH}, 3
                s_cbranch_scc1 L_h_nosig
                s_cmp_ge_u32 s2, {NZERO}
                s_cbranch_scc1 L_h_nosig
                s_mov_b64 exec, 1
                buffer_atomic_add v{VONE}, off, {srd(S_DBG)}, 0 sc1
                s_mov_b64 exec, -1
                L_h_nosig:""")
            if gi == 1: self.stamp(11)
            if hi == 7: self.stamp(12)
            self.barrier()
            for c in range(lo, hi):
                r = FR + 8 * (c - lo)
                a(f"""ds_read_b64_tr_b16 v[{r}:{r+1}], v20 offset:{c*8192}
                ds_read_b64_tr_b16 v[{r+2}:{r+3}], v20 offset:{c*8192+512}
                ds_read_b64_tr_b16 v[{r+4}:{r+5}], v20 offset:{c*8192+2048}
                ds_read_b64_tr_b16 v[{r+6}:{r+7}], v20 offset:{c*8192+2560}""")
            a("s_waitcnt lgkmcnt(0)")
            for c in range(lo, hi):
                r = FR + 8 * (c - lo)
                self.mfma(ACC + 16, ONES, r, ACC + 16 if c else None)
                self.mfma(ACC + 16, ONES, r + 4, ACC + 16)
            if hi < 7:
                for _ in range(4):
                    if nxt < self.opt.get("qlim", 21):
                        (raw_kv if seq[nxt] == "kv" else raw_q)(); nxt += 1
        def cs_put(soff, items):
            a(f"v_add_u32 v22, s{soff}, v{VCS}")
            for t, off in items:
                a(f"ds_write_b32 v22, v{ACC+16*t} offset:{off}")
            a("s_waitcnt lgkmcnt(0)")
        a(f"""s_and_b32 s{sC_}, s{sHH}, 1
        s_lshl_b32 s{sC_}, s{sC_}, 8
        s_lshr_b32 s{sSO0}, s{sHH}, 1
        s_lshl_b32 s{sSO0}, s{sSO0}, 7
        s_add_u32 s{sC_}, s{sC_}, s{sSO0}
        s_add_u32 s{sC_}, s{sC_}, {CSA}""")
        cs_put(sC_, [(1, 0)])
        a("s_setprio 0")
        self.stamp(3)
        if self.opt.get("fine", 0): a("s_waitcnt vmcnt(0)\ns_branch L_fin")
        self.barrier()
        while nxt < 21:
            raw_q(); nxt += 1
        def dma_wq(typ, lo, hi, thr=False, two=False):
            if lo >= hi: return
            L = a.label("Lhq")
            a(f"""s_add_u32 s{sB_}, s{sH}, {16*typ}
            s_mul_i32 s{sB_}, s{sB_}, 86016
            s_add_u32 s{sB_}, s{sB_}, {hx(WPK)}
            s_and_b32 s{sA}, s{sHH}, {1 if two else 3}
            s_lshl_b32 s{sA}, s{sA}, 10
            s_add_u32 s{sA}, s{sA}, {lo}
            {L}:
            s_mov_b32 m0, s{sA}
            s_add_u32 s{sC_}, s{sA}, s{sB_}
            buffer_load_dwordx4 {v(vL16)}, {srd(S_WS)}, s{sC_} offen sc1 lds
            {"s_waitcnt vmcnt(%d)" % self.thr if thr else ""}
            s_add_u32 s{sA}, s{sA}, {2048 if two else 4096}
            s_cmp_lt_u32 s{sA}, {hi}
            s_cbranch_scc1 {L}""")
        def dma_wo(p, thr=False, two=False):
            L = a.label("Lho")
            a(f"""s_mov_b32 s{S_WO}, s{PTR+2*p}
            s_mov_b32 s{S_WO+1}, s{PTR+2*p+1}
            s_and_b32 s{sC_}, s{sHH}, {1 if two else 3}
            s_lshl_b32 s{sA}, s{sC_}, 10
            s_add_u32 s{sA}, s{sA}, {R2}
            s_mul_i32 s{sB_}, s{sC_}, {8*896}
            s_lshl_b32 s{sC_}, s{sCG}, 7
            s_add_u32 s{sB_}, s{sB_}, s{sC_}
            {L}:
            s_mov_b32 m0, s{sA}
            s_add_u32 s{sA}, s{sA}, {2048 if two else 4096}
            buffer_load_dwordx4 v{VWO}, {srd(S_WO)}, s{sB_} offen lds
            {"s_waitcnt vmcnt(%d)" % self.thr if thr else ""}
            s_add_u32 s{sB_}, s{sB_}, {(16 if two else 32)*896}
            s_cmp_lt_u32 s{sA}, {R2+57*1024}
            s_cbranch_scc1 {L}""")
        def wo3(lo, cnt):
            a(f"""s_add_u32 s{sD}, s{sHH}, {lo-1}
            s_lshl_b32 s{sC_}, s{sCG}, 7""")
            for i in range(cnt):
                a(f"""s_min_u32 s{sA}, s{sD}, 56
                s_mul_i32 s{sB_}, s{sA}, {8*896}
                s_add_u32 s{sB_}, s{sB_}, s{sC_}
                s_lshl_b32 s{sA}, s{sA}, 10
                s_add_u32 m0, s{sA}, {R2}
                s_add_u32 s{sD}, s{sD}, 3
                buffer_load_dwordx4 v{VWO}, {srd(S_WO)}, s{sB_} offen lds""")
        def wq3(typ, cnt):
            a(f"""s_add_u32 s{sB_}, s{sH}, {16*typ}
            s_mul_i32 s{sB_}, s{sB_}, 86016
            s_add_u32 s{sB_}, s{sB_}, {hx(WPK)}
            s_sub_u32 s{sA}, s{sHH}, 1
            s_lshl_b32 s{sA}, s{sA}, 10""")
            for i in range(cnt):
                a(f"""s_mov_b32 m0, s{sA}
                s_add_u32 s{sC_}, s{sA}, s{sB_}
                s_add_u32 s{sA}, s{sA}, 3072
                buffer_load_dwordx4 {v(vL16)}, {srd(S_WS)}, s{sC_} offen sc1 lds""")
        def colsum_B(part):
            if part == 0: a(f"""s_and_b32 s{sD}, s{sHH}, 1
            s_mul_i32 s{sC_}, s{sD}, 28672
            v_add_u32 v20, s{sC_}, {v(vTK)}
            v_add_u32 v21, s{sC_}, {v(vTV)}
            s_mul_i32 s{sC_}, s{sD}, 14336
            v_add_u32 v23, s{sC_}, {v(vTQ)}""")
            Lq = a.label("Lhq")
            if part == 0: a(f"""s_add_u32 s{sB_}, s{sH}, 16
            s_mul_i32 s{sB_}, s{sB_}, 86016
            s_add_u32 s{sB_}, s{sB_}, {hx(WPK)}
            s_add_u32 s{sA}, s{sC_}, {R1Q}
            s_add_u32 s{sD}, s{sA}, 14336
            {Lq}:
            s_mov_b32 m0, s{sA}
            s_add_u32 s{sC_}, s{sA}, s{sB_}
            buffer_load_dwordx4 {v(vL16)}, {srd(S_WS)}, s{sC_} offen sc1 lds
            s_add_u32 s{sA}, s{sA}, 1024
            s_cmp_lt_u32 s{sA}, s{sD}
            s_cbranch_scc1 {Lq}""")
            for tiles in (((1, 2), (0,))[part],):
                nt = len(tiles)
                if nt == 1: a("s_waitcnt vmcnt(0)")
                def rd(s_):
                    for k_, t in enumerate(tiles):
                        b, st, d = ((23, 1024, 256), (20, 2048, 512), (21, 2048, 512))[t]
                        r = FR + 4 * ((nt * s_ + k_) % 6)
                        a(f"ds_read_b64_tr_b16 v[{r}:{r+1}], v{b} offset:{s_*st}\nds_read_b64_tr_b16 v[{r+2}:{r+3}], v{b} offset:{s_*st+d}")
                rd(0); rd(1)
                for s_ in range(14):
                    if s_ + 2 < 14: rd(s_ + 2)
                    a(f"s_waitcnt lgkmcnt({2*nt*min(2, 13-s_)})")
                    for k_, t in enumerate(tiles):
                        self.mfma(ACC + 16 * t, ONES, FR + 4 * ((nt * s_ + k_) % 6), ACC + 16 * t if s_ else None)
            a(f"s_and_b32 s{sC_}, s{sHH}, 1\ns_mul_i32 s{sC_}, s{sC_}, 384\ns_add_u32 s{sC_}, s{sC_}, {CSB}")
            cs_put(sC_, [(0, 0)] if part else [(1, 128), (2, 256)])
        def role(h0=None, h1=None, h23=None, h123=None):
            if h123:
                l1, done = a.label("Lr1"), a.label("Lrd")
                a(f"s_cmp_lg_u32 s{sHH}, 0\ns_cbranch_scc1 {l1}")
                if h0: h0(done)
                a(f"s_branch {done}\n{l1}:")
                h123(done)
                a(f"{done}:")
                return
            l1, l2, done = a.label("Lr1"), a.label("Lr2"), a.label("Lrd")
            a(f"s_cmp_ge_u32 s{sHH}, 2\ns_cbranch_scc1 {l2 if h23 else done}")
            a(f"s_cmp_eq_u32 s{sHH}, 1\ns_cbranch_scc1 {l1 if h1 else done}")
            if h0: h0(done)
            a(f"s_branch {done}")
            if h1:
                a(f"{l1}:"); h1(done); a(f"s_branch {done}")
            if h23:
                a(f"{l2}:"); h23(done)
            a(f"{done}:")
        def hint(L, k):
            def f(done):
                want = (0, 16, 14)[k]
                if k == 2: a(f"s_cmp_eq_u32 s{sISWO}, 0\ns_cbranch_scc1 {done}")
                if not self.opt.get("rh", 0):
                    self.ctr_add(sGR if k else sGH, L * LBLK + k * SEAM, VONE, fb=False)
                    return
                Lp, Dp = a.label("Lhp"), a.label("Lhd")
                a(f"""s_add_u32 s{sA}, s{sGR}, {hx(L*LBLK + k*SEAM)}
                s_mov_b64 exec, 1
                v_mov_b32 v22, 1
                buffer_atomic_add v22, off, {srd(S_WS)}, s{sA} sc0 sc1
                v_mov_b32 v20, {GO+12*L+4*k}
                s_waitcnt vmcnt(0)
                v_cmp_gt_u32 vcc, {want-1}, v22
                s_cbranch_vccz {Dp}""")
                if self.opt.get("rh", 0) == 2:
                    self.poll_ctr(f"s{sA}", want, 22)
                    a("s_mov_b64 exec, 1")
                else:
                    a(f"s_mov_b64 exec, -1\ns_branch {done}")
                a(f"""{Dp}:
                ds_write_b32 v20, v{VONE}
                s_mov_b64 exec, -1
                s_waitcnt lgkmcnt(0)""")
            return f
        def poll(L, k):
            def f(done):
                skip = a.label("Lps")
                if k == 1: a(f"s_cmp_eq_u32 s{sISWO}, 0\ns_cbranch_scc1 {skip}")
                a(f"s_add_u32 s{sA}, s{(sGH, sGT, sGR)[k]}, {hx(L*LBLK + k*SEAM)}")
                self.stamp(9 + 2 * k, L)
                bm = (k == 0 and (L & 1))
                if bm:
                    Lp, Dp = a.label("Lpw"), a.label("Lpd")
                    a(f"""v_lshrrev_b32 v21, 4, {v(vLANE)}
                    v_lshlrev_b32 v21, 7, v21
                    v_and_b32 v20, 15, {v(vLANE)}
                    v_lshl_add_u32 v21, v20, 2, v21
                    s_mov_b32 s{sSPIN}, 200000
                    {Lp}:
                    v_mov_b32 v23, 0
                    buffer_atomic_add v23, v21, {srd(S_WS)}, s{sA} offen sc0 sc1
                    s_waitcnt vmcnt(0)
                    v_cmp_eq_u32 vcc, 0, v23
                    s_cbranch_vccz {Dp}
                    s_sub_u32 s{sSPIN}, s{sSPIN}, 1
                    s_cmp_eq_u32 s{sSPIN}, 0
                    s_cbranch_scc0 {Lp}
                    s_endpgm
                    {Dp}:""")
                    for sh in (1, 2, 4, 8):
                        a(f"v_max_u32_dpp v23, v23, v23 row_ror:{sh} row_mask:0xf bank_mask:0xf")
                    a(f"""v_readlane_b32 s{sA}, v23, 16
                    v_readlane_b32 s{sB_}, v23, 32
                    v_readlane_b32 s{sC_}, v23, 48
                    s_max_u32 s{sA}, s{sA}, s{sB_}
                    s_max_u32 s{sA}, s{sA}, s{sC_}
                    v_max_u32 v23, s{sA}, v23""")
                else:
                    self.poll_ctr(f"s{sA}", (16 if self.ek else 32, 16, 14)[k], 22)
                self.stamp(10 + 2 * k, L)
                if self.prof and L:
                    a(f"""s_sub_u32 s{sST0}, 200001, s{sSPIN}
                    s_mov_b32 m0, {16*L+1+k}
                    s_nop 0
                    v_writelane_b32 v0, s{sST0}, m0""")
                if k or bm:
                    a(f"""v_mov_b32 v20, {GO+12*L+4*k}
                    s_mov_b64 exec, 1
                    ds_write_b32 v20, v{23 if bm else 22}
                    s_mov_b64 exec, -1
                    s_waitcnt lgkmcnt(0)""")
                a(f"{skip}:")
            return f
        seqf = lambda *fs: (lambda done: [f(done) for f in fs])
        W = lambda f: (lambda done: f())
        N1 = self.opt.get("n1", 48) * 1024
        pf = lambda L, parts="ox", thr=True: self.prefill(L, NANR, parts=parts, thr=thr)

        a(f"""s_lshr_b32 s{sA}, s{sHH}, 1
        s_cmp_eq_u32 s{sA}, 0
        s_cselect_b32 s{S_WQ}, s{PTR+2}, s{PTR+8}
        s_cselect_b32 s{S_WQ+1}, s{PTR+3}, s{PTR+9}
        s_lshl_b32 s{sA}, s{sA}, 4
        s_add_u32 s{sA}, s{sA}, s{sH}
        s_mul_i32 s{sF}, s{sA}, 86016
        s_add_u32 s{sF}, s{sF}, {hx(WPK)}
        s_mul_i32 s{sB_}, s{sRB}, {28*2688}
        s_add_u32 s{sB_}, s{sB_}, s{sE}
        s_bitcmp1_b32 s{sHH}, 0
        s_cbranch_scc1 L_h_packq
        s_add_u32 s{sB_}, s{sB_}, 896
        s_mul_i32 s{sC_}, s{sRB}, {28*128}
        s_add_u32 s{sF}, s{sF}, s{sC_}""")
        for i in range(4):
            a(f"buffer_load_dwordx4 v[{112+4*i}:{115+4*i}], v{VKV}, {srd(S_WQ)}, s{sB_} offen\ns_add_u32 s{sB_}, s{sB_}, {8*2688}")
        a(f"""s_waitcnt vmcnt(4)
        s_branch L_h_packed
        L_h_packq:
        s_mul_i32 s{sC_}, s{sRB}, {28*64}
        s_add_u32 s{sF}, s{sF}, s{sC_}
        s_add_u32 s{sF}, s{sF}, {R1Q}
        buffer_load_dwordx4 v[112:115], v{VQ}, {srd(S_WQ)}, s{sB_} offen
        s_add_u32 s{sB_}, s{sB_}, {16*2688}
        buffer_load_dwordx4 v[116:119], v{VQ}, {srd(S_WQ)}, s{sB_} offen
        s_waitcnt vmcnt(2)
        L_h_packed:
        s_lshl_b32 s{sC_}, s{sHH}, 10
        v_add_u32 v20, s{sC_}, {v(vTQ)}""")
        for i in range(7):
            a(f"ds_read_b64_tr_b16 v[{FR+4*i}:{FR+4*i+1}], v20 offset:{i*4096}\nds_read_b64_tr_b16 v[{FR+4*i+2}:{FR+4*i+3}], v20 offset:{i*4096+256}")
        for i in range(7):
            a(f"s_waitcnt lgkmcnt({12-2*i})")
            self.mfma(ACC, ONES, FR + 4 * i, ACC if i else None)
        role(h0=W(lambda: self.poll_ctr("0", NZERO, 22, srd_b=S_DBG, ld=True)),
             h123=W(lambda: wo3(0, 7)))
        a(f"s_lshl_b32 s{sC_}, s{sHH}, 7\ns_add_u32 s{sC_}, s{sC_}, {CSAQ}")
        cs_put(sC_, [(0, 0)])
        self.stamp(4)

        self.barrier()
        def pack_store(nyoung):
            zo, zd, sq, sd = a.label("Lzo"), a.label("Lzd"), a.label("Lsq"), a.label("Lsd")
            a(f"""s_and_b32 s{sC_}, s{sH}, 1
            s_mul_i32 s{sC_}, s{sC_}, 3
            s_xor_b32 s{sC_}, s{sC_}, 3
            v_and_b32 v22, 3, {v(vLANE)}
            v_cmp_ne_u32 vcc, s{sC_}, v22
            s_waitcnt vmcnt({nyoung})
            s_bitcmp1_b32 s{sH}, 0
            s_cbranch_scc1 {zo}""")
            for i in range(4):
                a(f"v_cndmask_b32 v{114+4*i}, 0, v{114+4*i}, vcc\nv_cndmask_b32 v{115+4*i}, 0, v{115+4*i}, vcc")
            a(f"s_branch {zd}\n{zo}:")
            for i in range(4):
                a(f"v_cndmask_b32 v{112+4*i}, 0, v{112+4*i}, vcc\nv_cndmask_b32 v{113+4*i}, 0, v{113+4*i}, vcc")
            a(f"""{zd}:
            buffer_store_dwordx4 v[112:115], {v(vL16)}, {srd(S_WS)}, s{sF} offen sc1
            s_bitcmp1_b32 s{sHH}, 0
            s_cbranch_scc1 {sq}
            buffer_store_dwordx4 v[116:119], {v(vL16)}, {srd(S_WS)}, s{sF} offen offset:1024 sc1
            buffer_store_dwordx4 v[120:123], {v(vL16)}, {srd(S_WS)}, s{sF} offen offset:2048 sc1
            s_mov_b32 exec_hi, 0
            buffer_store_dwordx4 v[124:127], {v(vL16)}, {srd(S_WS)}, s{sF} offen offset:3072 sc1
            s_branch {sd}
            {sq}:
            s_mov_b32 exec_hi, 0xffff
            buffer_store_dwordx4 v[116:119], {v(vL16)}, {srd(S_WS)}, s{sF} offen offset:1024 sc1
            {sd}:
            s_mov_b64 exec, -1""")
        def l0_a(done):
            if self.ek:
                sk = a.label("Lsk")
                a(f"s_cmp_lg_u32 s{sHH}, 1\ns_cbranch_scc1 {sk}")
                hint(0, 0)(done)
                a(f"{sk}:")
            pack_store(7)
            wo3(21, 7)
            a(f"s_cmp_eq_u32 s{sHH}, 1\ns_cbranch_scc1 {done}\ns_waitcnt vmcnt(7)")
            self.ctr_add(sGH, 11 * SEAM, VONE, fb=False)
        role(h0=poll(0, 0), h123=l0_a)
        self.stamp(5)
        self.barrier()
        def l0_b0(done):
            a(f"s_add_u32 s{sD}, s{sGH}, {hx(11*SEAM)}")
            self.poll_ctr(f"s{sD}", 32, 22)
            pack_store(0)
        role(h0=l0_b0, h123=W(lambda: wo3(42, 5)))
        self.barrier()
        if self.eo == 2: role(h0=hint(0, 1))
        role(h123=W(lambda: (wq3(1, 7), a("s_waitcnt vmcnt(7)"))))
        self.barrier()
        role(h0=poll(0, 1), h1=(None if self.eo == 2 else hint(0, 1)), h23=W(lambda: dma_wq(1, 21504, R1Q, two=True)))
        if self.opt.get("bgo", 1): self.barrier()
        self.stamp(7)
        pf(0, "x", False)
        pf(1, "o", False)
        a(f"s_waitcnt vmcnt({2 if self.kd else 6})")
        self.stamp(8)
        self.barrier()
        if self.ex == 3: role(h1=hint(0, 2))
        self.barrier()
        if self.opt.get("bgo", 1):
            role(h0=poll(0, 2), h1=(None if self.ex == 3 else hint(0, 2)), h23=W(lambda: colsum_B(0)))
            role(h1=W(lambda: a("s_waitcnt vmcnt(0)")), h23=W(lambda: a("s_waitcnt vmcnt(14)")))
            self.barrier()
            role(h23=W(lambda: colsum_B(1)))
        else:
            role(h0=poll(0, 2), h1=(None if self.ex == 3 else hint(0, 2)), h23=W(lambda: (colsum_B(0), colsum_B(1))))
        a("s_waitcnt vmcnt(0)")
        self.barrier()
        role(h0=poll(1, 0))
        self.barrier()
        dma_wo(5, True)
        dma_wq(0, 0, OX, True)
        pf(1, "x"); pf(2); pf(3)
        a("s_waitcnt vmcnt(0)")
        self.barrier()
        if self.eo == 2: role(h0=hint(1, 1))
        self.barrier()
        role(h0=poll(1, 1), h1=(None if self.eo == 2 else hint(1, 1)), h23=W(lambda: dma_wq(0, OX, 86016, two=True)))
        if self.opt.get("bgo", 1): self.barrier()
        a("s_waitcnt vmcnt(0)")
        self.barrier()
        if self.ex == 3: role(h1=hint(1, 2))
        self.barrier()
        role(h0=poll(1, 2), h1=(None if self.ex == 3 else hint(1, 2)), h23=W(lambda: dma_wo(2, two=True)))
        if self.opt.get("bgo", 1): self.barrier()
        self.barrier()
        role(h0=poll(2, 0), h1=(hint(2, 0) if self.ek else None), h23=W(lambda: dma_wq(1, 0, N1, two=True)))
        self.barrier()
        a("s_waitcnt vmcnt(0)")
        self.barrier()
        if self.eo == 2: role(h0=hint(2, 1))
        self.barrier()
        role(h0=poll(2, 1), h1=(None if self.eo == 2 else hint(2, 1)), h23=W(lambda: dma_wq(1, N1, 86016, two=True)))
        if self.opt.get("bgo", 1): self.barrier()
        a("s_waitcnt vmcnt(0)")
        self.barrier()
        if self.ex == 3: role(h1=hint(2, 2))
        self.barrier()
        role(h0=poll(2, 2), h1=(None if self.ex == 3 else hint(2, 2)))
        if self.opt.get("bgo", 1): self.barrier()
        role(h0=poll(3, 0))
        self.barrier()
        dma_wo(5, True)
        a("s_waitcnt vmcnt(0)")
        self.barrier()
        if self.eo == 2: role(h0=hint(3, 1))
        self.barrier()
        role(h0=poll(3, 1), h1=(None if self.eo == 2 else hint(3, 1)))
        if self.opt.get("bgo", 1): self.barrier()
        a("s_branch L_fin")

    def build(self):
        a = self.a
        self.tail = []
        self.prologue()
        self.helper()
        self.layer_A()
        self.wo_phase()
        self.layer_B()
        self.layer_A2()
        self.slow_path()
        self.emit_tail()
        a("L_fin:")
        self.stamp(15)
        self.stamp_flush()
        a("L_end:\ns_endpgm\nL_code_end:")
        body = a.resolve()
        hdr = open("interleave_layers__linear_attn_block__softmax_full_mha__prompt.s.ref").read().split("; Override")[0]
        return hdr + f"""; @launch grid=(256,1,1) block=(512,1,1) lds={LDS_TOTAL}
.amdgcn_target "amdgcn-amd-amdhsa--gfx950"{DESC}.text
.globl {NAME}
.p2align 8
.type {NAME},@function
{NAME}:
{body}
.section .rodata,"a"
.p2align 6
.amdhsa_kernel {NAME}
  .amdhsa_next_free_vgpr 256
  .amdhsa_next_free_sgpr 102
  .amdhsa_accum_offset 256
  .amdhsa_group_segment_fixed_size 0
  .amdhsa_kernarg_size 72
  .amdhsa_user_sgpr_count 2
  .amdhsa_user_sgpr_kernarg_segment_ptr 1
  .amdhsa_system_sgpr_workgroup_id_x 1
.end_amdhsa_kernel
"""

DESC = """
"""

if __name__ == "__main__":
    import argparse
    ap = argparse.ArgumentParser()
    ap.add_argument("-o", default="k.s")
    ap.add_argument("--prof", default=None)
    ap.add_argument("--opt", default="")
    args = ap.parse_args()
    opt = {kv.split("=")[0]: int(kv.split("=")[1]) for kv in args.opt.split(",") if kv}
    g = Gen(prof=args.prof, opt=opt)
    s = g.build()
    open(args.o, "w").write(s)
    print("wrote", args.o, "lines", s.count("\n"), "nops inserted", g.a.nops)
```

```python
def hdr(launches):
    return "".join(f"; @launch kernel={k} grid=({g},1,1) block=({b},1,1) lds={l}\n" for k,g,b,l in launches) + '.amdgcn_target "amdgcn-amd-amdhsa--gfx950"\n.text\n'
def kd(name, vgpr):
    return f""".section .rodata,"a"
.p2align 6
.amdhsa_kernel {name}
  .amdhsa_next_free_vgpr {vgpr}
  .amdhsa_next_free_sgpr 102
  .amdhsa_accum_offset {vgpr}
  .amdhsa_group_segment_fixed_size 0
  .amdhsa_kernarg_size 72
  .amdhsa_user_sgpr_count 2
  .amdhsa_user_sgpr_kernarg_segment_ptr 1
  .amdhsa_system_sgpr_workgroup_id_x 1
.end_amdhsa_kernel
.text
"""
PRO = """
    s_load_dwordx2 s[4:5], s[0:1], 64
    v_lshrrev_b32 v1, 6, v0
    s_nop 1
    v_readfirstlane_b32 s16, v1
    v_and_b32 v2, 63, v0
    s_waitcnt lgkmcnt(0)
    s_mov_b32 s8, s4
    s_mov_b32 s9, s5
    s_mov_b32 s10, 0x4000000
    s_mov_b32 s11, 0x20000
"""
def wk():
    return f""".globl w_kernel
.p2align 8
.type w_kernel,@function
w_kernel:
{PRO}
    v_lshlrev_b32 v3, 4, v0
    s_lshl_b32 s17, s2, 14
    s_add_u32 s17, s17, 0x1000000
    v_mov_b32 v4, 1
    v_mov_b32 v5, 2
    v_mov_b32 v6, 3
    v_mov_b32 v7, 4
    buffer_store_dwordx4 v[4:7], v3, s[8:11], s17 offen
    s_add_u32 s17, s17, 8192
    buffer_store_dwordx4 v[4:7], v3, s[8:11], s17 offen
    s_endpgm
""" + kd("w_kernel", 16)
def rk(block, kb, mode, groups=16, flags=""):
    nw = block//64
    nl = kb//nw
    s = f""".globl r_kernel
.p2align 8
.type r_kernel,@function
r_kernel:
{PRO}
    v_lshlrev_b32 v3, 4, v2
    s_and_b32 s17, s2, {groups-1}
    s_mul_i32 s17, s17, {kb*1024}
    s_add_u32 s17, s17, 0x1000000
    s_mul_i32 s18, s16, {nl*1024}
    s_add_u32 s17, s17, s18
    s_mov_b32 m0, s18
    s_barrier
    s_memtime s[14:15]
    s_waitcnt lgkmcnt(0)
"""
    for i in range(nl):
        if mode == "reg":
            if i and i % 4 == 0: s += f"    s_add_u32 s17, s17, 4096\n"
            s += f"    buffer_load_dwordx4 v[{8+4*i}:{11+4*i}], v3, s[8:11], s17 offen offset:{(i%4)*1024} {flags}\n"
        else:
            if i and i % 4 == 0: s += f"    s_add_u32 s17, s17, 4096\n    s_add_u32 m0, m0, 4096\n    s_nop 0\n"
            s += f"    buffer_load_dwordx4 v3, s[8:11], s17 offen offset:{(i%4)*1024} {flags} lds\n"
    s += f"""
    s_memtime s[20:21]
    s_waitcnt vmcnt(0) lgkmcnt(0)
    s_memtime s[22:23]
    s_barrier
    s_memtime s[18:19]
    s_waitcnt lgkmcnt(0)
    s_sub_u32 s18, s18, s14
    s_sub_u32 s20, s20, s14
    s_sub_u32 s22, s22, s14
    s_mul_i32 s17, s2, {nw}
    s_add_u32 s17, s17, s16
    s_lshl_b32 s17, s17, 4
    v_mov_b32 v4, s18
    v_mov_b32 v5, s20
    v_mov_b32 v6, s22
    v_mov_b32 v7, 0
    s_mov_b64 exec, 1
    buffer_store_dwordx3 v[4:6], v7, s[8:11], s17 offen
    s_waitcnt vmcnt(0)
    s_endpgm
""" + kd("r_kernel", 128)
    return s
names = []
for mode in ("reg", "lds"):
  for flags in ("", "sc1"):
    for block in (256, 512, 1024):
      for kb in (64, 112):
        for warm in (0, 1):
            if mode=="reg" and kb//(block//64) > 29: continue
            L = [("r_kernel",256,block,131072),("w_kernel",256,512,0),("r_kernel",256,block,131072)] + ([("r_kernel",256,block,131072)] if warm else [])
            n = f"l_{mode}{flags}_{block}_{kb}_{warm}.s"
            open(n,"w").write(hdr(L) + wk() + rk(block, kb, mode, flags=flags))
            names.append(n)
open("list3.txt","w").write(" ".join(names))
```

```python
import sys
sys.path.insert(0,"dev")
from asmb import Asm
from mkld import hdr, kd
def v(b,n=1): return f"v{b}" if n==1 else f"v[{b}:{b+n-1}]"
def gen(kind, iters=4, block=256):
    a = Asm()
    Q=32; O=64; S=128; P=160; KV=168
    if kind.startswith('pair'): Q=8; O=40; S=104; P=168; KV=184
    a("""s_load_dwordx2 s[4:5], s[0:1], 64
    s_load_dwordx2 s[20:21], s[0:1], 0
    v_lshrrev_b32 v1, 6, v0
    v_readfirstlane_b32 s16, v1
    v_lshlrev_b32 v3, 4, v0
    v_and_b32 v2, 63, v0
    v_lshlrev_b32 v2, 4, v2
    s_waitcnt lgkmcnt(0)
    s_mov_b32 s8, s4
    s_mov_b32 s9, s5
    s_mov_b32 s10, 0x4000000
    s_mov_b32 s11, 0x20000
    s_mov_b32 s24, s20
    s_mov_b32 s25, s21
    s_mov_b32 s26, 1835008
    s_mov_b32 s27, 0x20000
    s_mul_i32 s17, s2, 4096
    s_and_b32 s40, s2, 3
    s_lshl_b32 s40, s40, 18
    s_lshl_b32 s41, s16, 16
    s_add_u32 s40, s40, s41
    """)
    for i in range(8): a(f"buffer_load_dwordx4 {v(Q+4*i,4)}, v3, s[24:27], s17 offen\ns_add_u32 s17, s17, 8192")
    for i in range(16): a(f"buffer_load_dwordx4 {v(KV+4*i,4)}, v3, s[24:27], s17 offen\ns_add_u32 s17, s17, 8192")
    for i in range(O,KV): a(f"v_mov_b32 v{i}, 0")
    a("s_waitcnt vmcnt(0)")
    for i in range(40): a("s_sleep 8")
    a(f"s_barrier\ns_mov_b32 s12, {iters}\ns_memtime s[14:15]\ns_memrealtime s[30:31]\ns_waitcnt lgkmcnt(0)\nL_att:")
    def m32(d,A,B,C): a(f"v_mfma_f32_32x32x16_bf16 {v(d,16)}, {v(A,4)}, {v(B,4)}, {'0' if C is None else v(C,16)}")
    def ld(slot,j): a(f"buffer_load_dwordx4 {v(KV+16*slot+4*j,4)}, v2, s[24:27], s40 offen offset:{1024*j} sc1")
    def dsr(slot,j): a(f"ds_read_b128 {v(KV+16*slot+4*j,4)}, v3 offset:{4096*j}")
    if kind.startswith("pair"):
        Q=8; O=40; S=104; P=168; KV=184
        for n in range(8):
            kt, ip = n>>1, n&1
            pk, pp = ((n-1)&7)>>1, (n-1)&1
            nk, np_ = ((n+1)&7)>>1, (n+1)&1
            Sc, Sn = S+32*(n&1), S+32*((n+1)&1)
            ex = lambda t,r: a(f"v_exp_f32 {v(Sc+16*t+r)}, {v(Sc+16*t+r)}")
            cv = lambda t,j: a(f"v_cvt_pk_bf16_f32 {v(P+8*t+j)}, {v(Sc+16*t+2*j)}, {v(Sc+16*t+2*j+1)}")
            def mm(d,A,B,C):
                if kind=="pairB": m32(d,B,A,C)
                else: m32(d,A,B,C)
            PV1 = lambda t: mm(O+16*(2*pp+t), KV+16*pk+12, P+8*t+4, O+16*(2*pp+t))
            PV0 = lambda t: mm(O+16*(2*ip+t), KV+16*kt+8, P+8*t, O+16*(2*ip+t))
            S0 = lambda t: mm(Sn+16*t, KV+16*nk, Q+8*(2*np_+t), None)
            S1 = lambda t: mm(Sn+16*t, KV+16*nk+4, Q+8*(2*np_+t)+4, Sn+16*t)
            ex(0,0); ex(0,1); PV1(0)
            for r in range(2,6): ex(0,r)
            PV1(1); ex(0,6); ex(0,7); ex(1,0); ex(1,1); cv(0,0); cv(0,1)
            S0(0); ex(1,2); ex(1,3); ex(1,4); ex(1,5); cv(0,2); cv(0,3)
            S0(1); ex(1,6); ex(1,7); ex(0,8); ex(0,9); cv(1,0); cv(1,1)
            S1(0); ex(0,10); ex(0,11); ex(0,12); ex(0,13); cv(1,2); cv(1,3)
            S1(1); ex(0,14); ex(0,15); ex(1,8); ex(1,9); cv(0,4); cv(0,5)
            PV0(0); ex(1,10); ex(1,11); ex(1,12); ex(1,13); cv(0,6); cv(0,7)
            PV0(1); ex(1,14); ex(1,15); cv(1,4); cv(1,5); cv(1,6); cv(1,7)
    for n in range(0 if kind.startswith("pair") else 16):
        kt,i = n>>2, n&3
        pk,pi = ((n-1)&15)>>2,(n-1)&3
        nk,ni = ((n+1)&15)>>2,(n+1)&3
        Sc,Sn = S+16*(n&1), S+16*((n+1)&1)
        ex = lambda r: a(f"v_exp_f32 {v(Sc+r)}, {v(Sc+r)}")
        cv = lambda j: a(f"v_cvt_pk_bf16_f32 {v(P+j)}, {v(Sc+2*j)}, {v(Sc+2*j+1)}")
        PV1 = lambda: m32(O+16*pi, KV+16*pk+12, P+4, O+16*pi)
        S0 = lambda: m32(Sn, KV+16*nk, Q+8*ni, None)
        S1 = lambda: m32(Sn, KV+16*nk+4, Q+8*ni+4, Sn)
        PV0 = lambda: m32(O+16*i, KV+16*kt+8, P, O+16*i)
        def L():
            if kind in ("ld","ordB_ld","ordC_ld"):
                ld((kt+3)&3,i)
                if i==3: a("s_add_u32 s40, s40, 4096")
            elif kind=="ld4" and i==1:
                for j in range(4): ld((kt+3)&3,j)
                a("s_add_u32 s40, s40, 4096")
            elif kind=="ds": dsr((kt+3)&3,i)
        def Wt():
            if i==3:
                if kind in("ld","ordB_ld","ordC_ld"): a("s_waitcnt vmcnt(7)")
                elif kind=="ld4": a("s_waitcnt vmcnt(8)")
                elif kind=="ds": a("s_waitcnt lgkmcnt(3)")
        if kind.startswith("ordB"):
            ex(0); ex(1); PV1(); ex(2); ex(3); ex(4); ex(5); cv(0); cv(1)
            Wt(); S0(); ex(6); ex(7); ex(8); ex(9); cv(2); cv(3)
            S1(); ex(10); ex(11); ex(12); ex(13); cv(4); cv(5)
            PV0(); L(); ex(14); ex(15); a("s_nop 0"); cv(6); cv(7)
        elif kind.startswith("ordC"):
            ex(0); ex(1); PV1(); ex(2); ex(3); cv(0); ex(4); ex(5); cv(1)
            Wt(); S0(); ex(6); ex(7); cv(2); ex(8); ex(9); cv(3)
            S1(); ex(10); ex(11); cv(4); ex(12); ex(13); cv(5)
            PV0(); L(); ex(14); ex(15); cv(6); cv(7)
        else:
            ex(0); ex(1); PV1()
            for r in range(2,6): ex(r)
            Wt(); S0(); ex(6); ex(7); cv(0); cv(1); cv(2); S1(); cv(3)
            for r in range(8,12): ex(r)
            PV0(); L()
            for r in range(12,16): ex(r)
            for j in range(4,8): cv(j)
    nw = block//64
    a(f"""s_sub_u32 s12, s12, 1
    s_cmp_lg_u32 s12, 0
    s_cbranch_scc1 L_att
    s_memtime s[18:19]
    s_memrealtime s[32:33]
    s_waitcnt lgkmcnt(0) vmcnt(0)
    s_sub_u32 s18, s18, s14
    s_sub_u32 s32, s32, s30
    s_mul_i32 s17, s2, {nw}
    s_add_u32 s17, s17, s16
    s_lshl_b32 s17, s17, 4
    v_mov_b32 v4, s18
    v_mov_b32 v5, s32
    v_mov_b32 v6, v64
    v_mov_b32 v7, 0
    s_mov_b64 exec, 1
    buffer_store_dwordx3 v[4:6], v7, s[8:11], s17 offen
    s_waitcnt vmcnt(0)
    s_endpgm""")
    body = a.resolve()
    print(kind, "nops", a.nops)
    return hdr([("r_kernel",256,block,131072)]) + ".globl r_kernel\n.p2align 8\n.type r_kernel,@function\nr_kernel:\n" + body + kd("r_kernel",256)
names=[]
for kind in ("base","pair","pairB"):
    n=f"b_{kind}.s"; open(n,"w").write(gen(kind)); names.append(n)
open("list9.txt","w").write(" ".join(names))
```
